```python
import torch

def _softmax(x, axis=-1):
    return torch.softmax(x, dim=axis)
def _gelu(x):
    return torch.nn.functional.gelu(x, approximate="tanh")
def _silu(x):
    return torch.nn.functional.silu(x)
def _sigmoid(x):
    return torch.sigmoid(x)
def _layernorm(x, axis=-1, eps=1e-5):
    m = x.mean(dim=axis, keepdim=True)
    v = x.var(dim=axis, keepdim=True, unbiased=False)
    return (x - m) / torch.sqrt(v + eps)
def _scatter_add(tgt, idx, src, axis=0):
    return tgt.clone().index_add_(axis, idx, src)
def _segment_sum(src, seg, n):
    out = torch.zeros((n,) + src.shape[1:], dtype=src.dtype)
    return out.index_add_(0, seg, src)
def _pad(x, pw):
    flat = tuple(v for pair in reversed(pw) for v in pair)
    return torch.nn.functional.pad(x, flat)

kernel_name = 'sequential_preLN__gqa_block_cached__dense_activation_squared_relu__decode'

def setup_inputs():

    _w = (lambda a: (lambda t: t.to(torch.bfloat16) if t.is_floating_point() else t)(torch.as_tensor(a)))
    def _A_setup():
        B, Sq, D = 2, 1, 448
        Hq, Hkv, Sk, Dh = 16, 8, 32768, 256
        assert Hq % Hkv == 0, (Hq, Hkv)
        return {
            "x": _w((lambda *s: torch.randn(*s, dtype=torch.bfloat16) * 0.05)(B, Sq, D)),
            "k_cache": _w((lambda *s: torch.randn(*s, dtype=torch.bfloat16) * 3.2)(B, Hkv, Sk, Dh)),
            "v_cache": _w((lambda *s: torch.randn(*s, dtype=torch.bfloat16) * 0.4)(B, Hkv, Sk, Dh)),
            "wq": _w((lambda *s: torch.randn(*s, dtype=torch.bfloat16) * 3.2)(D, Hq * Dh) * (D ** -0.5)),
            "wo": _w((lambda *s: torch.randn(*s, dtype=torch.bfloat16) * 0.4)(Hq * Dh, D) * ((Hq * Dh) ** -0.5)),
        }
    _A_in = _A_setup()

    def _B_setup():
        B, S, D, F = 2, 1, 448, 1792
        return {
            "x": _w((lambda *s: torch.randn(*s, dtype=torch.bfloat16) * 0.05)(B, S, D)),
            "w1": _w((lambda *s: torch.randn(*s, dtype=torch.bfloat16) * 0.05)(D, F)),
            "b1": _w((lambda *s: torch.randn(*s, dtype=torch.bfloat16) * 0.8)(F)),
            "w2": _w((lambda *s: torch.randn(*s, dtype=torch.bfloat16) * 0.05)(F, D)),
            "b2": _w((lambda *s: torch.randn(*s, dtype=torch.bfloat16) * 3.2)(D)),
        }
    _B_in = _B_setup()

    return {
        "A_x": _A_in["x"],
        "A_k_cache": _A_in["k_cache"],
        "A_v_cache": _A_in["v_cache"],
        "A_wq": _A_in["wq"],
        "A_wo": _A_in["wo"],
        "B_x": _B_in["x"],
        "B_w1": _B_in["w1"],
        "B_b1": _B_in["b1"],
        "B_w2": _B_in["w2"],
        "B_b2": _B_in["b2"],
    }

def reference(A_x, A_k_cache, A_v_cache, A_wq, A_wo, B_x, B_w1, B_b1, B_w2, B_b2):
    def _A_ref(x, k_cache, v_cache, wq, wo):
        B, Sq, D = x.shape
        Hq, Dh = 16, 256
        Hkv = k_cache.shape[1]
        rep = Hq // Hkv
        q = (lambda x, *d: x.permute(*d))((x @ wq).reshape(B, Sq, Hq, Dh), 0, 2, 1, 3)
        k = (lambda x, n, axis: torch.repeat_interleave(x, n, dim=axis))(k_cache, rep, axis=1)
        v = (lambda x, n, axis: torch.repeat_interleave(x, n, dim=axis))(v_cache, rep, axis=1)
        scores = torch.einsum("bhqd,bhkd->bhqk", q, k) * (Dh ** -0.5)
        p = _softmax(scores, axis=-1)
        o = torch.einsum("bhqk,bhkd->bhqd", p, v)
        return (lambda x, *d: x.permute(*d))(o, 0, 2, 1, 3).reshape(B, Sq, Hq * Dh) @ wo

    def _B_ref(x, w1, b1, w2, b2):
        h = torch.einsum("bsd,df->bsf", x, w1) + b1
        zero = torch.zeros_like(h)
        r = torch.where(h > zero, h, zero)
        h = r * r
        out = torch.einsum("bsf,fd->bsd", h, w2) + b2
        return out

    x = A_x
    h = x + _A_ref(_layernorm(x, axis=-1), A_k_cache, A_v_cache, A_wq, A_wo)
    h2 = h + _B_ref(_layernorm(h, axis=-1), B_w1, B_b1, B_w2, B_b2)
    return h2
```

```python
import re

TRANS = ("v_exp_f32", "v_log_f32", "v_rcp_f32", "v_rsq_f32", "v_sqrt_f32", "v_sin_f32", "v_cos_f32", "v_rcp_iflag_f32")

def regs_of(op):
    op = op.strip()
    op = op.lstrip("-")
    if op.startswith("abs(") : op = op[4:-1]
    if op.startswith("|"): op = op.strip("|")
    m = re.fullmatch(r"([vas])(\d+)", op)
    if m: return [(m.group(1), int(m.group(2)))]
    m = re.fullmatch(r"([vas])\[(\d+):(\d+)\]", op)
    if m: return [(m.group(1), i) for i in range(int(m.group(2)), int(m.group(3)) + 1)]
    if op == "vcc": return [("s", "vcc_lo"), ("s", "vcc_hi")]
    if op in ("vcc_lo", "vcc_hi"): return [("s", op)]
    if op == "exec": return [("s", "exec_lo"), ("s", "exec_hi")]
    if op in ("exec_lo", "exec_hi"): return [("s", op)]
    if op == "m0": return [("s", "m0")]
    return []

class Ins:
    def __init__(self, text):
        self.text = text
        t = text.split(";")[0].strip()
        self.label = None
        self.is_ins = True
        if not t or t.startswith("."):
            self.is_ins = False; self.mn = ""; return
        if t.endswith(":"):
            self.label = t[:-1]; self.is_ins = False; self.mn = ""; return
        parts = t.split(None, 1)
        mn = parts[0]
        rest = parts[1] if len(parts) > 1 else ""
        ops = []; cur = ""; d = 0
        for ch in rest:
            if ch in "[(": d += 1
            if ch in "])": d -= 1
            if ch == "," and d == 0:
                ops.append(cur.strip()); cur = ""
            else: cur += ch
        if cur.strip(): ops.append(cur.strip())
        mods = ""
        if ops:
            lp = ops[-1].split(None, 1)
            ops[-1] = lp[0]
            mods = lp[1] if len(lp) > 1 else ""
        self.mnfull = mn
        for suf in ("_e32", "_e64", "_dpp", "_sdwa"):
            if mn.endswith(suf): mn = mn[: -len(suf)]
        self.mn = mn; self.ops = ops; self.mods = mods
        self.dpp = self.mnfull.endswith("_dpp")
        self.sdwa = self.mnfull.endswith("_sdwa")
        self.mfma = mn.startswith("v_mfma")
        self.valu = mn.startswith("v_") and not self.mfma
        self.trans = mn in TRANS
        self.vmem = mn.startswith(("buffer_", "global_"))
        self.ds = mn.startswith("ds_")
        self.salu = mn.startswith("s_")
        self.ws = 1
        if mn == "s_nop": self.ws = int(ops[0], 0) + 1
        self.target = None
        if mn.startswith("s_cbranch") or mn == "s_branch": self.target = ops[0]
        if mn == "s_call_b64": self.target = ops[1]
        R = [regs_of(o) for o in ops]
        flat = lambda l: [x for y in l for x in y]
        self.w = []; self.r = []; self.srcc = []; self.ab = []; self.stdata = []
        self.ldsdma = False
        if self.mfma:
            self.w = R[0]; self.ab = R[1] + R[2]; self.srcc = R[3]; self.r = self.ab + self.srcc
        elif self.valu:
            if mn.startswith("v_permlane") and "swap" in mn:
                self.w = R[0] + R[1]; self.r = R[0] + R[1]
            elif mn in ("v_add_co_u32", "v_addc_co_u32", "v_sub_co_u32"):
                self.w = R[0] + R[1]; self.r = flat(R[2:])
            elif mn == "v_nop":
                pass
            else:
                self.w = R[0]; self.r = flat(R[1:])
                if mn in ("v_fmac_f32", "v_dot2c_f32_bf16", "v_writelane_b32") or self.dpp or (self.sdwa and not mn.startswith('v_cmp')): self.r = self.r + R[0]
        elif self.vmem:
            lds = (" lds" in " " + mods) or "_lds_" in mn
            if lds:
                self.ldsdma = True; self.r = flat(R) + [("s", "m0")]
            elif "_load_" in mn:
                self.w = R[0]; self.r = flat(R[1:])
            elif mn.startswith("buffer_store"):
                self.r = flat(R); self.stdata = R[0] if len(R[0]) >= 3 else []
            elif mn.startswith("global_store"):
                self.r = flat(R); self.stdata = R[1] if len(R[1]) >= 3 else []
            elif "atomic" in mn:
                self.r = flat(R)
                if "sc0" in mods: self.w = R[0]
            else:
                self.r = flat(R)
        elif self.ds:
            if mn.startswith("ds_read") or mn.startswith("ds_bpermute") or mn.startswith("ds_swizzle"):
                self.w = R[0]; self.r = flat(R[1:])
            else:
                self.r = flat(R)
        elif self.salu:
            if mn.startswith(("s_cmp", "s_bitcmp", "s_cbranch", "s_branch", "s_waitcnt", "s_nop", "s_barrier", "s_sleep", "s_setprio", "s_endpgm", "s_setpc")):
                self.r = flat(R)
            else:
                self.w = R[0] if R else []; self.r = flat(R[1:])

def vec(l): return set(x for x in l if x[0] in "va")
def sca(l): return set(x for x in l if x[0] == "s")

def need(p, c):
    n = 0
    if p.valu:
        pw = vec(p.w); ps = sca(p.w)
        if c.mfma and pw & vec(c.r): n = max(n, 2)
        if c.valu and c.dpp and pw & vec(c.r): n = max(n, 2)
        if c.valu and c.mn.startswith("v_permlane") and pw & vec(c.r): n = max(n, 2)
        if c.mn in ("v_readlane_b32", "v_readfirstlane_b32") and pw & vec(c.r): n = max(n, 1)
        if p.trans and c.valu and pw & vec(c.r): n = max(n, 1)
        if p.trans and (c.vmem or c.ds) and pw & vec(c.r): n = max(n, 1)
        if p.sdwa and c.valu and pw & (vec(c.r) | vec(c.w)): n = max(n, 1)
        if ps:
            if c.valu and ps & sca(c.r): n = max(n, 2)
            if c.valu and c.mn == "v_cndmask_b32" and len(c.ops) == 3 and ("s", "vcc_lo") in ps: n = max(n, 2)
            if c.vmem and ps & sca(c.r): n = max(n, 5)
            if c.mn in ("v_readlane_b32", "v_writelane_b32") and ps & sca(c.r): n = max(n, 4)
    if p.mfma:
        d = vec(p.w)
        if c.mfma:
            if d & vec(c.ab): n = max(n, 8)
            if d & vec(c.srcc) and vec(c.srcc) != d: n = max(n, 6)
            if d & vec(c.w) and vec(c.srcc) != d: n = max(n, 8)
        elif c.valu or c.vmem or c.ds:
            if d & (vec(c.r) | vec(c.w)): n = max(n, 8)
        if c.valu and vec(p.srcc) & vec(c.w): n = max(n, 3)
    if p.vmem and p.stdata:
        if vec(p.stdata) & vec(c.w): n = max(n, 2)
    if p.salu and ("s", "m0") in p.w and c.is_ins and c.vmem and c.ldsdma: n = max(n, 1)
    return n

class Asm:
    def __init__(self):
        self.L = []
        self.nops = 0
    def raw(self, text):
        self.L.append(Ins(text))
    def __call__(self, text):
        for line in text.split("\n"):
            line = line.strip()
            if not line: continue
            i = Ins(line)
            if i.is_ins:
                k = self.short(self.L, i)
                while k > 0:
                    kk = min(k, 16)
                    self.L.append(Ins(f"s_nop {kk-1}")); k -= kk
                    self.nops += 1
            self.L.append(i)
    @staticmethod
    def short(prev, c):
        dist = 0; k = 0
        for p in reversed(prev):
            if not p.is_ins: continue
            if p.mn in ("s_branch", "s_endpgm", "s_setpc_b64") and dist == 0 and False: break
            k = max(k, need(p, c) - dist)
            dist += p.ws
            if dist >= 12: break
        return k
    def check_edges(self, returns=()):
        lab = {i.label: n for n, i in enumerate(self.L) if i.label}
        bad = []
        edges = []
        for n, i in enumerate(self.L):
            if i.is_ins and i.target in lab and i.mn != 's_cbranch_execz': edges.append((n, lab[i.target]))
        for (frm, to) in returns:
            edges.append((lab[frm], lab[to]))
        for n, t in edges:
            prev = self.L[max(0, n - 40): n + 1]
            seq = list(prev)
            cnt = 0
            j = t
            while j < len(self.L) and cnt < 12:
                c = self.L[j]; j += 1
                if not c.is_ins: continue
                k = self.short(seq, c)
                if k > 0: bad.append((self.L[n].text, c.text, k))
                seq.append(c); cnt += c.ws
                if c.mn == "s_branch" and c.target in lab: j = lab[c.target]
                elif c.mn in ("s_endpgm", "s_setpc_b64"): break
        return bad
    def text(self):
        out = []
        for i in self.L:
            out.append(("  " + i.text) if i.is_ins else i.text)
        return "\n".join(out) + "\n"
```

```python
import sys, struct
from asmlib import Asm
NAME = "sequential_preLN__gqa_block_cached__dense_activation_squared_relu__decode"

def f2u(x): return struct.unpack("<I", struct.pack("<f", x))[0]

WS_EP = 0x0
WS_QG = 0x1000
WS_REC = 0x10000
WS_ML = 0x90000
WS_H = 0xA0000
WS_P = 0xB0000
WS_TS = 0x100000
L_WT = 0
L_WT2 = 57344
L_SM = 114688
L_XN = L_SM
L_QB = L_SM + 2048
L_OB = L_SM + 3072
L_HB = L_SM + 4096
L_UB = L_SM + 5120
L_ZB = L_SM + 5248
L_END = L_SM + 5376

SPIN = 1 << 19

def gen(dbg=False, kflags="nt", vflags="nt", wflags="nt", qflags="", PD=24, vperm=True, warm=True,
        counts=None, rot=True, nextra=3, dma_depth=8, round_scores=True):
    A = Asm()
    stamp_n = [0]
    def stamp(k):
        if dbg:
            A(f"s_memrealtime s[92:93]")
            A("s_waitcnt lgkmcnt(0)")
            A(f"v_writelane_b32 v63, s92, {k}")
    pads = []
    def pad(chain):
        if not warm: return
        n = sum(1 for p in pads if p == chain)
        pads.append(chain)
        A(f"L_{chain}{n}:")
        A(f"s_cbranch_execz L_{chain}{n+1}")
    def pad_end(chain):
        if not warm: return
        n = sum(1 for p in pads if p == chain)
        A(f"L_{chain}{n}:")
        A(f"s_cbranch_execz L_{chain}_ret")
    def run_chain(chain):
        if not warm: return
        A("s_mov_b64 exec, 0")
        A(f"s_branch L_{chain}0")
        A(f"L_{chain}_ret:")
        A("s_mov_b64 exec, -1")

    A.raw(f"; @launch grid=(256,1,1) block=(256,1,1) lds={L_END}")
    A.raw('.amdgcn_target "amdgcn-amd-amdhsa--gfx950"')
    A.raw(".text")
    A.raw(f".globl {NAME}_kernel")
    A.raw(".p2align 8")
    A.raw(f".type {NAME}_kernel,@function")
    A.raw(f"{NAME}_kernel:")
    A("s_cmp_ge_u32 s2, 256")
    A("s_cbranch_scc1 L_end")
    A("s_load_dwordx16 s[4:19], s[0:1], 0")
    A("s_load_dwordx8 s[20:27], s[0:1], 64")
    A("s_load_dwordx2 s[28:29], s[0:1], 96")
    if dbg:
        A("v_mov_b32 v63, 0")
        A("s_memrealtime s[92:93]")
    A("v_lshrrev_b32 v1, 6, v0")
    A("v_and_b32 v0, 63, v0")
    A("v_readfirstlane_b32 s3, v1")
    A("s_and_b32 s30, s2, 7")
    A("s_bfe_u32 s31, s2, 0x10003")
    A("s_lshr_b32 s32, s2, 4")
    A("s_and_b32 s33, s2, 15")
    A("s_sub_u32 s35, s32, 7")
    A("s_lshl_b32 s35, s35, 3")
    A("s_add_u32 s35, s35, s30")
    A("s_cmp_lt_u32 s35, 28")
    A("s_cselect_b32 s34, 2, 0")
    A("s_cmp_lt_u32 s32, 7")
    A("s_cselect_b32 s34, 1, s34")
    A("s_cselect_b32 s35, s32, s35")
    A("v_and_b32 v60, 15, v0")
    A("v_lshrrev_b32 v61, 4, v0")
    A("s_cmp_eq_u32 s3, 1")
    A("s_cbranch_scc1 L_w1")
    A("s_cmp_eq_u32 s3, 2")
    A("s_cbranch_scc1 L_w2")
    A("s_cmp_eq_u32 s3, 3")
    A("s_cbranch_scc1 L_w3")

    if vperm:
        A("v_and_b32 v1, 3, v60")
        A("v_lshrrev_b32 v2, 2, v60")
        A("v_lshl_add_u32 v1, v1, 2, v2")
        A("v_lshlrev_b32 v1, 9, v1")
        A("v_lshl_add_u32 v1, v61, 4, v1")
        A("v_lshlrev_b32 v2, 4, v60")
        A("v_lshl_add_u32 v2, v61, 9, v2")
        A("v_add_u32 v3, 4096, v2")
        vld = [("v2" if r < 2 else "v3", (r & 1) * 2048 + dh * 256) for r in range(4) for dh in range(2)]
    else:
        A("v_lshlrev_b32 v1, 9, v60")
        A("v_lshl_add_u32 v1, v61, 4, v1")
        A("v_lshlrev_b32 v2, 4, v60")
        A("v_lshl_add_u32 v2, v61, 11, v2")
        vld = [("v2", r * 512 + dh * 256) for r in range(4) for dh in range(2)]
    if counts is None:
        A("s_lshl_b32 s52, s32, 20")
        A("s_add_u32 s53, s52, 0x100000")
        A(f"s_mov_b32 s55, {128 - nextra}")
    else:
        cW, cF = counts
        rest = 2048 - 7 * cW - 4 * cF
        cN, remN = divmod(rest, 5)
        A("s_min_u32 s52, s32, 7")
        A(f"s_mul_i32 s52, s52, {cW}")
        A("s_max_u32 s53, s32, 7"); A("s_min_u32 s53, s53, 11"); A("s_sub_u32 s53, s53, 7")
        A(f"s_mul_i32 s53, s53, {cF}"); A("s_add_u32 s52, s52, s53")
        A("s_max_u32 s53, s32, 11"); A("s_sub_u32 s53, s53, 11")
        A(f"s_mul_i32 s54, s53, {cN}"); A("s_add_u32 s52, s52, s54")
        A(f"s_min_u32 s53, s53, {remN}"); A("s_add_u32 s52, s52, s53")
        A(f"s_cmp_lt_u32 s32, {11 + remN}"); A(f"s_cselect_b32 s55, {cN + 1}, {cN}")
        A("s_cmp_lt_u32 s32, 11"); A(f"s_cselect_b32 s55, {cF}, s55")
        A("s_cmp_lt_u32 s32, 7"); A(f"s_cselect_b32 s55, {cW}, s55")
        A("s_add_u32 s53, s52, s55")
        A("s_lshl_b32 s52, s52, 13"); A("s_lshl_b32 s53, s53, 13")
        A(f"s_sub_u32 s55, s55, {nextra}")
    if rot:
        A("s_lshr_b32 s54, s2, 3")
        A("s_lshl_b32 s54, s54, 13")
        A("s_add_u32 s54, s54, s52")
    else:
        A("s_mov_b32 s54, s52")
    A("s_lshl_b32 s56, s33, 24")
    A("s_mov_b32 s38, 0x1000000")
    A("s_mov_b32 s39, 0x20000")
    A("s_mov_b32 s42, 0x1000000")
    A("s_mov_b32 s43, 0x20000")
    A("s_waitcnt lgkmcnt(0)")
    if dbg: A("v_writelane_b32 v63, s92, 0")
    A("s_add_u32 s36, s6, s56")
    A("s_addc_u32 s37, s7, 0")
    A("s_and_b32 s37, s37, 0xffff")
    A("s_add_u32 s40, s8, s56")
    A("s_addc_u32 s41, s9, 0")
    A("s_and_b32 s41, s41, 0xffff")
    ring = [("a", 0), ("a", 64), ("a", 128)]
    extra = [("a", 192), ("v", 128), ("v", 192)][:nextra]
    def R4(slot, k):
        c, b = slot
        return f"{c}[{b+4*k}:{b+4*k+3}]"
    def ldK(slot, j): A(f"buffer_load_dwordx4 {R4(slot, j)}, v1, s[36:39], s54 offen offset:{64*j} {kflags}")
    def ldV(slot, i): A(f"buffer_load_dwordx4 {R4(slot, 8+i)}, {vld[i][0]}, s[40:43], s54 offen offset:{vld[i][1]} {vflags}")
    def adv():
        A("s_add_u32 s54, s54, 0x2000")
        A("s_cmp_eq_u32 s54, s53")
        A("s_cselect_b32 s54, s52, s54")
    nissued = 0
    for slot in ring + extra:
        for k in range(16):
            if nissued >= PD and nissued % 4 == 0: A(f"s_waitcnt vmcnt({PD-4})")
            if k < 8: ldK(slot, k)
            else: ldV(slot, k - 8)
            nissued += 1
        adv()
        if slot == ring[0]:
            A("v_and_b32 v21, 1, v60")
            A("v_mov_b32 v22, 0xffff")
            A("v_lshlrev_b32 v21, 4, v21")
            A("v_lshlrev_b32 v22, v21, v22")
            A("v_bfe_u32 v21, v60, 1, 2")
            for k in range(4):
                A(f"v_cmp_eq_u32 vcc, {k}, v21")
                A(f"v_cndmask_b32 v{4+k}, 0, v22, vcc")
            A("v_mov_b32 v19, 0xff7fffff")
            A("v_mov_b32 v20, 0")
            for k in range(32, 40): A(f"v_mov_b32 v{k}, 0")
            A(f"s_mov_b32 s57, 0x{f2u(0.0625 * 1.4426950408889634):x}")
            A("s_mov_b32 s58, 0")
            A("v_lshrrev_b32 v21, 3, v60")
            A("v_lshlrev_b32 v21, 9, v21")
            A("v_lshl_add_u32 v21, v61, 4, v21")
    stamp(1)
    A("s_barrier")
    A(f"v_add_u32 v21, {L_QB}, v21")
    for j in range(8):
        A(f"ds_read_b128 v[{64+4*j}:{67+4*j}], v21 offset:{64*j}")
    A("s_waitcnt lgkmcnt(0)")
    stamp(2)
    A("s_branch L_loop")

    sites = []
    def tile(slot, loads, name):
        if loads:
            A("s_cmp_gt_u32 s55, 3")
            A("s_cselect_b32 s38, 0x1000000, 0")
            A("s_mov_b32 s42, s38")
        for j in range(8):
            if loads: A("s_waitcnt vmcnt(47)")
            A(f"v_mfma_f32_16x16x32_bf16 v[8:11], {R4(slot, j)}, v[{64+4*j}:{67+4*j}], {'0' if j == 0 else 'v[8:11]'}")
            if loads: ldK(slot, j)
        if round_scores:
            A("v_cvt_pk_bf16_f32 v12, v8, v9")
            A("v_cvt_pk_bf16_f32 v13, v10, v11")
            A("v_lshlrev_b32 v14, 16, v12")
            A("v_and_b32 v15, 0xffff0000, v12")
            A("v_lshlrev_b32 v16, 16, v13")
            A("v_and_b32 v17, 0xffff0000, v13")
        else:
            for r in range(4): A(f"v_mov_b32 v{14+r}, v{8+r}")
        A("v_max3_f32 v18, v14, v15, v16")
        A("v_max_f32 v18, v18, v17")
        A("v_cmp_gt_f32 vcc, v18, v19")
        A(f"s_cbranch_vccnz L_stub_{name}")
        A(f"L_back_{name}:")
        sites.append(name)
        for r in range(4): A(f"v_sub_f32 v{14+r}, v{14+r}, v19")
        for r in range(4): A(f"v_mul_f32 v{14+r}, s57, v{14+r}")
        for r in range(4): A(f"v_exp_f32 v{14+r}, v{14+r}")
        for r in range(4): A(f"v_cvt_pk_bf16_f32 v{40+r}, v{14+r}, v{14+r}")
        def mkA(r):
            for k in range(4): A(f"v_and_b32 v{24+4*(r&1)+k}, v{40+r}, v{4+k}")
        mkA(0)
        A("v_add_f32 v14, v14, v15")
        A("v_add_f32 v16, v16, v17")
        for r in range(4):
            a = 24 + 4 * (r & 1)
            if loads: A("s_waitcnt vmcnt(47)")
            A(f"v_mfma_f32_16x16x32_bf16 v[32:35], v[{a}:{a+3}], {R4(slot, 8+2*r)}, v[32:35]")
            if loads: ldV(slot, 2 * r)
            if loads: A("s_waitcnt vmcnt(47)")
            A(f"v_mfma_f32_16x16x32_bf16 v[36:39], v[{a}:{a+3}], {R4(slot, 9+2*r)}, v[36:39]")
            if loads: ldV(slot, 2 * r + 1)
            if r < 3: mkA(r + 1)
            if r == 0: A("v_add_f32 v14, v14, v16")
            if r == 1: A("v_add_f32 v20, v20, v14")
        if loads:
            adv()
            A("s_sub_u32 s55, s55, 1")
            A("s_cmp_eq_u32 s55, 0")
            A("s_cbranch_scc1 L_sdone")
    A.raw(".p2align 6")
    A("L_loop:")
    for i, slot in enumerate(ring):
        pad("ca")
        tile(slot, True, f"r{i}")
    A("s_add_u32 s58, s58, 1")
    for i in range(nextra):
        A(f"s_cmp_eq_u32 s58, {2*i+2}")
        A(f"s_cbranch_scc1 L_x{i}")
    A("s_branch L_loop")
    pad("ca")
    A("L_rare:")
    A("v_mov_b32 v21, v18")
    A("v_permlane32_swap_b32 v21, v18")
    A("v_max_f32 v18, v18, v21")
    A("v_mov_b32 v21, v18")
    A("v_permlane16_swap_b32 v21, v18")
    A("v_max3_f32 v18, v18, v21, v19")
    A("v_sub_f32 v21, v19, v18")
    A("v_mul_f32 v21, s57, v21")
    A("v_exp_f32 v21, v21")
    A("v_mov_b32 v19, v18")
    A("v_mul_f32 v20, v20, v21")
    A("v_readlane_b32 s60, v21, 0")
    A("v_readlane_b32 s61, v21, 8")
    A("v_mov_b32 v21, s60")
    A("s_mov_b32 exec_lo, 0")
    A("v_mov_b32 v21, s61")
    A("s_mov_b32 exec_lo, -1")
    for k in range(32, 40): A(f"v_mul_f32 v{k}, v{k}, v21")
    A("L_rare_ret:")
    A("s_setpc_b64 s[62:63]")
    for i in range(nextra):
        pad("ca")
        A(f"L_x{i}:")
        tile(extra[i], False, f"x{i}")
        A("s_branch L_loop")
    for nm in sites:
        A(f"L_stub_{nm}:")
        A("s_call_b64 s[62:63], L_rare")
        A(f"s_branch L_back_{nm}")
    pad_end("ca")
    A("L_sdone:")
    pad("cb")
    stamp(3)
    A("v_mov_b32 v21, v20")
    A("v_lshrrev_b32 v22, 1, v61")
    A("v_permlane32_swap_b32 v21, v20")
    A("v_lshlrev_b32 v22, 14, v22")
    A("v_add_f32 v20, v20, v21")
    A("v_lshl_add_u32 v22, v60, 5, v22")
    A("v_mov_b32 v21, v20")
    A("v_and_b32 v23, 1, v61")
    A("v_lshl_add_u32 v22, v23, 4, v22")
    A("v_permlane16_swap_b32 v21, v20")
    A("s_lshl_b32 s60, s33, 15")
    A("s_lshl_b32 s61, s32, 9")
    A("s_add_u32 s60, s60, s61")
    A(f"s_add_u32 s60, s60, {WS_REC}")
    A("v_add_u32 v22, s60, v22")
    A("v_add_u32 v23, 0x2000, v22")
    for k in range(32, 40): A(f"v_min_u32 v{k}, -2, v{k}")
    A("global_store_dwordx4 v22, v[32:35], s[28:29] sc1")
    A("global_store_dwordx4 v23, v[36:39], s[28:29] sc1")
    A("v_add_f32 v25, v20, v21")
    A("v_min_u32 v24, -2, v19")
    A("v_min_u32 v25, -2, v25")
    A("s_lshl_b32 s60, s33, 8")
    A("s_lshl_b32 s61, s32, 3")
    A("s_add_u32 s60, s60, s61")
    A(f"s_add_u32 s60, s60, {WS_ML}")
    A("v_lshl_add_u32 v22, v0, 4, s60")
    A("s_mov_b64 exec, 0x101")
    A("global_store_dwordx2 v22, v[24:25], s[28:29] sc1")
    A("s_mov_b64 exec, -1")
    A("s_cmp_eq_u32 s34, 0")
    A("s_cbranch_scc1 L_fin")
    A("s_branch L_tail")

    def reduce_sum(v, t, width):
        for sh in (8, 4, 2, 1):
            A(f"v_add_f32_dpp v{v}, v{v}, v{v} row_ror:{sh} row_mask:0xf bank_mask:0xf")
        A(f"v_mov_b32 v{t}, v{v}")
        A(f"v_permlane16_swap_b32 v{t}, v{v}")
        A(f"v_add_f32 v{v}, v{v}, v{t}")
        if width == 64:
            A(f"v_mov_b32 v{t}, v{v}")
            A(f"v_permlane32_swap_b32 v{t}, v{v}")
            A(f"v_add_f32 v{v}, v{v}, v{t}")
    def layernorm(X, D, npair, T, width, out, emask=None):
        P = lambda r: f"v[{r}:{r+1}]"
        if emask:
            A(f"v_mov_b32 v{T}, 0"); A(f"v_mov_b32 v{T+2}, 0")
            A(f"s_mov_b64 exec, {emask}")
        A(f"v_pk_add_f32 {P(T+4)}, {P(X)}, {P(X+2)}")
        for i in range(2, npair): A(f"v_pk_add_f32 {P(T+4)}, {P(T+4)}, {P(X+2*i)}")
        A(f"v_add_f32 v{T}, v{T+4}, v{T+5}")
        if emask: A("s_mov_b64 exec, -1")
        reduce_sum(T, T + 1, width)
        A(f"v_mul_f32 v{T}, 0x{f2u(1.0/448):x}, v{T}")
        if emask: A(f"s_mov_b64 exec, {emask}")
        for i in range(npair):
            A(f"v_pk_add_f32 {P(D+2*i)}, {P(X+2*i)}, {P(T)} op_sel_hi:[1,0] neg_lo:[0,1] neg_hi:[0,1]")
        A(f"v_pk_mul_f32 {P(T+4)}, {P(D)}, {P(D)}")
        for i in range(1, npair): A(f"v_pk_fma_f32 {P(T+4)}, {P(D+2*i)}, {P(D+2*i)}, {P(T+4)}")
        A(f"v_add_f32 v{T+2}, v{T+4}, v{T+5}")
        if emask: A("s_mov_b64 exec, -1")
        reduce_sum(T + 2, T + 3, width)
        A(f"v_mul_f32 v{T+2}, 0x{f2u(1.0/448):x}, v{T+2}")
        A(f"v_cvt_pk_bf16_f32 v{T+4}, v{T}, v{T+2}")
        A(f"v_lshlrev_b32 v{T}, 16, v{T+4}")
        A(f"v_and_b32 v{T+2}, 0xffff0000, v{T+4}")
        A(f"v_add_f32 v{T+2}, 0x{f2u(1e-5):x}, v{T+2}")
        A(f"v_pk_add_f32 {P(D)}, {P(X)}, {P(T)} op_sel_hi:[1,0] neg_lo:[0,1] neg_hi:[0,1]")
        A(f"v_cvt_pk_bf16_f32 v{T+2}, v{T+2}, v{T+2}")
        A(f"v_lshlrev_b32 v{T+2}, 16, v{T+2}")
        A(f"v_sqrt_f32 v{T+2}, v{T+2}")
        for i in range(1, npair):
            A(f"v_pk_add_f32 {P(D+2*i)}, {P(X+2*i)}, {P(T)} op_sel_hi:[1,0] neg_lo:[0,1] neg_hi:[0,1]")
        A(f"v_cvt_pk_bf16_f32 v{T+2}, v{T+2}, v{T+2}")
        A(f"v_lshlrev_b32 v{T+2}, 16, v{T+2}")
        A(f"v_rcp_f32 v{T+2}, v{T+2}")
        for i in range(npair): A(f"v_cvt_pk_bf16_f32 v{D+2*i+1}, v{D+2*i}, v{D+2*i+1}")
        for i in range(npair):
            A(f"v_lshlrev_b32 v{D+2*i}, 16, v{D+2*i+1}")
            A(f"v_and_b32 v{D+2*i+1}, 0xffff0000, v{D+2*i+1}")
        for i in range(npair): A(f"v_pk_mul_f32 {P(D+2*i)}, {P(D+2*i)}, {P(T+2)} op_sel_hi:[1,0]")
        for i in range(npair): A(f"v_cvt_pk_bf16_f32 v{out+i}, v{D+2*i}, v{D+2*i+1}")
    def tagcalc(vreg, sreg):
        A(f"v_readfirstlane_b32 s{sreg}, v{vreg}")
        A(f"s_mul_i32 s{sreg}, s{sreg}, 0x9e3779b1")
        A(f"s_add_u32 s{sreg}, s{sreg}, 0x7f4a7c15")

    A.raw(".p2align 6")
    A("L_w1:")
    A("s_setprio 3")
    A("v_lshrrev_b32 v1, 5, v0")
    A("v_mul_u32_u24 v1, 896, v1")
    A("v_and_b32 v2, 31, v0")
    A("v_lshl_add_u32 v1, v2, 2, v1")
    A("v_mov_b32 v2, 0")
    A("v_lshrrev_b32 v3, 1, v0")
    A("v_lshlrev_b32 v3, 13, v3")
    A("v_and_b32 v4, 1, v0")
    A("v_lshl_add_u32 v3, v4, 4, v3")
    A("s_lshl_b32 s52, s30, 10")
    A("s_lshr_b32 s53, s2, 3")
    A("s_lshl_b32 s53, s53, 5")
    A("s_add_u32 s52, s52, s53")
    A("s_mov_b32 s46, 3670016")
    A("s_mov_b32 s47, 0x20000")
    A(f"s_mov_b32 m0, {L_WT}")
    A("s_mov_b32 s54, s52")
    A("s_waitcnt lgkmcnt(0)")
    if dbg: A("v_writelane_b32 v63, s92, 0")
    A("s_mov_b32 s44, s10")
    A("s_and_b32 s45, s11, 0xffff")
    for i in range(7): A(f"global_load_dword v{8+i}, v1, s[4:5] offset:{128*i}")
    A(f"global_load_dword v15, v2, s[28:29] offset:{WS_EP} sc1")
    for t in range(14):
        A(f"buffer_load_dwordx4 v3, s[44:47], s54 offen {qflags} lds")
        if t < 13:
            A("s_add_u32 m0, m0, 1024")
            A("s_add_u32 s54, s54, 0x40000")
    if warm:
        run_chain("cq")
    A(f"v_add_u32 v5, {L_XN}, v1")
    A("v_and_b32 v6, 1, v60")
    A("v_mul_u32_u24 v6, 896, v6")
    A("v_lshl_add_u32 v6, v61, 4, v6")
    A(f"v_add_u32 v6, {L_XN}, v6")
    A("v_lshrrev_b32 v7, 2, v60")
    A("v_lshl_add_u32 v7, v61, 3, v7")
    A("v_lshlrev_b32 v7, 5, v7")
    A("v_and_b32 v4, 3, v60")
    A("v_lshl_add_u32 v7, v4, 3, v7")
    A("s_waitcnt vmcnt(14)")
    stamp(1)
    for i in range(7):
        A(f"v_lshlrev_b32 v{16+2*i}, 16, v{8+i}")
        A(f"v_and_b32 v{17+2*i}, 0xffff0000, v{8+i}")
    tagcalc(15, 59)
    pad("cq")
    layernorm(16, 32, 7, 46, 32, 8)
    for i in range(7): A(f"ds_write_b32 v5, v{8+i} offset:{128*i}")
    pad("cq")
    A("s_waitcnt lgkmcnt(0)")
    for t in range(14): A(f"ds_read_b128 v[{64+4*t}:{67+4*t}], v6 offset:{64*t}")
    stamp(2)
    A("s_waitcnt vmcnt(0)")
    stamp(3)
    for t in range(14):
        A(f"ds_read_b64_tr_b16 v[{128+4*t}:{129+4*t}], v7 offset:{L_WT + 1024*t}")
        A(f"ds_read_b64_tr_b16 v[{130+4*t}:{131+4*t}], v7 offset:{L_WT + 1024*t + 128}")
    A("v_and_b32 v4, 1, v60")
    A("v_lshlrev_b32 v4, 14, v4")
    A("v_lshl_add_u32 v4, v61, 4, v4")
    A("s_lshl_b32 s52, s52, 1")
    A(f"s_add_u32 s52, s52, {WS_QG}")
    A("v_add_u32 v4, s52, v4")
    A("v_mov_b32 v13, s59")
    A("v_mov_b32 v15, s59")
    for t in range(14):
        A(f"s_waitcnt lgkmcnt({min(15, 2*(13-t))})")
        A(f"v_mfma_f32_16x16x32_bf16 v[8:11], v[{128+4*t}:{131+4*t}], v[{64+4*t}:{67+4*t}], {'0' if t == 0 else 'v[8:11]'}")
    A("s_mov_b32 exec_lo, 0x00030003")
    A("s_mov_b32 exec_hi, 0x00030003")
    A("v_cvt_pk_bf16_f32 v12, v8, v9")
    A("v_cvt_pk_bf16_f32 v14, v10, v11")
    A("global_store_dwordx4 v4, v[12:15], s[28:29] sc1")
    A("s_mov_b64 exec, -1")
    pad_end("cq")
    A("s_setprio 0")
    stamp(4)
    A("s_barrier")
    A("s_cmp_eq_u32 s34, 0")
    A("s_cbranch_scc1 L_fin")
    A("s_cmp_eq_u32 s34, 1")
    A("s_cselect_b32 s44, s12, s16")
    A("s_cselect_b32 s45, s13, s17")
    A("s_and_b32 s45, s45, 0xffff")
    A("s_cmp_eq_u32 s34, 1")
    A("s_mov_b32 s52, 3584")
    A("s_cselect_b32 s52, 896, s52")
    A("s_mov_b32 s46, 1605632")
    A("s_cselect_b32 s46, 3670016, s46")
    A("s_cselect_b32 s55, 64, 56")
    A("s_mul_i32 s54, s30, 458752")
    A("s_cselect_b32 s54, s54, 0")
    A("s_lshl_b32 s53, s35, 7")
    A("s_add_u32 s54, s54, s53")
    A("v_lshrrev_b32 v3, 3, v0")
    A("v_mul_lo_u32 v3, v3, s52")
    A("v_and_b32 v4, 7, v0")
    A("v_lshl_add_u32 v3, v4, 4, v3")
    A("s_lshl_b32 s52, s52, 3")
    A(f"s_mov_b32 m0, {L_WT}")
    A("L_dma:")
    A(f"s_waitcnt vmcnt({dma_depth-1})")
    A(f"buffer_load_dwordx4 v3, s[44:47], s54 offen {wflags} lds")
    A("s_add_u32 m0, m0, 1024")
    A("s_add_u32 s54, s54, s52")
    A("s_sub_u32 s55, s55, 1")
    A("s_cmp_lg_u32 s55, 0")
    A("s_cbranch_scc1 L_dma")
    A("s_waitcnt vmcnt(0)")
    stamp(5)
    A("s_branch L_tail")

    A("L_w2:")
    A("v_mov_b32 v2, 0")
    A("s_lshl_b32 s52, s31, 14")
    A("s_lshl_b32 s53, s30, 11")
    A("s_add_u32 s52, s52, s53")
    A(f"s_add_u32 s52, s52, {WS_QG}")
    A("v_lshl_add_u32 v1, v0, 4, s52")
    A("v_lshlrev_b32 v5, 3, v0")
    A(f"v_add_u32 v5, {L_QB}, v5")
    A("s_waitcnt lgkmcnt(0)")
    if dbg: A("v_writelane_b32 v63, s92, 0")
    A(f"global_load_dword v15, v2, s[28:29] offset:{WS_EP} sc1")
    run_chain("ca")
    A("s_waitcnt vmcnt(0)")
    tagcalc(15, 59)
    stamp(1)
    A(f"s_mov_b32 s55, {SPIN}")
    A("L_qpoll:")
    A("global_load_dwordx4 v[8:11], v1, s[28:29] sc1")
    A("global_load_dwordx4 v[12:15], v1, s[28:29] offset:1024 sc1")
    A("s_sub_u32 s55, s55, 1")
    A("s_cbranch_scc1 L_qgot")
    A("s_waitcnt vmcnt(0)")
    A("v_cmp_ne_u32 s[60:61], s59, v9")
    A("v_cmp_ne_u32 s[62:63], s59, v11")
    A("v_cmp_ne_u32 s[64:65], s59, v13")
    A("v_cmp_ne_u32 vcc, s59, v15")
    A("s_or_b64 s[60:61], s[60:61], s[62:63]")
    A("s_or_b64 vcc, vcc, s[64:65]")
    A("s_or_b64 vcc, vcc, s[60:61]")
    A("s_cbranch_scc1 L_qpoll")
    A("L_qgot:")
    A("s_waitcnt vmcnt(0)")
    A("ds_write2_b32 v5, v8, v10 offset0:0 offset1:1")
    A("ds_write2_b32 v5, v12, v14 offset0:128 offset1:129")
    A("s_waitcnt lgkmcnt(0)")
    if dbg:
        A("v_writelane_b32 v63, s55, 15")
    stamp(2)
    A("s_barrier")
    A("s_cmp_eq_u32 s34, 0")
    A("s_cbranch_scc1 L_fin")
    A("s_cmp_eq_u32 s34, 1")
    A("s_cbranch_scc1 L_tail")
    A("s_mov_b32 s44, s20")
    A("s_and_b32 s45, s21, 0xffff")
    A("s_mov_b32 s46, 1605632")
    A("s_mov_b32 s47, 0x20000")
    A("s_mul_i32 s54, s35, 57344")
    A("s_mov_b32 s52, 1024")
    A("s_mov_b32 s55, 56")
    A("v_lshlrev_b32 v3, 4, v0")
    A(f"s_mov_b32 m0, {L_WT2}")
    A("s_branch L_dma")

    A("L_w3:")
    for k in range(4): A(f"v_mov_b32 v{8+k}, -1")
    A("s_lshl_b32 s60, s33, 15")
    A("s_lshl_b32 s61, s32, 9")
    A("s_add_u32 s60, s60, s61")
    A(f"s_add_u32 s60, s60, {WS_REC}")
    A("v_lshrrev_b32 v1, 5, v0")
    A("v_lshlrev_b32 v1, 13, v1")
    A("v_and_b32 v2, 31, v0")
    A("v_lshl_add_u32 v1, v2, 4, v1")
    A("v_add_u32 v1, s60, v1")
    A("v_add_u32 v2, 0x4000, v1")
    A("s_lshl_b32 s60, s33, 8")
    A("s_lshl_b32 s61, s32, 3")
    A("s_add_u32 s60, s60, s61")
    A(f"s_add_u32 s60, s60, {WS_ML}")
    A("v_lshl_add_u32 v3, v0, 7, s60")
    A("s_mul_i32 s60, s33, 1792")
    A("s_lshl_b32 s61, s35, 8")
    A("s_add_u32 s60, s60, s61")
    A(f"s_add_u32 s60, s60, {WS_H}")
    A("s_mul_i32 s61, s31, 28")
    A("s_add_u32 s61, s61, s35")
    A("s_mul_i32 s61, s61, 1792")
    A(f"s_add_u32 s61, s61, {WS_P}")
    A("s_cmp_eq_u32 s34, 1")
    A("s_cselect_b32 s60, s60, s61")
    A("v_lshl_add_u32 v4, v0, 4, s60")
    A("v_mov_b32 v5, 0")
    A("v_mov_b32 v6, 1")
    A("s_waitcnt lgkmcnt(0)")
    if dbg: A("v_writelane_b32 v63, s92, 0")
    A("global_store_dwordx4 v1, v[8:11], s[28:29] sc1")
    A("global_store_dwordx4 v2, v[8:11], s[28:29] sc1")
    A("s_mov_b64 exec, 3")
    A("global_store_dwordx2 v3, v[8:9], s[28:29] sc1")
    A(f"global_load_dword v15, v5, s[28:29] offset:{WS_EP} sc1")
    A("s_mov_b64 exec, -1")
    A("s_cmp_eq_u32 s34, 0")
    A("s_cbranch_scc1 L_w3c")
    A("s_cmp_eq_u32 s34, 2")
    A("s_cbranch_scc1 L_w3f")
    A("s_mov_b64 exec, 0xffff")
    A("global_store_dwordx4 v4, v[8:11], s[28:29] sc1")
    A("s_mov_b64 exec, -1")
    A("s_branch L_w3c")
    A("L_w3f:")
    A("global_store_dwordx4 v4, v[8:11], s[28:29] sc1")
    A("s_mov_b32 exec_hi, 0xffff")
    A("global_store_dwordx4 v4, v[8:11], s[28:29] offset:1024 sc1")
    A("s_mov_b64 exec, -1")
    A("L_w3c:")
    A("v_lshlrev_b32 v7, 2, v0")
    A(f"v_add_u32 v7, {L_ZB}, v7")
    A("s_mov_b32 exec_hi, 0")
    A("ds_write_b32 v7, v5")
    A("s_mov_b64 exec, -1")
    A("s_waitcnt vmcnt(0) lgkmcnt(0)")
    tagcalc(15, 59)
    stamp(1)
    A("s_barrier")
    A("s_mov_b64 exec, 1")
    A("global_atomic_add v5, v6, s[26:27]")
    A("s_mov_b64 exec, -1")
    run_chain("cb")
    A("s_cmp_eq_u32 s34, 0")
    A("s_cbranch_scc1 L_fin")
    A(f"s_mov_b32 s55, {SPIN}")
    A("L_cpoll:")
    A("s_sleep 32")
    A("global_load_dword v8, v5, s[26:27] sc1")
    A("s_sub_u32 s55, s55, 1")
    A("s_cbranch_scc1 L_cgot")
    A("s_waitcnt vmcnt(0)")
    A("v_readfirstlane_b32 s60, v8")
    A("s_cmp_lt_u32 s60, 256")
    A("s_cbranch_scc1 L_cpoll")
    A("L_cgot:")
    A("s_cmp_lg_u32 s2, 0")
    A("s_cbranch_scc1 L_w3d")
    A("v_mov_b32 v8, s59")
    A("s_mov_b64 exec, 1")
    A(f"global_store_dword v5, v8, s[28:29] offset:{WS_EP} sc1")
    A("s_mov_b64 exec, -1")
    A("L_w3d:")
    A("s_waitcnt vmcnt(0)")
    stamp(2)

    A("L_tail:")
    pad("cb")
    A("v_lshrrev_b32 v7, 2, v60")
    A("v_lshl_add_u32 v7, v61, 3, v7")
    A("v_and_b32 v6, 3, v60")
    A("v_lshlrev_b32 v6, 3, v6")
    A("s_lshl_b32 s52, s3, 5")
    A("v_lshl_add_u32 v5, v7, 7, v6")
    A("v_add_u32 v5, s52, v5")
    A("v_lshlrev_b32 v4, 4, v61")
    A(f"v_add_u32 v4, {L_OB}, v4")
    A(f"s_mov_b32 s55, {SPIN}")
    A(f"s_mov_b32 s57, 0x{f2u(0.0625 * 1.4426950408889634):x}")
    A("s_barrier")
    stamp(6)
    A("s_cmp_eq_u32 s34, 2")
    A("s_cbranch_scc1 L_F")
    A("s_lshl_b32 s60, s33, 15")
    A("s_lshl_b32 s61, s3, 13")
    A("s_add_u32 s60, s60, s61")
    A(f"s_add_u32 s60, s60, {WS_REC + 4096}")
    A("v_lshl_add_u32 v1, v0, 4, s60")
    A("s_lshl_b32 s60, s33, 8")
    A("s_lshr_b32 s61, s3, 1")
    A("s_lshl_b32 s61, s61, 7")
    A("s_add_u32 s60, s60, s61")
    A(f"s_add_u32 s60, s60, {WS_ML}")
    A("v_lshrrev_b32 v3, 5, v0")
    A("v_xor_b32 v2, v60, v3")
    A("v_lshl_add_u32 v2, v2, 3, s60")
    for t in range(8): A(f"s_mov_b64 s[{64+2*t}:{65+2*t}], -1")
    def wloads():
        A("global_load_dwordx2 v[8:9], v2, s[28:29] sc1")
        for t in range(8):
            A(f"s_mov_b64 exec, s[{64+2*t}:{65+2*t}]")
            A(f"global_load_dwordx4 v[{16+4*t}:{19+4*t}], v1, s[28:29] offset:{1024*t - 4096} sc1")
        A("s_mov_b64 exec, -1")
    wloads()
    for t in range(16):
        A(f"ds_read_b64_tr_b16 v[{128+4*t}:{129+4*t}], v5 offset:{L_WT + 4096*t}")
        A(f"ds_read_b64_tr_b16 v[{130+4*t}:{131+4*t}], v5 offset:{L_WT + 4096*t + 512}")
    A("v_and_b32 v10, 31, v0")
    A("v_lshlrev_b32 v10, 3, v10")
    A("v_lshl_add_u32 v10, v3, 2, v10")
    A("s_lshl_b32 s60, s3, 8")
    A(f"s_add_u32 s60, s60, {L_OB}")
    A("v_add_u32 v56, s60, v10")
    A("s_mul_i32 s60, s33, 1792")
    A("s_lshl_b32 s61, s35, 8")
    A("s_add_u32 s60, s60, s61")
    A("s_lshl_b32 s61, s3, 6")
    A("s_add_u32 s60, s60, s61")
    A(f"s_add_u32 s60, s60, {WS_H}")
    A("v_lshl_add_u32 v57, v61, 4, s60")
    A("s_branch L_wchk")
    pad("cb")
    A("L_wpoll:")
    wloads()
    A("L_wchk:")
    A("s_sub_u32 s55, s55, 1")
    A("s_cbranch_scc1 L_wgot")
    A("s_waitcnt vmcnt(0)")
    A("v_max_u32 v10, v8, v9")
    A("v_cmp_eq_u32 vcc, -1, v10")
    for t in range(8):
        A(f"v_max3_u32 v{48+t}, v{16+4*t}, v{17+4*t}, v{18+4*t}")
    for t in range(8):
        A(f"v_max_u32 v{48+t}, v{48+t}, v{19+4*t}")
    for t in range(8):
        A(f"v_cmp_eq_u32 s[{64+2*t}:{65+2*t}], -1, v{48+t}")
    for t in range(8):
        A(f"s_or_b64 vcc, vcc, s[{64+2*t}:{65+2*t}]")
    A("s_cbranch_scc1 L_wpoll")
    A("L_wgot:")
    A("s_waitcnt vmcnt(0)")
    stamp(7)
    A("v_max_f32_dpp v10, v8, v8 row_ror:8 row_mask:0xf bank_mask:0xf")
    for sh in (4, 2, 1): A(f"v_max_f32_dpp v10, v10, v10 row_ror:{sh} row_mask:0xf bank_mask:0xf")
    A("v_sub_f32 v10, v8, v10")
    A("v_mul_f32 v10, s57, v10")
    A("v_exp_f32 v10, v10")
    A("v_mul_f32 v11, v10, v9")
    seq = []
    for t in range(8):
        for k in range(4):
            op = "v_mul_f32_dpp" if t == 0 else "v_fmac_f32_dpp"
            seq.append(f"{op} v{12+k}, v10, v{16+4*t+k} row_newbcast:{2*t} row_mask:0xf bank_mask:0xf")
    red = [f"v_add_f32_dpp v11, v11, v11 row_ror:{sh} row_mask:0xf bank_mask:0xf" for sh in (8, 4, 2, 1)] + ["v_rcp_f32 v11, v11"]
    for i, s in enumerate(seq):
        A(s)
        if i % 4 == 3 and red: A(red.pop(0))
    A("v_permlane32_swap_b32 v12, v14")
    A("v_permlane32_swap_b32 v13, v15")
    A("v_add_f32 v12, v12, v14")
    A("v_add_f32 v13, v13, v15")
    A("v_mul_f32 v12, v12, v11")
    A("v_mul_f32 v13, v13, v11")
    A("v_cvt_pk_bf16_f32 v12, v12, v13")
    A("ds_write_b32 v56, v12")
    A("s_waitcnt lgkmcnt(0)")
    A("s_barrier")
    for t in range(16): A(f"ds_read_b128 v[{64+4*t}:{67+4*t}], v4 offset:{64*t}")
    pad("cb")
    for t in range(16):
        A(f"s_waitcnt lgkmcnt({15-t})")
        A(f"v_mfma_f32_16x16x32_bf16 v[8:11], v[{128+4*t}:{131+4*t}], v[{64+4*t}:{67+4*t}], {'0' if t == 0 else 'v[8:11]'}")
    A("s_mov_b32 exec_lo, 0x00010001")
    A("s_mov_b32 exec_hi, 0x00010001")
    for k in range(4): A(f"v_min_u32 v{8+k}, -2, v{8+k}")
    A("global_store_dwordx4 v57, v[8:11], s[28:29] sc1")
    A("s_mov_b64 exec, -1")
    stamp(8)
    A("s_branch L_fin")

    A("L_F:")
    pad("cb")
    A("s_lshl_b32 s60, s35, 7")
    A("s_add_u32 s60, s60, s52")
    A("v_lshl_add_u32 v1, v61, 3, s60")
    A("global_load_dwordx2 v[58:59], v1, s[18:19]")
    A("s_cmp_lg_u32 s3, 0")
    A("s_cbranch_scc1 L_Ffr")
    A("s_mul_i32 s60, s31, 896")
    A("v_lshl_add_u32 v1, v0, 3, s60")
    A("s_lshl_b32 s60, s35, 5")
    A("v_lshl_add_u32 v2, v60, 1, s60")
    A("global_load_ushort v62, v2, s[22:23]")
    A("s_mov_b32 s80, -1")
    A("s_mov_b32 s81, 0x00ffffff")
    A("s_mov_b64 exec, s[80:81]")
    A("global_load_dwordx2 v[52:53], v1, s[4:5]")
    A("global_load_dwordx2 v[54:55], v1, s[4:5] offset:448")
    A("s_mov_b64 exec, -1")
    A("s_mul_i32 s60, s31, 14336")
    A(f"s_add_u32 s60, s60, {WS_H + 3584}")
    A("v_lshl_add_u32 v1, v0, 4, s60")
    A("v_add_u32 v2, 7168, v1")
    for t in range(8): A(f"s_mov_b64 s[{64+2*t}:{65+2*t}], s[80:81]")
    A("L_Ffr:")
    for t in range(14):
        A(f"ds_read_b64_tr_b16 v[{128+4*t}:{129+4*t}], v5 offset:{L_WT + 4096*t}")
        A(f"ds_read_b64_tr_b16 v[{130+4*t}:{131+4*t}], v5 offset:{L_WT + 4096*t + 512}")
    A("v_mul_u32_u24 v3, 896, v7")
    A("v_add_u32 v3, v3, v6")
    A("s_mul_i32 s60, s3, 224")
    A(f"s_add_u32 s60, s60, {L_WT2}")
    A("v_add_u32 v3, s60, v3")
    pad("cb")
    for nb in range(7):
        for t in range(2):
            r = 192 + 8 * nb + 4 * t
            A(f"ds_read_b64_tr_b16 v[{r}:{r+1}], v3 offset:{28672*t + 32*nb}")
            A(f"ds_read_b64_tr_b16 v[{r+2}:{r+3}], v3 offset:{28672*t + 32*nb + 3584}")
    A("v_lshlrev_b32 v8, 4, v61")
    A(f"v_add_u32 v8, {L_UB}, v8")
    A(f"v_mov_b32 v9, {L_ZB}")
    for nb in range(7):
        A(f"v_cmp_eq_u32 vcc, {nb}, v60")
        A(f"v_cndmask_b32 v{184+nb}, v9, v8, vcc")
    A("v_lshl_add_u32 v57, v61, 3, s52")
    A(f"v_add_u32 v57, {L_UB}, v57")
    A("s_mul_i32 s60, s31, 28")
    A("s_add_u32 s60, s60, s35")
    A("s_mul_i32 s60, s60, 1792")
    A("s_mul_i32 s61, s3, 448")
    A("s_add_u32 s60, s60, s61")
    A(f"s_add_u32 s60, s60, {WS_P}")
    A("v_lshlrev_b32 v56, 6, v60")
    A("v_lshl_add_u32 v56, v61, 4, v56")
    A("v_add_u32 v56, s60, v56")
    A("s_waitcnt vmcnt(0)")
    A("v_lshlrev_b32 v248, 16, v58")
    A("v_and_b32 v249, 0xffff0000, v58")
    A("v_lshlrev_b32 v250, 16, v59")
    A("v_and_b32 v251, 0xffff0000, v59")
    A("s_cmp_lg_u32 s3, 0")
    A("s_cbranch_scc1 L_Fb1")
    for i in range(4):
        A(f"v_lshlrev_b32 v{8+2*i}, 16, v{52+i}")
        A(f"v_and_b32 v{9+2*i}, 0xffff0000, v{52+i}")
    A("v_lshlrev_b32 v62, 16, v62")
    A("v_lshlrev_b32 v52, 3, v0")
    A(f"v_add_u32 v52, {L_OB}, v52")
    A("L_hpoll:")
    for t in range(8):
        A(f"s_mov_b64 exec, s[{64+2*t}:{65+2*t}]")
        base = "v1" if t < 4 else "v2"
        off = 1792 * (t & 3) - 3584
        A(f"global_load_dwordx4 v[{64+8*t}:{67+8*t}], {base}, s[28:29] offset:{off} sc1")
        A(f"global_load_dwordx4 v[{68+8*t}:{71+8*t}], {base}, s[28:29] offset:{off + 896} sc1")
    A("s_mov_b64 exec, s[80:81]")
    A("s_sub_u32 s55, s55, 1")
    A("s_cbranch_scc1 L_hgot")
    A("s_waitcnt vmcnt(0)")
    for t in range(8): A(f"v_max3_u32 v{16+t}, v{64+8*t}, v{65+8*t}, v{66+8*t}")
    for t in range(8): A(f"v_max3_u32 v{16+t}, v{16+t}, v{67+8*t}, v{68+8*t}")
    for t in range(8): A(f"v_max3_u32 v{16+t}, v{16+t}, v{69+8*t}, v{70+8*t}")
    for t in range(8): A(f"v_max_u32 v{16+t}, v{16+t}, v{71+8*t}")
    for t in range(8): A(f"v_cmp_eq_u32 s[{64+2*t}:{65+2*t}], -1, v{16+t}")
    A("s_or_b64 vcc, s[64:65], s[66:67]")
    for t in range(2, 8): A(f"s_or_b64 vcc, vcc, s[{64+2*t}:{65+2*t}]")
    A("s_cbranch_scc1 L_hpoll")
    A("L_hgot:")
    A("s_waitcnt vmcnt(0)")
    A("s_mov_b64 exec, -1")
    stamp(7)
    pad("cb")
    for (a, b_) in ((0, 1), (2, 3), (4, 5), (6, 7), (0, 2), (4, 6), (0, 4)):
        for i in range(4):
            A(f"v_pk_add_f32 v[{64+8*a+2*i}:{65+8*a+2*i}], v[{64+8*a+2*i}:{65+8*a+2*i}], v[{64+8*b_+2*i}:{65+8*b_+2*i}]")
    for i in range(4): A(f"v_cvt_pk_bf16_f32 v{65+2*i}, v{64+2*i}, v{65+2*i}")
    for i in range(4):
        A(f"v_lshlrev_b32 v{64+2*i}, 16, v{65+2*i}")
        A(f"v_and_b32 v{65+2*i}, 0xffff0000, v{65+2*i}")
    for i in range(4): A(f"v_pk_add_f32 v[{8+2*i}:{9+2*i}], v[{8+2*i}:{9+2*i}], v[{64+2*i}:{65+2*i}]")
    for i in range(4): A(f"v_cvt_pk_bf16_f32 v{16+i}, v{8+2*i}, v{9+2*i}")
    for i in range(4):
        A(f"v_lshlrev_b32 v{8+2*i}, 16, v{16+i}")
        A(f"v_and_b32 v{9+2*i}, 0xffff0000, v{16+i}")
    layernorm(8, 24, 4, 32, 64, 20, emask="s[80:81]")
    A("s_mov_b64 exec, s[80:81]")
    A("ds_write_b64 v52, v[20:21]")
    A("ds_write_b64 v52, v[22:23] offset:448")
    A(f"ds_write_b64 v52, v[16:17] offset:{L_HB - L_OB}")
    A(f"ds_write_b64 v52, v[18:19] offset:{L_HB - L_OB + 448}")
    A("s_mov_b64 exec, -1")
    A("L_Fb1:")
    pad("cb")
    A("s_waitcnt lgkmcnt(0)")
    A("s_barrier")
    for t in range(14): A(f"ds_read_b128 v[{64+4*t}:{67+4*t}], v4 offset:{64*t}")
    for t in range(14):
        A(f"s_waitcnt lgkmcnt({13-t})")
        A(f"v_mfma_f32_16x16x32_bf16 v[8:11], v[{128+4*t}:{131+4*t}], v[{64+4*t}:{67+4*t}], {'0' if t == 0 else 'v[8:11]'}")
    A("v_cvt_pk_bf16_f32 v12, v8, v9")
    A("v_cvt_pk_bf16_f32 v13, v10, v11")
    A("v_lshlrev_b32 v8, 16, v12")
    A("v_and_b32 v9, 0xffff0000, v12")
    A("v_lshlrev_b32 v10, 16, v13")
    A("v_and_b32 v11, 0xffff0000, v13")
    A("v_pk_add_f32 v[8:9], v[8:9], v[248:249]")
    A("v_pk_add_f32 v[10:11], v[10:11], v[250:251]")
    A("v_cvt_pk_bf16_f32 v12, v8, v9")
    A("v_cvt_pk_bf16_f32 v13, v10, v11")
    A("v_lshlrev_b32 v8, 16, v12")
    A("v_and_b32 v9, 0xffff0000, v12")
    A("v_lshlrev_b32 v10, 16, v13")
    A("v_and_b32 v11, 0xffff0000, v13")
    for k in range(4): A(f"v_max_f32 v{8+k}, 0, v{8+k}")
    A("v_pk_mul_f32 v[8:9], v[8:9], v[8:9]")
    A("v_pk_mul_f32 v[10:11], v[10:11], v[10:11]")
    A("s_mov_b32 exec_lo, 0x00010001")
    A("s_mov_b32 exec_hi, 0x00010001")
    A("v_cvt_pk_bf16_f32 v12, v8, v9")
    A("v_cvt_pk_bf16_f32 v13, v10, v11")
    A("ds_write_b64 v57, v[12:13]")
    A("s_mov_b64 exec, -1")
    A("s_waitcnt lgkmcnt(0)")
    A("s_barrier")
    for nb in range(7):
        for t in range(2):
            i = 2 * nb + t
            A(f"ds_read_b128 v[{64+4*i}:{67+4*i}], v{184+nb} offset:{64*t}")
    pad("cb")
    for i in range(14):
        A(f"s_waitcnt lgkmcnt({13-i})")
        A(f"v_mfma_f32_16x16x32_bf16 v[8:11], v[{192+4*i}:{195+4*i}], v[{64+4*i}:{67+4*i}], {'0' if i == 0 else 'v[8:11]'}")
    A("s_mov_b32 exec_lo, 0x007f007f")
    A("s_mov_b32 exec_hi, 0x007f007f")
    for k in range(4): A(f"v_min_u32 v{8+k}, -2, v{8+k}")
    A("global_store_dwordx4 v56, v[8:11], s[28:29] sc1")
    A("s_mov_b64 exec, -1")
    stamp(8)
    A("s_cmp_lg_u32 s3, 0")
    A("s_cbranch_scc1 L_fin")
    A("s_mul_i32 s60, s31, 50176")
    A("s_lshl_b32 s61, s35, 6")
    A("s_add_u32 s60, s60, s61")
    A(f"s_add_u32 s60, s60, {WS_P}")
    A("v_mul_u32_u24 v1, 12544, v61")
    A("v_lshl_add_u32 v1, v60, 2, v1")
    A("v_add_u32 v1, s60, v1")
    A("v_add_u32 v1, 3584, v1")
    A("v_add_u32 v2, 7168, v1")
    A("s_lshl_b32 s60, s35, 5")
    A("v_lshl_add_u32 v3, v60, 1, s60")
    A(f"v_add_u32 v12, {L_HB}, v3")
    A("ds_read_u16 v12, v12")
    A("s_mul_i32 s60, s31, 896")
    A("v_add_u32 v3, s60, v3")
    A(f"s_mov_b32 s55, {SPIN}")
    A("L_ppoll:")
    for k in range(7):
        base = "v1" if k < 4 else "v2"
        A(f"global_load_dword v{16+k}, {base}, s[28:29] offset:{1792*(k&3) - 3584} sc1")
    A("s_sub_u32 s55, s55, 1")
    A("s_cbranch_scc1 L_pgot")
    A("s_waitcnt vmcnt(0)")
    A("v_max3_u32 v24, v16, v17, v18")
    A("v_max3_u32 v25, v19, v20, v21")
    A("v_max3_u32 v24, v24, v25, v22")
    A("v_cmp_eq_u32 vcc, -1, v24")
    A("s_cbranch_vccnz L_ppoll")
    A("L_pgot:")
    A("s_waitcnt vmcnt(0) lgkmcnt(0)")
    stamp(9)
    A("v_add_f32 v16, v16, v17")
    A("v_add_f32 v18, v18, v19")
    A("v_add_f32 v20, v20, v21")
    A("v_add_f32 v16, v16, v18")
    A("v_add_f32 v20, v20, v22")
    A("v_add_f32 v16, v16, v20")
    A("v_lshlrev_b32 v12, 16, v12")
    A("v_mov_b32 v17, v16")
    A("v_permlane16_swap_b32 v17, v16")
    A("v_add_f32 v16, v16, v17")
    A("v_mov_b32 v17, v16")
    A("v_permlane32_swap_b32 v17, v16")
    A("v_add_f32 v16, v16, v17")
    A("v_cvt_pk_bf16_f32 v16, v16, v16")
    A("v_lshlrev_b32 v16, 16, v16")
    A("v_add_f32 v16, v16, v62")
    A("v_cvt_pk_bf16_f32 v16, v16, v16")
    A("v_lshlrev_b32 v16, 16, v16")
    A("v_add_f32 v16, v16, v12")
    A("v_cvt_pk_bf16_f32 v16, v16, v16")
    A("s_mov_b64 exec, 0xffff")
    A("global_store_short v3, v16, s[24:25] sc1")
    A("s_mov_b64 exec, -1")
    pad_end("cb")
    A("L_fin:")
    if dbg:
        A("s_waitcnt vmcnt(0)")
        stamp(10)
        A("s_lshl_b32 s60, s2, 2")
        A("s_add_u32 s60, s60, s3")
        A("s_lshl_b32 s60, s60, 6")
        A(f"s_add_u32 s60, s60, {WS_TS}")
        A("v_lshl_add_u32 v1, v0, 2, s60")
        A("s_mov_b64 exec, 0xffff")
        A("global_store_dword v1, v63, s[28:29]")
    A("L_end:")
    A("s_endpgm")
    A.raw('.section .rodata,"a"')
    A.raw(".p2align 6")
    A.raw(f".amdhsa_kernel {NAME}_kernel")
    A.raw("  .amdhsa_next_free_vgpr 512")
    A.raw("  .amdhsa_next_free_sgpr 96")
    A.raw("  .amdhsa_accum_offset 256")
    A.raw("  .amdhsa_group_segment_fixed_size 0")
    A.raw("  .amdhsa_kernarg_size 104")
    A.raw("  .amdhsa_user_sgpr_count 2")
    A.raw("  .amdhsa_user_sgpr_kernarg_segment_ptr 1")
    A.raw("  .amdhsa_system_sgpr_workgroup_id_x 1")
    A.raw("  .amdhsa_float_denorm_mode_32 3")
    A.raw(".end_amdhsa_kernel")
    bad = A.check_edges(returns=[("L_rare_ret", f"L_back_{nm}") for nm in sites])
    for b in bad: print("EDGE HAZARD", b, file=sys.stderr)
    return A.text()

if __name__ == "__main__":
    import json
    kw = json.loads(sys.argv[2]) if len(sys.argv) > 2 else {}
    open(sys.argv[1], "w").write(gen(**kw))
```

```python
import sys, struct
from asmlib import Asm
NAME = "sequential_preLN__gqa_block_cached__dense_activation_squared_relu__decode"

def f2u(x): return struct.unpack("<I", struct.pack("<f", x))[0]

WS_EP = 0x0
WS_QG = 0x1000
WS_REC = 0x10000
WS_ML = 0x90000
WS_H = 0xA0000
WS_P = 0xB0000
WS_TS = 0x100000
L_WT = 0
L_WT2 = 57344
L_SM = 158464
L_XN = L_SM
L_QB = L_SM + 2048
L_OB = L_SM + 3072
L_HB = L_SM + 4096
L_UB = L_SM + 5120
L_ZB = L_SM + 5248
L_END = L_SM + 5376

SPIN = 1 << 19
CEXP = f2u(0.0625 * 1.4426950408889634)

def gen(dbg=False, kflags="nt", vflags="nt", wflags="nt", PD=24, DD=28, vperm=True, warm=True,
        counts=None, rot=True, round_scores=True, NLs=(4, 0, 0, 0), prog=False, D=48, skip="",
        pollpos=64, stf="sc1", ldf="sc1"):
    A = Asm()
    nextra = 3
    def stamp(k):
        if dbg:
            A("s_memrealtime s[92:93]")
            A("s_waitcnt lgkmcnt(0)")
            A(f"v_writelane_b32 v63, s92, {k}")
    pads = []
    def pad(chain):
        if not warm: return
        n = sum(1 for p in pads if p == chain)
        pads.append(chain)
        A(f"L_{chain}{n}:")
        A(f"s_cbranch_execz L_{chain}{n+1}")
    def pad_end(chain):
        if not warm: return
        n = sum(1 for p in pads if p == chain)
        A(f"L_{chain}{n}:")
        A(f"s_cbranch_execz L_{chain}_ret")
    def run_chain(chain):
        if not warm: return
        A("s_mov_b64 exec, 0")
        A(f"s_branch L_{chain}0")
        A(f"L_{chain}_ret:")
        A("s_mov_b64 exec, -1")
    def tr_addr(v, row, c8, t):
        A(f"v_lshrrev_b32 {row}, 2, v60")
        A(f"v_lshl_add_u32 {row}, v61, 3, {row}")
        A(f"v_and_b32 {c8}, 3, v60")
        A(f"v_lshlrev_b32 {c8}, 3, {c8}")
        A(f"v_bfe_u32 {t}, v0, 3, 2")
        A(f"v_xor_b32 {t}, s3, {t}")
        A(f"v_lshl_add_u32 {v}, {row}, 7, {c8}")
        A(f"v_lshl_add_u32 {v}, {t}, 5, {v}")
    def tags():
        A("s_mul_i32 s50, s50, 0x9e3779b1")
        A("s_mul_i32 s51, s51, 0x9e3779b1")
        A("s_add_u32 s50, s50, 0x7f4a7c15")
        A("s_add_u32 s51, s51, 0x7f4a7c15")
        A("s_cmp_eq_u32 s31, 0")
        A("s_cselect_b32 s59, s50, s51")
    def sel4(dst, vals):
        A(f"s_mov_b32 {dst}, {vals[0]}")
        for r in (1, 2, 3):
            if vals[r] != vals[0]:
                A(f"s_cmp_eq_u32 s34, {r}")
                A(f"s_cselect_b32 {dst}, {vals[r]}, {dst}")

    A.raw(f"; @launch grid=(256,1,1) block=(256,1,1) lds={L_END}")
    A.raw('.amdgcn_target "amdgcn-amd-amdhsa--gfx950"')
    A.raw(".text")
    A.raw(f".globl {NAME}_kernel")
    A.raw(".p2align 8")
    A.raw(f".type {NAME}_kernel,@function")
    A.raw(f"{NAME}_kernel:")
    A("s_cmp_ge_u32 s2, 256")
    A("s_cbranch_scc1 L_end")
    A("s_load_dwordx16 s[4:19], s[0:1], 0")
    A("s_load_dwordx8 s[20:27], s[0:1], 64")
    A("s_load_dwordx2 s[28:29], s[0:1], 96")
    if dbg:
        A("v_mov_b32 v63, 0")
        A("s_memrealtime s[92:93]")
    A("v_lshrrev_b32 v1, 6, v0")
    A("v_and_b32 v0, 63, v0")
    A("v_readfirstlane_b32 s3, v1")
    A("s_and_b32 s30, s2, 7")
    A("s_bfe_u32 s31, s2, 0x10003")
    A("s_lshr_b32 s32, s2, 4")
    A("s_and_b32 s33, s2, 15")
    A("s_sub_u32 s35, s32, 7")
    A("s_lshl_b32 s35, s35, 3")
    A("s_add_u32 s35, s35, s30")
    A("s_cmp_lt_u32 s35, 28")
    A("s_cselect_b32 s34, 2, 0")
    A("s_cmp_lt_u32 s32, 7")
    A("s_cselect_b32 s34, 1, s34")
    A("s_cselect_b32 s35, s32, s35")
    A("s_lshr_b32 s48, s2, 3")
    A("s_sub_u32 s49, s48, 24")
    A("s_cmp_ge_u32 s32, 12")
    A("s_cselect_b32 s34, 3, s34")
    A("s_cselect_b32 s35, s49, s35")
    A("v_and_b32 v60, 15, v0")
    A("v_lshrrev_b32 v61, 4, v0")
    A("s_cmp_lg_u32 s3, 0")
    A("s_cbranch_scc1 L_help")

    A("s_getpc_b64 s[72:73]")
    A("L_pc0:")
    A("s_add_u32 s72, s72, L_tab-L_pc0")
    A("s_addc_u32 s73, s73, 0")
    A("s_lshl_b32 s60, s32, 2")
    A("s_lshl_b32 s61, s30, 4")
    A("s_and_b32 s61, s61, 64")
    A("s_add_u32 s60, s60, s61")
    A("s_load_dword s71, s[72:73], s60")
    sel4("s64", (896, 896, 3584, 8192))
    sel4("s65", (0, 458752, 0, 1024))
    A("s_mul_i32 s65, s65, s30")
    A("s_lshl_b32 s66, s35, 7")
    A("s_add_u32 s65, s65, s66")
    sel4("s66", (56, 64, 56, 56))
    sel4("s46", (3670016, 3670016, 1605632, 3670016))
    A("s_mov_b32 s47, 0x20000")
    A("v_lshrrev_b32 v8, 3, v0")
    A("v_mul_lo_u32 v8, v8, s64")
    A("v_and_b32 v9, 7, v0")
    A("v_lshl_add_u32 v8, v9, 4, v8")
    A("v_and_b32 v9, 16, v0")
    A("v_lshlrev_b32 v9, 1, v9")
    A("v_xor_b32 v8, v8, v9")
    A("s_lshl_b32 s64, s64, 3")
    A("s_mov_b32 s67, 64")
    A(f"s_mov_b32 m0, {L_WT}")
    if vperm:
        A("v_and_b32 v1, 3, v60")
        A("v_lshrrev_b32 v2, 2, v60")
        A("v_lshl_add_u32 v1, v1, 2, v2")
        A("v_lshlrev_b32 v1, 9, v1")
        A("v_lshl_add_u32 v1, v61, 4, v1")
        A("v_lshlrev_b32 v2, 4, v60")
        A("v_lshl_add_u32 v2, v61, 9, v2")
        A("v_add_u32 v3, 4096, v2")
        vld = [("v2" if r < 2 else "v3", (r & 1) * 2048 + dh * 256) for r in range(4) for dh in range(2)]
    else:
        A("v_lshlrev_b32 v1, 9, v60")
        A("v_lshl_add_u32 v1, v61, 4, v1")
        A("v_lshlrev_b32 v2, 4, v60")
        A("v_lshl_add_u32 v2, v61, 11, v2")
        vld = [("v2", r * 512 + dh * 256) for r in range(4) for dh in range(2)]
    A("s_lshl_b32 s56, s33, 24")
    A("s_mov_b32 s38, 0x1000000")
    A("s_mov_b32 s39, 0x20000")
    A("s_mov_b32 s42, 0x1000000")
    A("s_mov_b32 s43, 0x20000")
    A("s_waitcnt lgkmcnt(0)")
    if dbg: A("v_writelane_b32 v63, s92, 0")
    A("s_load_dwordx2 s[50:51], s[28:29], 0")
    A("s_cmp_eq_u32 s34, 2")
    A("s_cselect_b64 s[44:45], s[16:17], s[12:13]")
    A("s_cmp_eq_u32 s34, 3")
    A("s_cselect_b64 s[44:45], s[10:11], s[44:45]")
    A("s_and_b32 s45, s45, 0xffff")
    A("s_cmp_eq_u32 s34, 0")
    A("s_cbranch_scc1 L_nodma")
    if "d" in skip:
        A("s_cmp_lg_u32 s34, 3")
        A("s_cbranch_scc1 L_nodma")
    A("L_dma:")
    A(f"s_waitcnt vmcnt({DD-1})")
    A(f"buffer_load_dwordx4 v8, s[44:47], s65 offen {wflags} lds")
    A("v_xor_b32 v8, s67, v8")
    A("s_add_u32 m0, m0, 1024")
    A("s_add_u32 s65, s65, s64")
    A("s_sub_u32 s66, s66, 1")
    A("s_cmp_lg_u32 s66, 0")
    A("s_cbranch_scc1 L_dma")
    A("s_cmp_lg_u32 s34, 2")
    A("s_cbranch_scc1 L_nodma")
    A("s_cmp_eq_u32 s67, 0")
    A("s_cbranch_scc1 L_nodma")
    A("s_mov_b32 s44, s20")
    A("s_and_b32 s45, s21, 0xffff")
    A("s_mul_i32 s65, s35, 57344")
    A("s_movk_i32 s64, 1024")
    A("s_mov_b32 s67, 0")
    A("s_mov_b32 s66, 56")
    A("v_lshlrev_b32 v8, 4, v0")
    A("s_branch L_dma")
    A("L_nodma:")
    A("s_add_u32 s36, s6, s56")
    A("s_addc_u32 s37, s7, 0")
    A("s_and_b32 s37, s37, 0xffff")
    A("s_add_u32 s40, s8, s56")
    A("s_addc_u32 s41, s9, 0")
    A("s_and_b32 s41, s41, 0xffff")
    A("s_lshr_b32 s55, s71, 16")
    A("s_and_b32 s52, s71, 0xffff")
    A("s_add_u32 s53, s52, s55")
    A("s_lshl_b32 s52, s52, 13")
    A("s_lshl_b32 s53, s53, 13")
    if rot:
        A("s_lshl_b32 s54, s48, 13")
        A("s_add_u32 s54, s54, s52")
    else:
        A("s_mov_b32 s54, s52")
    ring = [("a", 0), ("a", 64), ("a", 128)]
    extra = [("a", 192), ("v", 128), ("v", 192)]
    def R4(slot, k):
        c, b = slot
        return f"{c}[{b+4*k}:{b+4*k+3}]"
    def ldK(slot, j): A(f"buffer_load_dwordx4 {R4(slot, j)}, v1, s[36:39], s54 offen offset:{64*j} {kflags}")
    def ldV(slot, i): A(f"buffer_load_dwordx4 {R4(slot, 8+i)}, {vld[i][0]}, s[40:43], s54 offen offset:{vld[i][1]} {vflags}")
    def adv():
        A("s_add_u32 s54, s54, 0x2000")
        A("s_cmp_eq_u32 s54, s53")
        A("s_cselect_b32 s54, s52, s54")
    def qpoll():
        A(f"global_load_dwordx4 v[48:51], v45, s[28:29] {ldf}")
        A(f"global_load_dwordx4 v[52:55], v45, s[28:29] offset:1024 {ldf}")
    def qcheck():
        A("v_cmp_ne_u32 s[60:61], s59, v49")
        A("v_cmp_ne_u32 s[62:63], s59, v51")
        A("v_cmp_ne_u32 s[64:65], s59, v53")
        A("v_cmp_ne_u32 vcc, s59, v55")
        A("s_or_b64 s[60:61], s[60:61], s[62:63]")
        A("s_or_b64 vcc, vcc, s[64:65]")
        A("s_or_b64 vcc, vcc, s[60:61]")
    nissued = 0
    anyNL = any(NLs)
    for slot in ring + extra:
        for k in range(16):
            if nissued == pollpos: qpoll()
            if nissued % 4 == 0 and nissued <= pollpos + PD - 4: A(f"s_waitcnt vmcnt({PD-4})")
            if nissued == PD - 4:
                A("s_waitcnt lgkmcnt(0)")
                tags()
                A("s_cmp_lg_u32 s34, 3")
                A("s_cbranch_scc1 L_qc_ret0")
                A("s_call_b64 s[62:63], L_qc")
                A("L_qc_ret0:")
                A("v_and_b32 v21, 1, v60")
                A("v_mov_b32 v22, 0xffff")
                A("v_lshlrev_b32 v21, 4, v21")
                A("v_lshlrev_b32 v22, v21, v22")
                A("v_bfe_u32 v21, v60, 1, 2")
                for kk in range(4):
                    A(f"v_cmp_eq_u32 vcc, {kk}, v21")
                    A(f"v_cndmask_b32 v{4+kk}, 0, v22, vcc")
                A("v_mov_b32 v19, 0xff7fffff")
                A("v_mov_b32 v20, 0")
                for kk in range(32, 40): A(f"v_mov_b32 v{kk}, 0")
                A(f"s_mov_b32 s57, 0x{CEXP:x}")
                A("s_mov_b32 s58, 0")
                A("v_lshrrev_b32 v21, 3, v60")
                A("v_lshlrev_b32 v21, 9, v21")
                A("v_lshl_add_u32 v21, v61, 4, v21")
                A(f"v_add_u32 v21, {L_QB}, v21")
                A("s_lshl_b32 s60, s31, 14")
                A("s_lshl_b32 s61, s30, 11")
                A("s_add_u32 s60, s60, s61")
                A(f"s_add_u32 s60, s60, {WS_QG}")
                A("v_lshl_add_u32 v45, v0, 4, s60")
                A("v_lshlrev_b32 v46, 3, v0")
                A(f"v_add_u32 v46, {L_QB}, v46")
                sel4("s68", NLs)
                sel4("s69", (65536, 65536, 114688, 65536))
                A("v_lshl_add_u32 v44, v0, 4, s69")
                A("s_add_u32 s70, s68, 3")
                A("s_sub_u32 s55, s55, s70")
            if k < 8: ldK(slot, k)
            else: ldV(slot, k - 8)
            nissued += 1
        adv()
        if prog and nissued in (32, 64, 96): stamp({32: 12, 64: 13, 96: 14}[nissued])
        if nissued == 48 and anyNL:
            A("s_cmp_eq_u32 s68, 0")
            A("s_cbranch_scc1 L_pfl_end")
            A("L_pfl:")
            for k in range(16):
                off = 64 * k if k < 8 else vld[k - 8][1]
                A(f"s_add_u32 m0, s69, {1024 * k - off}")
                if k % 4 == 0: A(f"s_waitcnt vmcnt({PD-4})")
                if k < 8: A(f"buffer_load_dwordx4 v1, s[36:39], s54 offen offset:{off} {kflags} lds")
                else: A(f"buffer_load_dwordx4 {vld[k-8][0]}, s[40:43], s54 offen offset:{off} {vflags} lds")
            adv()
            A("s_add_u32 s69, s69, 0x4000")
            A("s_sub_u32 s68, s68, 1")
            A("s_cmp_lg_u32 s68, 0")
            A("s_cbranch_scc1 L_pfl")
            A("L_pfl_end:")
    stamp(1)
    A(f"s_waitcnt vmcnt({96 - pollpos})")
    A(f"s_mov_b32 s66, {SPIN}")
    A("s_branch L_qchk")
    A("L_qpoll:")
    qpoll()
    A("s_sub_u32 s66, s66, 1")
    A("s_cbranch_scc1 L_qgot")
    A("s_waitcnt vmcnt(0)")
    A("L_qchk:")
    qcheck()
    A("s_cbranch_scc1 L_qpoll")
    A("L_qgot:")
    A("ds_write2_b32 v46, v48, v50 offset0:0 offset1:1")
    A("ds_write2_b32 v46, v52, v54 offset0:128 offset1:129")
    A("s_waitcnt lgkmcnt(0)")
    for j in range(8):
        A(f"ds_read_b128 v[{64+4*j}:{67+4*j}], v21 offset:{64*j}")
    A("s_waitcnt lgkmcnt(0)")
    if dbg: A("v_writelane_b32 v63, s66, 5")
    stamp(2)

    sites = []
    def tile(slot, loads, name):
        if loads:
            A("s_cmp_gt_u32 s55, 3")
            A("s_cselect_b32 s38, 0x1000000, 0")
            A("s_mov_b32 s42, s38")
        for j in range(8):
            if loads: A(f"s_waitcnt vmcnt({D-1})")
            A(f"v_mfma_f32_16x16x32_bf16 v[8:11], {R4(slot, j)}, v[{64+4*j}:{67+4*j}], {'0' if j == 0 else 'v[8:11]'}")
            if loads: ldK(slot, j)
        if round_scores:
            A("v_cvt_pk_bf16_f32 v12, v8, v9")
            A("v_cvt_pk_bf16_f32 v13, v10, v11")
            A("v_lshlrev_b32 v14, 16, v12")
            A("v_and_b32 v15, 0xffff0000, v12")
            A("v_lshlrev_b32 v16, 16, v13")
            A("v_and_b32 v17, 0xffff0000, v13")
        else:
            for r in range(4): A(f"v_mov_b32 v{14+r}, v{8+r}")
        A("v_max3_f32 v18, v14, v15, v16")
        A("v_max_f32 v18, v18, v17")
        A("v_cmp_gt_f32 vcc, v18, v19")
        A(f"s_cbranch_vccnz L_stub_{name}")
        A(f"L_back_{name}:")
        sites.append(name)
        for r in range(4): A(f"v_sub_f32 v{14+r}, v{14+r}, v19")
        for r in range(4): A(f"v_mul_f32 v{14+r}, s57, v{14+r}")
        for r in range(4): A(f"v_exp_f32 v{14+r}, v{14+r}")
        for r in range(4): A(f"v_cvt_pk_bf16_f32 v{40+r}, v{14+r}, v{14+r}")
        def mkA(r):
            for k in range(4): A(f"v_and_b32 v{24+4*(r&1)+k}, v{40+r}, v{4+k}")
        mkA(0)
        A("v_add_f32 v14, v14, v15")
        A("v_add_f32 v16, v16, v17")
        for r in range(4):
            a = 24 + 4 * (r & 1)
            if loads: A(f"s_waitcnt vmcnt({D-1})")
            A(f"v_mfma_f32_16x16x32_bf16 v[32:35], v[{a}:{a+3}], {R4(slot, 8+2*r)}, v[32:35]")
            if loads: ldV(slot, 2 * r)
            if loads: A(f"s_waitcnt vmcnt({D-1})")
            A(f"v_mfma_f32_16x16x32_bf16 v[36:39], v[{a}:{a+3}], {R4(slot, 9+2*r)}, v[36:39]")
            if loads: ldV(slot, 2 * r + 1)
            if r < 3: mkA(r + 1)
            if r == 0: A("v_add_f32 v14, v14, v16")
            if r == 1: A("v_add_f32 v20, v20, v14")
        if loads:
            adv()
            A("s_sub_u32 s55, s55, 1")
            A("s_cmp_eq_u32 s55, 0")
            A("s_cbranch_scc1 L_sdone")
    A("L_loop:")
    for i, slot in enumerate(ring):
        pad("ca")
        tile(slot, True, f"r{i}")
    A("s_add_u32 s58, s58, 1")
    if prog:
        for (itn, k) in ((10, 11), (20, 4), (30, 15)):
            A(f"s_cmp_lg_u32 s58, {itn}")
            A(f"s_cbranch_scc1 L_pg{itn}")
            stamp(k)
            A(f"L_pg{itn}:")
    A("s_cmp_gt_u32 s58, s70")
    A("s_cbranch_scc1 L_loop")
    for i in range(1, nextra):
        A(f"s_cmp_eq_u32 s58, {i}")
        A(f"s_cbranch_scc1 L_x{i}")
    A("s_branch L_x0")
    pad("ca")
    A("L_rare:")
    A("v_mov_b32 v21, v18")
    A("v_permlane32_swap_b32 v21, v18")
    A("v_max_f32 v18, v18, v21")
    A("v_mov_b32 v21, v18")
    A("v_permlane16_swap_b32 v21, v18")
    A("v_max3_f32 v18, v18, v21, v19")
    A("v_sub_f32 v21, v19, v18")
    A("v_mul_f32 v21, s57, v21")
    A("v_exp_f32 v21, v21")
    A("v_mov_b32 v19, v18")
    A("v_mul_f32 v20, v20, v21")
    A("v_readlane_b32 s60, v21, 0")
    A("v_readlane_b32 s61, v21, 8")
    A("v_mov_b32 v21, s60")
    A("s_mov_b32 exec_lo, 0")
    A("v_mov_b32 v21, s61")
    A("s_mov_b64 exec, -1")
    for k in range(32, 40): A(f"v_mul_f32 v{k}, v{k}, v21")
    A("L_rare_ret:")
    A("s_setpc_b64 s[62:63]")
    for nm in ("r0", "r1", "r2", "x0", "x1", "x2"):
        A(f"L_stub_{nm}:")
        A("s_call_b64 s[62:63], L_rare")
        A(f"s_branch L_back_{nm}")
    pad_end("ca")
    for i in (1, 2, 0):
        pad("cx")
        A(f"L_x{i}:")
        if i == 0: A("s_waitcnt lgkmcnt(0)")
        tile(extra[i], False, f"x{i}")
        if i == 0 and anyNL:
            A("s_cmp_eq_u32 s58, s70")
            A("s_cbranch_scc1 L_loop")
            for k in range(16): A(f"ds_read_b128 {R4(extra[0], k)}, v44 offset:{1024*k}")
            A("v_add_u32 v44, 0x4000, v44")
        A("s_branch L_loop")
    pad("cx")
    A("L_sdone:")
    stamp(3)
    A("v_mov_b32 v21, v20")
    A("v_lshrrev_b32 v22, 1, v61")
    A("v_permlane32_swap_b32 v21, v20")
    A("v_lshlrev_b32 v22, 14, v22")
    A("v_add_f32 v20, v20, v21")
    A("v_lshl_add_u32 v22, v60, 5, v22")
    A("v_mov_b32 v21, v20")
    A("v_and_b32 v23, 1, v61")
    A("v_lshl_add_u32 v22, v23, 4, v22")
    A("v_permlane16_swap_b32 v21, v20")
    A("s_lshl_b32 s60, s33, 15")
    A("s_lshl_b32 s61, s32, 9")
    A("s_add_u32 s60, s60, s61")
    A(f"s_add_u32 s60, s60, {WS_REC}")
    A("v_add_u32 v22, s60, v22")
    A("v_add_u32 v23, 0x2000, v22")
    A("v_mov_b32 v26, s59")
    A("s_movk_i32 s61, 0xff")
    A("v_bfi_b32 v32, s61, v26, v32")
    A("v_bfi_b32 v36, s61, v26, v36")
    A(f"global_store_dwordx4 v22, v[32:35], s[28:29] {stf}")
    A(f"global_store_dwordx4 v23, v[36:39], s[28:29] {stf}")
    A("v_add_f32 v25, v20, v21")
    A("v_mov_b32 v24, v19")
    A("s_lshl_b32 s60, s33, 9")
    A("s_lshl_b32 s61, s32, 4")
    A("s_add_u32 s60, s60, s61")
    A(f"s_add_u32 s60, s60, {WS_ML}")
    A("v_lshl_add_u32 v22, v0, 5, s60")
    A("s_mov_b64 exec, 0x101")
    A(f"global_store_dwordx4 v22, v[24:27], s[28:29] {stf}")
    A("s_mov_b64 exec, -1")
    A("s_sub_u32 s60, s34, 1")
    A("s_cmp_lt_u32 s60, 2")
    A("s_cbranch_scc1 L_tail")
    A("s_branch L_fin")
    pad_end("cx")

    def reduce_sum(v, t, width):
        for sh in (8, 4, 2, 1):
            A(f"v_add_f32_dpp v{v}, v{v}, v{v} row_ror:{sh} row_mask:0xf bank_mask:0xf")
        A(f"v_mov_b32 v{t}, v{v}")
        A(f"v_permlane16_swap_b32 v{t}, v{v}")
        A(f"v_add_f32 v{v}, v{v}, v{t}")
        if width == 64:
            A(f"v_mov_b32 v{t}, v{v}")
            A(f"v_permlane32_swap_b32 v{t}, v{v}")
            A(f"v_add_f32 v{v}, v{v}, v{t}")
    def layernorm(X, D_, npair, T, width, out, emask=None):
        P = lambda r: f"v[{r}:{r+1}]"
        if emask:
            A(f"v_mov_b32 v{T}, 0"); A(f"v_mov_b32 v{T+2}, 0")
            A(f"s_mov_b64 exec, {emask}")
        A(f"v_pk_add_f32 {P(T+4)}, {P(X)}, {P(X+2)}")
        for i in range(2, npair): A(f"v_pk_add_f32 {P(T+4)}, {P(T+4)}, {P(X+2*i)}")
        A(f"v_add_f32 v{T}, v{T+4}, v{T+5}")
        if emask: A("s_mov_b64 exec, -1")
        reduce_sum(T, T + 1, width)
        A(f"v_mul_f32 v{T}, 0x{f2u(1.0/448):x}, v{T}")
        if emask: A(f"s_mov_b64 exec, {emask}")
        for i in range(npair):
            A(f"v_pk_add_f32 {P(D_+2*i)}, {P(X+2*i)}, {P(T)} op_sel_hi:[1,0] neg_lo:[0,1] neg_hi:[0,1]")
        A(f"v_pk_mul_f32 {P(T+4)}, {P(D_)}, {P(D_)}")
        for i in range(1, npair): A(f"v_pk_fma_f32 {P(T+4)}, {P(D_+2*i)}, {P(D_+2*i)}, {P(T+4)}")
        A(f"v_add_f32 v{T+2}, v{T+4}, v{T+5}")
        if emask: A("s_mov_b64 exec, -1")
        reduce_sum(T + 2, T + 3, width)
        A(f"v_mul_f32 v{T+2}, 0x{f2u(1.0/448):x}, v{T+2}")
        A(f"v_cvt_pk_bf16_f32 v{T+4}, v{T}, v{T+2}")
        A(f"v_lshlrev_b32 v{T}, 16, v{T+4}")
        A(f"v_and_b32 v{T+2}, 0xffff0000, v{T+4}")
        A(f"v_add_f32 v{T+2}, 0x{f2u(1e-5):x}, v{T+2}")
        A(f"v_pk_add_f32 {P(D_)}, {P(X)}, {P(T)} op_sel_hi:[1,0] neg_lo:[0,1] neg_hi:[0,1]")
        A(f"v_cvt_pk_bf16_f32 v{T+2}, v{T+2}, v{T+2}")
        A(f"v_lshlrev_b32 v{T+2}, 16, v{T+2}")
        A(f"v_sqrt_f32 v{T+2}, v{T+2}")
        for i in range(1, npair):
            A(f"v_pk_add_f32 {P(D_+2*i)}, {P(X+2*i)}, {P(T)} op_sel_hi:[1,0] neg_lo:[0,1] neg_hi:[0,1]")
        A(f"v_cvt_pk_bf16_f32 v{T+2}, v{T+2}, v{T+2}")
        A(f"v_lshlrev_b32 v{T+2}, 16, v{T+2}")
        A(f"v_rcp_f32 v{T+2}, v{T+2}")
        for i in range(npair): A(f"v_cvt_pk_bf16_f32 v{D_+2*i+1}, v{D_+2*i}, v{D_+2*i+1}")
        for i in range(npair):
            A(f"v_lshlrev_b32 v{D_+2*i}, 16, v{D_+2*i+1}")
            A(f"v_and_b32 v{D_+2*i+1}, 0xffff0000, v{D_+2*i+1}")
        for i in range(npair): A(f"v_pk_mul_f32 {P(D_+2*i)}, {P(D_+2*i)}, {P(T+2)} op_sel_hi:[1,0]")
        for i in range(npair): A(f"v_cvt_pk_bf16_f32 v{out+i}, v{D_+2*i}, v{D_+2*i+1}")

    A.raw(".p2align 6")
    A("L_help:")
    A("v_lshrrev_b32 v1, 5, v0")
    A("v_mul_u32_u24 v1, 896, v1")
    A("v_and_b32 v2, 31, v0")
    A("v_lshl_add_u32 v1, v2, 2, v1")
    A("s_waitcnt lgkmcnt(0)")
    if dbg: A("v_writelane_b32 v63, s92, 0")
    A("s_load_dwordx2 s[50:51], s[28:29], 0")
    A("s_cmp_eq_u32 s3, 2")
    A("s_cbranch_scc1 L_w2")
    A("s_cmp_eq_u32 s3, 3")
    A("s_cbranch_scc1 L_w3")
    A("s_cmp_lg_u32 s34, 3")
    A("s_cbranch_scc1 L_w1n")
    for i in range(7): A(f"global_load_dword v{8+i}, v1, s[4:5] offset:{128*i}")
    A(f"v_add_u32 v5, {L_XN}, v1")
    A("s_waitcnt vmcnt(0) lgkmcnt(0)")
    tags()
    stamp(1)
    for i in range(7):
        A(f"v_lshlrev_b32 v{16+2*i}, 16, v{8+i}")
        A(f"v_and_b32 v{17+2*i}, 0xffff0000, v{8+i}")
    layernorm(16, 32, 7, 46, 32, 8)
    for i in range(7): A(f"ds_write_b32 v5, v{8+i} offset:{128*i}")
    stamp(2)
    A("s_call_b64 s[62:63], L_qc")
    A("s_branch L_fin")
    pad("cq")
    A("L_qc:")
    tr_addr("v44", "v45", "v46", "v47")
    A("v_and_b32 v46, 1, v60")
    A("v_cmp_eq_u32 vcc, 0, v46")
    A("v_mul_u32_u24 v45, 896, v46")
    A("v_lshl_add_u32 v45, v61, 4, v45")
    A(f"v_add_u32 v45, {L_XN}, v45")
    A("v_lshlrev_b32 v46, 14, v46")
    A("v_lshl_add_u32 v46, v61, 4, v46")
    A("s_lshl_b32 s60, s30, 11")
    A("s_lshl_b32 s61, s35, 8")
    A("s_add_u32 s60, s60, s61")
    A("s_lshl_b32 s61, s3, 6")
    A("s_add_u32 s60, s60, s61")
    A(f"s_add_u32 s60, s60, {WS_QG}")
    A("v_add_u32 v46, s60, v46")
    A("v_mov_b32 v13, s50")
    A("v_mov_b32 v15, s51")
    A("v_cndmask_b32 v13, v15, v13, vcc")
    A("v_mov_b32 v15, v13")
    A("s_waitcnt lgkmcnt(0)")
    A("s_barrier")
    stamp(11 if not prog else 9)
    for t in range(14):
        A(f"ds_read_b128 v[{64+4*t}:{67+4*t}], v45 offset:{64*t}")
        A(f"ds_read_b64_tr_b16 v[{128+4*t}:{129+4*t}], v44 offset:{L_WT + 4096*t}")
        A(f"ds_read_b64_tr_b16 v[{130+4*t}:{131+4*t}], v44 offset:{L_WT + 4096*t + 512}")
        if t >= 4:
            A("s_waitcnt lgkmcnt(12)")
            tt = t - 4
            A(f"v_mfma_f32_16x16x32_bf16 v[8:11], v[{128+4*tt}:{131+4*tt}], v[{64+4*tt}:{67+4*tt}], {'0' if tt == 0 else 'v[8:11]'}")
    for tt in range(10, 14):
        A(f"s_waitcnt lgkmcnt({3*(13-tt)})")
        A(f"v_mfma_f32_16x16x32_bf16 v[8:11], v[{128+4*tt}:{131+4*tt}], v[{64+4*tt}:{67+4*tt}], v[8:11]")
    A("s_mov_b32 exec_lo, 0x00030003")
    A("s_mov_b32 exec_hi, 0x00030003")
    A("v_cvt_pk_bf16_f32 v12, v8, v9")
    A("v_cvt_pk_bf16_f32 v14, v10, v11")
    A(f"global_store_dwordx4 v46, v[12:15], s[28:29] {stf}")
    A("s_mov_b64 exec, -1")
    stamp(8)
    A("s_nop 1")
    A("s_setpc_b64 s[62:63]")
    pad_end("cq")
    A("L_w2:")
    run_chain("ca")
    A("s_waitcnt lgkmcnt(0)")
    tags()
    stamp(1)
    A("s_cmp_lg_u32 s34, 3")
    A("s_cbranch_scc1 L_hnext")
    A("s_call_b64 s[62:63], L_qc")
    A("s_branch L_fin")
    A("L_w3:")
    A("s_waitcnt lgkmcnt(0)")
    tags()
    A("s_cmp_lg_u32 s34, 3")
    A("s_cbranch_scc1 L_w3n")
    run_chain("cq")
    A("s_call_b64 s[62:63], L_qc")
    A("L_w3n:")
    run_chain("cx")
    stamp(1)
    A("s_branch L_hnext")
    A("L_w1n:")
    A("s_waitcnt lgkmcnt(0)")
    tags()
    A("s_cmp_eq_u32 s34, 0")
    A("s_cbranch_scc1 L_fin")
    run_chain("cb")
    A("v_mov_b32 v5, 0")
    A("v_lshlrev_b32 v7, 2, v0")
    A(f"v_add_u32 v7, {L_ZB}, v7")
    A("s_mov_b32 exec_hi, 0")
    A("ds_write_b32 v7, v5")
    A("s_mov_b64 exec, -1")
    A("s_waitcnt lgkmcnt(0)")
    stamp(1)
    A("L_hnext:")
    A("s_sub_u32 s60, s34, 1")
    A("s_cmp_ge_u32 s60, 2")
    A("s_cbranch_scc1 L_fin")

    A("L_tail:")
    pad("cb")
    tr_addr("v5", "v7", "v6", "v4")
    A("s_lshl_b32 s52, s3, 5")
    A("v_lshlrev_b32 v4, 4, v61")
    A(f"v_add_u32 v4, {L_OB}, v4")
    A(f"s_mov_b32 s55, {SPIN}")
    A(f"s_mov_b32 s57, 0x{CEXP:x}")
    A("s_movk_i32 s58, 0xff")
    A("v_mov_b32 v59, s59")
    A("s_cmp_eq_u32 s34, 2")
    A("s_cbranch_scc1 L_F")
    def masks(n, regs_of, full):
        for t in range(n):
            rs = regs_of(t)
            A(f"v_xor_b32 v24{t % 8}, v{rs[0]}, v59" if False else f"v_xor_b32 v{240+t}, v{rs[0]}, v59")
            for r in rs[1:]: A(f"v_bitop3_b32 v{240+t}, v{r}, v{240+t}, v59 bitop3:0xde")
        for t in range(n): A(f"v_and_b32 v{240+t}, s58, v{240+t}")
        for t in range(n): A(f"v_cmp_ne_u32 s[{64+2*t}:{65+2*t}], 0, v{240+t}")
        for t in range(n):
            A(f"s_cmp_lg_u64 s[{64+2*t}:{65+2*t}], 0")
            A(f"s_cselect_b64 s[{64+2*t}:{65+2*t}], {full}, 0")
    A("s_lshl_b32 s60, s33, 15")
    A("s_lshl_b32 s61, s3, 13")
    A("s_add_u32 s60, s60, s61")
    A(f"s_add_u32 s60, s60, {WS_REC + 4096}")
    A("v_lshl_add_u32 v1, v0, 4, s60")
    A("s_lshl_b32 s60, s33, 9")
    A("s_lshr_b32 s61, s3, 1")
    A("s_lshl_b32 s61, s61, 8")
    A("s_add_u32 s60, s60, s61")
    A(f"s_add_u32 s60, s60, {WS_ML}")
    A("v_lshrrev_b32 v3, 5, v0")
    A("v_xor_b32 v2, v60, v3")
    A("v_lshl_add_u32 v2, v2, 4, s60")
    A("v_and_b32 v10, 31, v0")
    A("v_lshlrev_b32 v10, 3, v10")
    A("v_lshl_add_u32 v10, v3, 2, v10")
    A("s_lshl_b32 s60, s3, 8")
    A(f"s_add_u32 s60, s60, {L_OB}")
    A("v_add_u32 v56, s60, v10")
    A("s_mul_i32 s60, s33, 1792")
    A("s_lshl_b32 s61, s35, 8")
    A("s_add_u32 s60, s60, s61")
    A("s_lshl_b32 s61, s3, 6")
    A("s_add_u32 s60, s60, s61")
    A(f"s_add_u32 s60, s60, {WS_H}")
    A("v_lshl_add_u32 v57, v61, 4, s60")
    A("s_barrier")
    stamp(6)
    A(f"global_load_dwordx3 v[8:10], v2, s[28:29] {ldf}")
    for t in range(8):
        A(f"global_load_dwordx4 v[{16+4*t}:{19+4*t}], v1, s[28:29] offset:{1024*t - 4096} {ldf}")
    for t in range(16):
        A(f"ds_read_b64_tr_b16 v[{128+4*t}:{129+4*t}], v5 offset:{L_WT + 4096*t}")
        A(f"ds_read_b64_tr_b16 v[{130+4*t}:{131+4*t}], v5 offset:{L_WT + 4096*t + 512}")
    A("s_branch L_wchk")
    pad("cb")
    A("L_wpoll:")
    A(f"global_load_dwordx3 v[8:10], v2, s[28:29] {ldf}")
    masks(8, lambda t: [16 + 4 * t], "-1")
    for t in range(8):
        A(f"s_mov_b64 exec, s[{64+2*t}:{65+2*t}]")
        A(f"global_load_dwordx4 v[{16+4*t}:{19+4*t}], v1, s[28:29] offset:{1024*t - 4096} {ldf}")
    A("s_mov_b64 exec, -1")
    A("s_sub_u32 s55, s55, 1")
    A("s_cbranch_scc1 L_wgot")
    A("L_wchk:")
    A("s_waitcnt vmcnt(0)")
    A("v_xor_b32 v11, v16, v59")
    for t in range(1, 8): A(f"v_bitop3_b32 v11, v{16+4*t}, v11, v59 bitop3:0xde")
    A("v_and_b32 v11, s58, v11")
    A("v_bitop3_b32 v11, v10, v11, v59 bitop3:0xde")
    A("v_cmp_ne_u32 vcc, 0, v11")
    A("s_cbranch_vccnz L_wpoll")
    A("L_wgot:")
    stamp(7)
    A("v_max_f32_dpp v10, v8, v8 row_ror:8 row_mask:0xf bank_mask:0xf")
    for sh in (4, 2, 1): A(f"v_max_f32_dpp v10, v10, v10 row_ror:{sh} row_mask:0xf bank_mask:0xf")
    A("v_sub_f32 v10, v8, v10")
    A("v_mul_f32 v10, s57, v10")
    A("v_exp_f32 v10, v10")
    A("v_mul_f32 v11, v10, v9")
    seq = []
    for t in range(8):
        for k in range(4):
            op = "v_mul_f32_dpp" if t == 0 else "v_fmac_f32_dpp"
            seq.append(f"{op} v{12+k}, v10, v{16+4*t+k} row_newbcast:{2*t} row_mask:0xf bank_mask:0xf")
    red = [f"v_add_f32_dpp v11, v11, v11 row_ror:{sh} row_mask:0xf bank_mask:0xf" for sh in (8, 4, 2, 1)] + ["v_rcp_f32 v11, v11"]
    for i, s_ in enumerate(seq):
        A(s_)
        if i % 4 == 3 and red: A(red.pop(0))
    A("v_permlane32_swap_b32 v12, v14")
    A("v_permlane32_swap_b32 v13, v15")
    A("v_add_f32 v12, v12, v14")
    A("v_add_f32 v13, v13, v15")
    A("v_mul_f32 v12, v12, v11")
    A("v_mul_f32 v13, v13, v11")
    A("v_cvt_pk_bf16_f32 v12, v12, v13")
    A("ds_write_b32 v56, v12")
    A("s_waitcnt lgkmcnt(0)")
    A("s_barrier")
    for t in range(16): A(f"ds_read_b128 v[{64+4*t}:{67+4*t}], v4 offset:{64*t}")
    pad("cb")
    for t in range(16):
        A(f"s_waitcnt lgkmcnt({15-t})")
        A(f"v_mfma_f32_16x16x32_bf16 v[8:11], v[{128+4*t}:{131+4*t}], v[{64+4*t}:{67+4*t}], {'0' if t == 0 else 'v[8:11]'}")
    A("s_mov_b32 exec_lo, 0x00010001")
    A("s_mov_b32 exec_hi, 0x00010001")
    A("v_bfi_b32 v8, s58, v59, v8")
    A(f"global_store_dwordx4 v57, v[8:11], s[28:29] {stf}")
    A("s_mov_b64 exec, -1")
    stamp(8)
    A("s_branch L_fin")

    A("L_F:")
    pad("cb")
    A("s_lshl_b32 s60, s35, 7")
    A("s_add_u32 s60, s60, s52")
    A("v_lshl_add_u32 v1, v61, 3, s60")
    A("global_load_dwordx2 v[48:49], v1, s[18:19] nt")
    A("s_mul_i32 s60, s31, 896")
    A("v_lshl_add_u32 v1, v0, 3, s60")
    A("s_lshl_b32 s60, s35, 5")
    A("v_lshl_add_u32 v2, v60, 1, s60")
    A("s_mov_b32 s80, -1")
    A("s_mov_b32 s81, 0x00ffffff")
    A("s_cmp_lg_u32 s3, 1")
    A("s_cbranch_scc1 L_Ffr")
    A("global_load_ushort v62, v2, s[22:23] nt")
    A("s_mov_b64 exec, s[80:81]")
    A("global_load_dwordx2 v[52:53], v1, s[4:5] nt")
    A("global_load_dwordx2 v[54:55], v1, s[4:5] offset:448 nt")
    A("s_mov_b64 exec, -1")
    A("L_Ffr:")
    A("s_mul_i32 s60, s31, 14336")
    A(f"s_add_u32 s60, s60, {WS_H + 3584}")
    A("v_lshl_add_u32 v1, v0, 4, s60")
    A("v_add_u32 v2, 7168, v1")
    A("v_mul_u32_u24 v3, 896, v7")
    A("v_add_u32 v3, v3, v6")
    A("s_mul_i32 s60, s3, 224")
    A(f"s_add_u32 s60, s60, {L_WT2}")
    A("v_add_u32 v3, s60, v3")
    A("v_lshlrev_b32 v8, 4, v61")
    A(f"v_add_u32 v8, {L_UB}, v8")
    A(f"v_mov_b32 v9, {L_ZB}")
    for nb in range(7):
        A(f"v_cmp_eq_u32 vcc, {nb}, v60")
        A(f"v_cndmask_b32 v{184+nb}, v9, v8, vcc")
    A("v_lshl_add_u32 v57, v61, 3, s52")
    A(f"v_add_u32 v57, {L_UB}, v57")
    A("s_mul_i32 s60, s31, 28")
    A("s_add_u32 s60, s60, s35")
    A("s_mul_i32 s60, s60, 1792")
    A("s_mul_i32 s61, s3, 448")
    A("s_add_u32 s60, s60, s61")
    A(f"s_add_u32 s60, s60, {WS_P}")
    A("v_lshlrev_b32 v56, 6, v60")
    A("v_lshl_add_u32 v56, v61, 4, v56")
    A("v_add_u32 v56, s60, v56")
    A("s_mul_i32 s60, s31, 50176")
    A("s_lshl_b32 s61, s35, 6")
    A("s_add_u32 s60, s60, s61")
    A(f"s_add_u32 s60, s60, {WS_P + 3584}")
    A("v_mul_u32_u24 v40, 12544, v61")
    A("v_lshl_add_u32 v40, v60, 2, v40")
    A("v_add_u32 v40, s60, v40")
    A("v_add_u32 v41, 7168, v40")
    A("s_lshl_b32 s60, s35, 5")
    A("v_lshl_add_u32 v42, v60, 1, s60")
    A(f"v_add_u32 v43, {L_HB}, v42")
    A("s_mul_i32 s60, s31, 896")
    A("v_add_u32 v42, s60, v42")
    A("v_and_b32 v44, 3, v60")
    A("v_cmp_eq_u32 vcc, 0, v44")
    A("v_mov_b32 v45, s58")
    A("v_cndmask_b32 v44, 0, v45, vcc")
    A("s_lshl_b32 s60, s31, 2")
    A("v_mov_b32 v45, s60")
    A("s_barrier")
    stamp(6)
    pad("cb")
    def hloads(masked):
        for t in range(8):
            if masked: A(f"s_mov_b64 exec, s[{64+2*t}:{65+2*t}]")
            base = "v1" if t < 4 else "v2"
            off = 1792 * (t & 3) - 3584
            A(f"global_load_dwordx4 v[{64+8*t}:{67+8*t}], {base}, s[28:29] offset:{off} {ldf}")
            A(f"global_load_dwordx4 v[{68+8*t}:{71+8*t}], {base}, s[28:29] offset:{off + 896} {ldf}")
    for t in range(14):
        A(f"ds_read_b64_tr_b16 v[{128+4*t}:{129+4*t}], v5 offset:{L_WT + 4096*t}")
        A(f"ds_read_b64_tr_b16 v[{130+4*t}:{131+4*t}], v5 offset:{L_WT + 4096*t + 512}")
    for nb in range(7):
        for t in range(2):
            r = 8 * nb + 4 * t
            A(f"ds_read_b64_tr_b16 a[{192+r}:{193+r}], v3 offset:{28672*t + 32*nb}")
            A(f"ds_read_b64_tr_b16 a[{194+r}:{195+r}], v3 offset:{28672*t + 32*nb + 3584}")
    A("s_waitcnt vmcnt(0)")
    A("v_lshlrev_b32 v46, 16, v48")
    A("v_and_b32 v47, 0xffff0000, v48")
    A("v_lshlrev_b32 v48, 16, v49")
    A("v_and_b32 v49, 0xffff0000, v49")
    A("s_cmp_lg_u32 s3, 1")
    A("s_cbranch_scc1 L_Fb1")
    for i in range(4):
        A(f"v_lshlrev_b32 v{8+2*i}, 16, v{52+i}")
        A(f"v_and_b32 v{9+2*i}, 0xffff0000, v{52+i}")
    A("v_lshlrev_b32 v62, 16, v62")
    A("v_lshlrev_b32 v52, 3, v0")
    A(f"v_add_u32 v52, {L_OB}, v52")
    A("s_mov_b64 exec, s[80:81]")
    hloads(False)
    A("s_branch L_hchk")
    pad("cb")
    A("L_hpoll:")
    masks(8, lambda t: [64 + 8 * t, 68 + 8 * t], "s[80:81]")
    hloads(True)
    A("s_mov_b64 exec, s[80:81]")
    A("s_sub_u32 s55, s55, 1")
    A("s_cbranch_scc1 L_hgot")
    A("L_hchk:")
    A("s_waitcnt vmcnt(0)")
    A("v_xor_b32 v16, v64, v59")
    A("v_xor_b32 v17, v68, v59")
    for t in range(1, 8):
        A(f"v_bitop3_b32 v16, v{64+8*t}, v16, v59 bitop3:0xde")
        A(f"v_bitop3_b32 v17, v{68+8*t}, v17, v59 bitop3:0xde")
    A("v_or_b32 v16, v16, v17")
    A("v_and_b32 v16, s58, v16")
    A("v_cmp_ne_u32 vcc, 0, v16")
    A("s_cbranch_vccnz L_hpoll")
    A("L_hgot:")
    A("s_mov_b64 exec, -1")
    stamp(7)
    pad("cb")
    for (a, b_) in ((0, 1), (2, 3), (4, 5), (6, 7), (0, 2), (4, 6), (0, 4)):
        for i in range(4):
            A(f"v_pk_add_f32 v[{64+8*a+2*i}:{65+8*a+2*i}], v[{64+8*a+2*i}:{65+8*a+2*i}], v[{64+8*b_+2*i}:{65+8*b_+2*i}]")
    for i in range(4): A(f"v_cvt_pk_bf16_f32 v{65+2*i}, v{64+2*i}, v{65+2*i}")
    for i in range(4):
        A(f"v_lshlrev_b32 v{64+2*i}, 16, v{65+2*i}")
        A(f"v_and_b32 v{65+2*i}, 0xffff0000, v{65+2*i}")
    for i in range(4): A(f"v_pk_add_f32 v[{8+2*i}:{9+2*i}], v[{8+2*i}:{9+2*i}], v[{64+2*i}:{65+2*i}]")
    for i in range(4): A(f"v_cvt_pk_bf16_f32 v{16+i}, v{8+2*i}, v{9+2*i}")
    for i in range(4):
        A(f"v_lshlrev_b32 v{8+2*i}, 16, v{16+i}")
        A(f"v_and_b32 v{9+2*i}, 0xffff0000, v{16+i}")
    layernorm(8, 24, 4, 32, 64, 20, emask="s[80:81]")
    A("s_mov_b64 exec, s[80:81]")
    A("ds_write_b64 v52, v[20:21]")
    A("ds_write_b64 v52, v[22:23] offset:448")
    A(f"ds_write_b64 v52, v[16:17] offset:{L_HB - L_OB}")
    A(f"ds_write_b64 v52, v[18:19] offset:{L_HB - L_OB + 448}")
    A("s_mov_b64 exec, -1")
    A("L_Fb1:")
    pad("cb")
    A("s_waitcnt lgkmcnt(0)")
    A("s_barrier")
    for t in range(14): A(f"ds_read_b128 v[{64+4*t}:{67+4*t}], v4 offset:{64*t}")
    for t in range(14):
        A(f"s_waitcnt lgkmcnt({13-t})")
        A(f"v_mfma_f32_16x16x32_bf16 v[8:11], v[{128+4*t}:{131+4*t}], v[{64+4*t}:{67+4*t}], {'0' if t == 0 else 'v[8:11]'}")
    A("v_cvt_pk_bf16_f32 v12, v8, v9")
    A("v_cvt_pk_bf16_f32 v13, v10, v11")
    A("v_lshlrev_b32 v8, 16, v12")
    A("v_and_b32 v9, 0xffff0000, v12")
    A("v_lshlrev_b32 v10, 16, v13")
    A("v_and_b32 v11, 0xffff0000, v13")
    A("v_pk_add_f32 v[8:9], v[8:9], v[46:47]")
    A("v_pk_add_f32 v[10:11], v[10:11], v[48:49]")
    A("v_cvt_pk_bf16_f32 v12, v8, v9")
    A("v_cvt_pk_bf16_f32 v13, v10, v11")
    A("v_lshlrev_b32 v8, 16, v12")
    A("v_and_b32 v9, 0xffff0000, v12")
    A("v_lshlrev_b32 v10, 16, v13")
    A("v_and_b32 v11, 0xffff0000, v13")
    for k in range(4): A(f"v_max_f32 v{8+k}, 0, v{8+k}")
    A("v_pk_mul_f32 v[8:9], v[8:9], v[8:9]")
    A("v_pk_mul_f32 v[10:11], v[10:11], v[10:11]")
    A("s_mov_b32 exec_lo, 0x00010001")
    A("s_mov_b32 exec_hi, 0x00010001")
    A("v_cvt_pk_bf16_f32 v12, v8, v9")
    A("v_cvt_pk_bf16_f32 v13, v10, v11")
    A("ds_write_b64 v57, v[12:13]")
    A("s_mov_b64 exec, -1")
    A("s_waitcnt lgkmcnt(0)")
    A("s_barrier")
    for nb in range(7):
        for t in range(2):
            i = 2 * nb + t
            A(f"ds_read_b128 v[{64+4*i}:{67+4*i}], v{184+nb} offset:{64*t}")
    A("ds_read_u16 v43, v43")
    pad("cb")
    for i in range(14):
        A(f"s_waitcnt lgkmcnt({14-i})")
        A(f"v_mfma_f32_16x16x32_bf16 v[8:11], a[{192+4*i}:{195+4*i}], v[{64+4*i}:{67+4*i}], {'0' if i == 0 else 'v[8:11]'}")
    A("s_mov_b32 exec_lo, 0x007f007f")
    A("s_mov_b32 exec_hi, 0x007f007f")
    A("v_bfi_b32 v8, s58, v59, v8")
    A(f"global_store_dwordx4 v56, v[8:11], s[28:29] {stf}")
    A("s_mov_b64 exec, -1")
    stamp(8)
    A("s_cmp_lg_u32 s3, 1")
    A("s_cbranch_scc1 L_fin")
    A(f"s_mov_b32 s55, {SPIN}")
    A("L_ppoll:")
    for k in range(7):
        base = "v40" if k < 4 else "v41"
        A(f"global_load_dword v{16+k}, {base}, s[28:29] offset:{1792*(k&3) - 3584} {ldf}")
    A("s_sub_u32 s55, s55, 1")
    A("s_cbranch_scc1 L_pgot")
    A("s_waitcnt vmcnt(0)")
    A("v_xor_b32 v24, v16, v59")
    for k in range(1, 7): A(f"v_bitop3_b32 v24, v{16+k}, v24, v59 bitop3:0xde")
    A("v_and_b32 v24, v24, v44")
    A("v_cmp_ne_u32 vcc, 0, v24")
    A("s_cbranch_vccnz L_ppoll")
    A("L_pgot:")
    A("s_waitcnt lgkmcnt(0)")
    stamp(9)
    A("v_add_f32 v16, v16, v17")
    A("v_add_f32 v18, v18, v19")
    A("v_add_f32 v20, v20, v21")
    A("v_add_f32 v16, v16, v18")
    A("v_add_f32 v20, v20, v22")
    A("v_add_f32 v16, v16, v20")
    A("v_lshlrev_b32 v43, 16, v43")
    A("v_mov_b32 v17, v16")
    A("v_permlane16_swap_b32 v17, v16")
    A("v_add_f32 v16, v16, v17")
    A("v_mov_b32 v17, v16")
    A("v_permlane32_swap_b32 v17, v16")
    A("v_add_f32 v16, v16, v17")
    A("v_cvt_pk_bf16_f32 v16, v16, v16")
    A("v_lshlrev_b32 v16, 16, v16")
    A("v_add_f32 v16, v16, v62")
    A("v_cvt_pk_bf16_f32 v16, v16, v16")
    A("v_lshlrev_b32 v16, 16, v16")
    A("v_add_f32 v16, v16, v43")
    A("v_cvt_pk_bf16_f32 v16, v16, v16")
    A("s_mov_b64 exec, 0xffff")
    A(f"global_store_short v42, v16, s[24:25] {stf}")
    A("s_mov_b64 exec, -1")
    A("s_cmp_lg_u32 s35, 0")
    A("s_cbranch_scc1 L_fin")
    A("s_mov_b64 exec, 1")
    A(f"global_store_dword v45, v59, s[28:29] {stf}")
    A("s_mov_b64 exec, -1")
    pad_end("cb")
    A("L_fin:")
    if dbg:
        A("s_waitcnt vmcnt(0)")
        stamp(10)
        A("s_barrier")
        A("s_lshl_b32 s60, s2, 2")
        A("s_add_u32 s60, s60, s3")
        A("s_lshl_b32 s60, s60, 6")
        A(f"s_add_u32 s60, s60, {WS_TS}")
        A("v_lshl_add_u32 v1, v0, 2, s60")
        A("s_mov_b64 exec, 0xffff")
        A("global_store_dword v1, v63, s[28:29]")
    A("L_end:")
    A("s_endpgm")
    A.raw(".p2align 7")
    A.raw(".type L_tab,@object")
    A.raw("L_tab:")
    if counts is None: counts = [[128] * 5, [128] * 5]
    for (cW, cF, c10, c11, cQ) in counts:
        cs = [cW] * 7 + [cF] * 3 + [c10, c11] + [cQ] * 4
        assert sum(cs) == 2048, sum(cs)
        st = 0
        for c_ in cs:
            A.raw(f".long {st | (c_ << 16)}"); st += c_
    A.raw(".size L_tab, 128")
    A.raw('.section .rodata,"a"')
    A.raw(".p2align 6")
    A.raw(f".amdhsa_kernel {NAME}_kernel")
    A.raw("  .amdhsa_next_free_vgpr 512")
    A.raw("  .amdhsa_next_free_sgpr 96")
    A.raw("  .amdhsa_accum_offset 256")
    A.raw("  .amdhsa_group_segment_fixed_size 0")
    A.raw("  .amdhsa_kernarg_size 104")
    A.raw("  .amdhsa_user_sgpr_count 2")
    A.raw("  .amdhsa_user_sgpr_kernarg_segment_ptr 1")
    A.raw("  .amdhsa_system_sgpr_workgroup_id_x 1")
    A.raw("  .amdhsa_float_denorm_mode_32 3")
    A.raw(".end_amdhsa_kernel")
    bad = A.check_edges(returns=[("L_rare_ret", f"L_back_{nm}") for nm in sites])
    for b in bad: print("EDGE HAZARD", b, file=sys.stderr)
    return A.text()

if __name__ == "__main__":
    import json
    kw = json.loads(sys.argv[2]) if len(sys.argv) > 2 else {}
    open(sys.argv[1], "w").write(gen(**kw))
```

```python
import sys, struct
from asmlib import Asm
NAME = "sequential_preLN__gqa_block_cached__dense_activation_squared_relu__decode"

def f2u(x): return struct.unpack("<I", struct.pack("<f", x))[0]

WS_EP = 0x0
WS_QG = 0x1000
WS_REC = 0x10000
WS_ML = 0x90000
WS_H = 0xA0000
WS_P = 0xB0000
WS_CT = 0xD0000
WS_TS = 0x100000
L_WT = 0
L_WT2 = 57344
L_SM = 158464
L_XN = L_SM
L_QB = L_SM + 2048
L_OB = L_SM + 3072
L_HB = L_SM + 4096
L_UB = L_SM + 5120
L_ZB = L_SM + 5248
L_END = L_SM + 5376

SPIN = 1 << 19
CEXP = f2u(0.0625 * 1.4426950408889634)

def gen(dbg=False, kflags="nt", vflags="nt", wflags="nt", PD=24, DD=28, vperm=True, warm=True,
        counts=None, rot=True, round_scores=True, NLs=(4, 0, 0, 0), prog=False, D=48, skip="",
        pollpos=64, dmau=8, P=4, spread=True, prot=4, stf="sc1", ldf="sc1"):
    A = Asm()
    nextra = 3
    def stamp(k):
        if dbg:
            A("s_memrealtime s[92:93]")
            A("s_waitcnt lgkmcnt(0)")
            A(f"v_writelane_b32 v63, s92, {k}")
    pads = []
    def pad(chain):
        if not warm: return
        n = sum(1 for p in pads if p == chain)
        pads.append(chain)
        A(f"L_{chain}{n}:")
        A(f"s_cbranch_execz L_{chain}{n+1}")
    def pad_end(chain):
        if not warm: return
        n = sum(1 for p in pads if p == chain)
        A(f"L_{chain}{n}:")
        A(f"s_cbranch_execz L_{chain}_ret")
    def run_chain(chain):
        if not warm: return
        A("s_mov_b64 exec, 0")
        A(f"s_branch L_{chain}0")
        A(f"L_{chain}_ret:")
        A("s_mov_b64 exec, -1")
    def tr_addr(v, row, c8, t):
        A(f"v_lshrrev_b32 {row}, 2, v60")
        A(f"v_lshl_add_u32 {row}, v61, 3, {row}")
        A(f"v_and_b32 {c8}, 3, v60")
        A(f"v_lshlrev_b32 {c8}, 3, {c8}")
        A(f"v_bfe_u32 {t}, v0, 3, 2")
        A(f"v_xor_b32 {t}, s3, {t}")
        A(f"v_lshl_add_u32 {v}, {row}, 7, {c8}")
        A(f"v_lshl_add_u32 {v}, {t}, 5, {v}")
    def tags():
        A("s_mul_i32 s50, s50, 0x9e3779b1")
        A("s_mul_i32 s51, s51, 0x9e3779b1")
        A("s_add_u32 s50, s50, 0x7f4a7c15")
        A("s_add_u32 s51, s51, 0x7f4a7c15")
        A("s_cmp_eq_u32 s31, 0")
        A("s_cselect_b32 s59, s50, s51")
    def sel4(dst, vals):
        A(f"s_mov_b32 {dst}, {vals[0]}")
        for r in (1, 2, 3):
            if vals[r] != vals[0]:
                A(f"s_cmp_eq_u32 s34, {r}")
                A(f"s_cselect_b32 {dst}, {vals[r]}, {dst}")

    A.raw(f"; @launch grid=(256,1,1) block=(256,1,1) lds={L_END}")
    A.raw('.amdgcn_target "amdgcn-amd-amdhsa--gfx950"')
    A.raw(".text")
    A.raw(f".globl {NAME}_kernel")
    A.raw(".p2align 8")
    A.raw(f".type {NAME}_kernel,@function")
    A.raw(f"{NAME}_kernel:")
    A("s_cmp_ge_u32 s2, 256")
    A("s_cbranch_scc1 L_end")
    A("s_load_dwordx16 s[4:19], s[0:1], 0")
    A("s_load_dwordx8 s[20:27], s[0:1], 64")
    A("s_load_dwordx2 s[28:29], s[0:1], 96")
    if dbg:
        A("v_mov_b32 v63, 0")
        A("s_memrealtime s[92:93]")
    A("v_lshrrev_b32 v1, 6, v0")
    A("v_and_b32 v0, 63, v0")
    A("v_readfirstlane_b32 s3, v1")
    A("s_and_b32 s30, s2, 7")
    A("s_bfe_u32 s31, s2, 0x10003")
    A("s_lshr_b32 s32, s2, 4")
    A("s_and_b32 s33, s2, 15")
    A("s_sub_u32 s35, s32, 7")
    A("s_lshl_b32 s35, s35, 3")
    A("s_add_u32 s35, s35, s30")
    A("s_cmp_lt_u32 s35, 28")
    A("s_cselect_b32 s34, 2, 0")
    A("s_cmp_lt_u32 s32, 7")
    A("s_cselect_b32 s34, 1, s34")
    A("s_cselect_b32 s35, s32, s35")
    A("s_lshr_b32 s48, s2, 3")
    A("s_sub_u32 s49, s48, 24")
    A("s_cmp_ge_u32 s32, 12")
    A("s_cselect_b32 s34, 3, s34")
    A("s_cselect_b32 s35, s49, s35")
    A("v_and_b32 v60, 15, v0")
    A("v_lshrrev_b32 v61, 4, v0")
    A("s_cmp_lg_u32 s3, 0")
    A("s_cbranch_scc1 L_help")

    if spread:
        A("s_add_u32 s75, s30, s32")
        A("s_and_b32 s75, s75, 7")
        A("s_add_u32 s61, s75, 6")
    else:
        A("s_mov_b32 s75, s30")
        A("s_mov_b32 s61, s30")
    A("s_and_b32 s76, s2, 8")
    A("s_or_b32 s76, s76, s75")
    A("s_getpc_b64 s[72:73]")
    A("L_pc0:")
    A("s_add_u32 s72, s72, L_tab-L_pc0")
    A("s_addc_u32 s73, s73, 0")
    A("s_lshl_b32 s60, s32, 2")
    A("s_lshl_b32 s61, s61, 4")
    A("s_and_b32 s61, s61, 64")
    A("s_add_u32 s60, s60, s61")
    A("s_load_dword s71, s[72:73], s60")
    sel4("s64", (896, 896, 3584, 8192))
    sel4("s65", (0, 458752, 0, 1024))
    A("s_mul_i32 s65, s65, s30")
    A("s_lshl_b32 s66, s35, 7")
    A("s_add_u32 s65, s65, s66")
    sel4("s66", (56, 64, 56, 56))
    sel4("s46", (3670016, 3670016, 1605632, 3670016))
    A("s_mov_b32 s47, 0x20000")
    A("v_lshrrev_b32 v8, 3, v0")
    A("v_mul_lo_u32 v8, v8, s64")
    A("v_and_b32 v9, 7, v0")
    A("v_lshl_add_u32 v8, v9, 4, v8")
    A("v_and_b32 v9, 16, v0")
    A("v_lshlrev_b32 v9, 1, v9")
    A("v_xor_b32 v8, v8, v9")
    A("s_lshl_b32 s64, s64, 3")
    A("s_mov_b32 s67, 64")
    A(f"s_mov_b32 m0, {L_WT}")
    if vperm:
        A("v_and_b32 v1, 3, v60")
        A("v_lshrrev_b32 v2, 2, v60")
        A("v_lshl_add_u32 v1, v1, 2, v2")
        A("v_lshlrev_b32 v1, 9, v1")
        A("v_lshl_add_u32 v1, v61, 4, v1")
        A("v_lshlrev_b32 v2, 4, v60")
        A("v_lshl_add_u32 v2, v61, 9, v2")
        A("v_add_u32 v3, 4096, v2")
        vld = [("v2" if r < 2 else "v3", (r & 1) * 2048 + dh * 256) for r in range(4) for dh in range(2)]
    else:
        A("v_lshlrev_b32 v1, 9, v60")
        A("v_lshl_add_u32 v1, v61, 4, v1")
        A("v_lshlrev_b32 v2, 4, v60")
        A("v_lshl_add_u32 v2, v61, 11, v2")
        vld = [("v2", r * 512 + dh * 256) for r in range(4) for dh in range(2)]
    A("s_lshl_b32 s56, s76, 24")
    A("s_mov_b32 s38, 0x1000000")
    A("s_mov_b32 s39, 0x20000")
    A("s_mov_b32 s42, 0x1000000")
    A("s_mov_b32 s43, 0x20000")
    A("s_waitcnt lgkmcnt(0)")
    if dbg: A("v_writelane_b32 v63, s92, 0")
    A("s_load_dwordx2 s[50:51], s[28:29], 0")
    A("s_cmp_eq_u32 s34, 2")
    A("s_cselect_b64 s[44:45], s[16:17], s[12:13]")
    A("s_cmp_eq_u32 s34, 3")
    A("s_cselect_b64 s[44:45], s[10:11], s[44:45]")
    A("s_and_b32 s45, s45, 0xffff")
    A("s_cmp_eq_u32 s34, 0")
    A("s_cbranch_scc1 L_nodma")
    if "d" in skip:
        A("s_cmp_lg_u32 s34, 3")
        A("s_cbranch_scc1 L_nodma")
    A("L_dma:")
    if dmau == 1:
        A(f"s_waitcnt vmcnt({DD-1})")
        A(f"buffer_load_dwordx4 v8, s[44:47], s65 offen {wflags} lds")
        A("v_xor_b32 v8, s67, v8")
        A("s_add_u32 m0, m0, 1024")
        A("s_add_u32 s65, s65, s64")
        A("s_sub_u32 s66, s66, 1")
        A("s_cmp_lg_u32 s66, 0")
        A("s_cbranch_scc1 L_dma")
    else:
        A("v_xor_b32 v9, s67, v8")
        A("s_sub_u32 s74, s64, 1024")
        A("L_dma1:")
        for h in range(2):
            A(f"s_waitcnt vmcnt({DD-4})")
            for k in range(4):
                A(f"buffer_load_dwordx4 {'v9' if k & 1 else 'v8'}, s[44:47], s65 offen offset:{1024*k} {wflags} lds")
                A("s_add_u32 s65, s65, s74")
            A("s_add_u32 m0, m0, 4096")
            A("s_add_u32 s65, s65, 4096")
        A("s_sub_u32 s66, s66, 8")
        A("s_cmp_lg_u32 s66, 0")
        A("s_cbranch_scc1 L_dma1")
    A("s_cmp_lg_u32 s34, 2")
    A("s_cbranch_scc1 L_nodma")
    A("s_cmp_eq_u32 s67, 0")
    A("s_cbranch_scc1 L_nodma")
    A("s_mov_b32 s44, s20")
    A("s_and_b32 s45, s21, 0xffff")
    A("s_mul_i32 s65, s35, 57344")
    A("s_movk_i32 s64, 1024")
    A("s_mov_b32 s67, 0")
    A("s_mov_b32 s66, 56")
    A("v_lshlrev_b32 v8, 4, v0")
    A("s_branch L_dma")
    A("L_nodma:")
    A("s_add_u32 s36, s6, s56")
    A("s_addc_u32 s37, s7, 0")
    A("s_and_b32 s37, s37, 0xffff")
    A("s_add_u32 s40, s8, s56")
    A("s_addc_u32 s41, s9, 0")
    A("s_and_b32 s41, s41, 0xffff")
    A("s_lshr_b32 s55, s71, 16")
    A("s_and_b32 s52, s71, 0xffff")
    A("s_add_u32 s53, s52, s55")
    A("s_lshl_b32 s52, s52, 13")
    A("s_lshl_b32 s53, s53, 13")
    if rot:
        A("s_lshl_b32 s54, s48, 13")
        A("s_add_u32 s54, s54, s52")
    else:
        A("s_mov_b32 s54, s52")
    ring = [("a", 0), ("a", 64), ("a", 128)]
    extra = [("a", 192), ("v", 128), ("v", 192)]
    def R4(slot, k):
        c, b = slot
        return f"{c}[{b+4*k}:{b+4*k+3}]"
    def ldK(slot, j): A(f"buffer_load_dwordx4 {R4(slot, j)}, v1, s[36:39], s54 offen offset:{64*j} {kflags}")
    def ldV(slot, i): A(f"buffer_load_dwordx4 {R4(slot, 8+i)}, {vld[i][0]}, s[40:43], s54 offen offset:{vld[i][1]} {vflags}")
    def adv():
        A("s_add_u32 s54, s54, 0x2000")
        A("s_cmp_eq_u32 s54, s53")
        A("s_cselect_b32 s54, s52, s54")
    def qpoll():
        A(f"global_load_dwordx4 v[48:51], v45, s[28:29] {ldf}")
        A(f"global_load_dwordx4 v[52:55], v45, s[28:29] offset:1024 {ldf}")
    def qcheck():
        A("v_cmp_ne_u32 s[60:61], s59, v49")
        A("v_cmp_ne_u32 s[62:63], s59, v51")
        A("v_cmp_ne_u32 s[64:65], s59, v53")
        A("v_cmp_ne_u32 vcc, s59, v55")
        A("s_or_b64 s[60:61], s[60:61], s[62:63]")
        A("s_or_b64 vcc, vcc, s[64:65]")
        A("s_or_b64 vcc, vcc, s[60:61]")
    nissued = 0
    anyNL = any(NLs)
    for slot in ring + extra:
        for k in range(16):
            if nissued == pollpos: qpoll()
            if nissued % 4 == 0 and nissued <= pollpos + PD - 4: A(f"s_waitcnt vmcnt({PD-4})")
            if nissued == PD - 4:
                A("s_waitcnt lgkmcnt(0)")
                tags()
                A("s_cmp_lg_u32 s34, 3")
                A("s_cbranch_scc1 L_qc_ret0")
                A("s_call_b64 s[62:63], L_qc")
                A("L_qc_ret0:")
                A("v_and_b32 v21, 1, v60")
                A("v_mov_b32 v22, 0xffff")
                A("v_lshlrev_b32 v21, 4, v21")
                A("v_lshlrev_b32 v22, v21, v22")
                A("v_bfe_u32 v21, v60, 1, 2")
                for kk in range(4):
                    A(f"v_cmp_eq_u32 vcc, {kk}, v21")
                    A(f"v_cndmask_b32 v{4+kk}, 0, v22, vcc")
                A("v_mov_b32 v19, 0xff7fffff")
                A("v_mov_b32 v20, 0")
                for kk in range(32, 40): A(f"v_mov_b32 v{kk}, 0")
                A(f"s_mov_b32 s57, 0x{CEXP:x}")
                A("s_mov_b32 s58, 0")
                if dbg: A("s_mov_b32 s83, 0")
                A("v_lshrrev_b32 v21, 3, v60")
                A("v_lshlrev_b32 v21, 9, v21")
                A("v_lshl_add_u32 v21, v61, 4, v21")
                A(f"v_add_u32 v21, {L_QB}, v21")
                A("s_lshl_b32 s60, s31, 14")
                A("s_lshl_b32 s61, s75, 11")
                A("s_add_u32 s60, s60, s61")
                A(f"s_add_u32 s60, s60, {WS_QG}")
                A("v_lshl_add_u32 v45, v0, 4, s60")
                A("s_lshl_b32 s77, s76, 8")
                A(f"s_add_u32 s77, s77, {WS_CT}")
                A("s_mov_b32 s79, 0")
                A(f"s_mul_i32 s82, s76, {prot}")
                A("v_lshlrev_b32 v46, 3, v0")
                A(f"v_add_u32 v46, {L_QB}, v46")
                sel4("s68", NLs)
                sel4("s69", (65536, 65536, 114688, 65536))
                A("v_lshl_add_u32 v44, v0, 4, s69")
                A("s_add_u32 s70, s68, 3")
                A("s_sub_u32 s55, s55, s70")
                A("s_sub_u32 s55, s55, 3")
            if k < 8: ldK(slot, k)
            else: ldV(slot, k - 8)
            nissued += 1
        adv()
        if prog and nissued in (32, 96): stamp({32: 12, 96: 14}[nissued])
        if nissued == 48 and anyNL:
            A("s_cmp_eq_u32 s68, 0")
            A("s_cbranch_scc1 L_pfl_end")
            A("L_pfl:")
            for k in range(16):
                off = 64 * k if k < 8 else vld[k - 8][1]
                A(f"s_add_u32 m0, s69, {1024 * k - off}")
                if k % 4 == 0: A(f"s_waitcnt vmcnt({PD-4})")
                if k < 8: A(f"buffer_load_dwordx4 v1, s[36:39], s54 offen offset:{off} {kflags} lds")
                else: A(f"buffer_load_dwordx4 {vld[k-8][0]}, s[40:43], s54 offen offset:{off} {vflags} lds")
            adv()
            A("s_add_u32 s69, s69, 0x4000")
            A("s_sub_u32 s68, s68, 1")
            A("s_cmp_lg_u32 s68, 0")
            A("s_cbranch_scc1 L_pfl")
            A("L_pfl_end:")
    stamp(1)
    A(f"s_waitcnt vmcnt({96 - pollpos})")
    A(f"s_mov_b32 s66, {SPIN}")
    A("s_branch L_qchk")
    A("L_qpoll:")
    qpoll()
    A("s_sub_u32 s66, s66, 1")
    A("s_cbranch_scc1 L_qgot")
    A("s_waitcnt vmcnt(0)")
    A("L_qchk:")
    qcheck()
    A("s_cbranch_scc1 L_qpoll")
    A("L_qgot:")
    A("ds_write2_b32 v46, v48, v50 offset0:0 offset1:1")
    A("ds_write2_b32 v46, v52, v54 offset0:128 offset1:129")
    A("s_waitcnt lgkmcnt(0)")
    for j in range(8):
        A(f"ds_read_b128 v[{64+4*j}:{67+4*j}], v21 offset:{64*j}")
    A("s_waitcnt lgkmcnt(0)")
    if dbg: A("v_writelane_b32 v63, s66, 5")
    stamp(2)

    sites = []
    def tile(slot, loads, name):
        if loads:
            A("s_cmp_le_u32 s55, 1")
            A(f"s_cbranch_scc1 L_dstub_{name}")
            A("s_sub_u32 s55, s55, 1")
            A(f"L_dback_{name}:")
        for j in range(8):
            if loads: A(f"s_waitcnt vmcnt({D-1})")
            A(f"v_mfma_f32_16x16x32_bf16 v[8:11], {R4(slot, j)}, v[{64+4*j}:{67+4*j}], {'0' if j == 0 else 'v[8:11]'}")
            if loads: ldK(slot, j)
        if round_scores:
            A("v_cvt_pk_bf16_f32 v12, v8, v9")
            A("v_cvt_pk_bf16_f32 v13, v10, v11")
            A("v_lshlrev_b32 v14, 16, v12")
            A("v_and_b32 v15, 0xffff0000, v12")
            A("v_lshlrev_b32 v16, 16, v13")
            A("v_and_b32 v17, 0xffff0000, v13")
        else:
            for r in range(4): A(f"v_mov_b32 v{14+r}, v{8+r}")
        A("v_max3_f32 v18, v14, v15, v16")
        A("v_max_f32 v18, v18, v17")
        A("v_cmp_gt_f32 vcc, v18, v19")
        A(f"s_cbranch_vccnz L_stub_{name}")
        A(f"L_back_{name}:")
        sites.append(name)
        for r in range(4): A(f"v_sub_f32 v{14+r}, v{14+r}, v19")
        for r in range(4): A(f"v_mul_f32 v{14+r}, s57, v{14+r}")
        for r in range(4): A(f"v_exp_f32 v{14+r}, v{14+r}")
        for r in range(4): A(f"v_cvt_pk_bf16_f32 v{40+r}, v{14+r}, v{14+r}")
        def mkA(r):
            for k in range(4): A(f"v_and_b32 v{24+4*(r&1)+k}, v{40+r}, v{4+k}")
        mkA(0)
        A("v_add_f32 v14, v14, v15")
        A("v_add_f32 v16, v16, v17")
        for r in range(4):
            a = 24 + 4 * (r & 1)
            if loads: A(f"s_waitcnt vmcnt({D-1})")
            A(f"v_mfma_f32_16x16x32_bf16 v[32:35], v[{a}:{a+3}], {R4(slot, 8+2*r)}, v[32:35]")
            if loads: ldV(slot, 2 * r)
            if loads: A(f"s_waitcnt vmcnt({D-1})")
            A(f"v_mfma_f32_16x16x32_bf16 v[36:39], v[{a}:{a+3}], {R4(slot, 9+2*r)}, v[36:39]")
            if loads: ldV(slot, 2 * r + 1)
            if r < 3: mkA(r + 1)
            if r == 0: A("v_add_f32 v14, v14, v16")
            if r == 1: A("v_add_f32 v20, v20, v14")
        if loads:
            A("s_cmp_eq_u32 s79, 1")
            A("s_cbranch_scc1 L_sdone")
            adv()
    A("L_loop:")
    for i, slot in enumerate(ring):
        pad("ca")
        tile(slot, True, f"r{i}")
    A("s_add_u32 s58, s58, 1")
    if prog:
        for (itn, k) in ((10, 11), (20, 4), (30, 15)):
            A(f"s_cmp_lg_u32 s58, {itn}")
            A(f"s_cbranch_scc1 L_pg{itn}")
            stamp(k)
            A(f"L_pg{itn}:")
    A("s_cmp_gt_u32 s58, s70")
    A("s_cbranch_scc1 L_loop")
    for i in range(1, nextra):
        A(f"s_cmp_eq_u32 s58, {i}")
        A(f"s_cbranch_scc1 L_x{i}")
    A("s_branch L_x0")
    pad("ca")
    A("L_rare:")
    A("v_mov_b32 v21, v18")
    A("v_permlane32_swap_b32 v21, v18")
    A("v_max_f32 v18, v18, v21")
    A("v_mov_b32 v21, v18")
    A("v_permlane16_swap_b32 v21, v18")
    A("v_max3_f32 v18, v18, v21, v19")
    A("v_sub_f32 v21, v19, v18")
    A("v_mul_f32 v21, s57, v21")
    A("v_exp_f32 v21, v21")
    A("v_mov_b32 v19, v18")
    A("v_mul_f32 v20, v20, v21")
    A("v_readlane_b32 s60, v21, 0")
    A("v_readlane_b32 s61, v21, 8")
    A("v_mov_b32 v21, s60")
    A("s_mov_b32 exec_lo, 0")
    A("v_mov_b32 v21, s61")
    A("s_mov_b64 exec, -1")
    for k in range(32, 40): A(f"v_mul_f32 v{k}, v{k}, v21")
    A("L_rare_ret:")
    A("s_setpc_b64 s[62:63]")
    for nm in ("r0", "r1", "r2", "x0", "x1", "x2"):
        A(f"L_stub_{nm}:")
        A("s_call_b64 s[62:63], L_rare")
        A(f"s_branch L_back_{nm}")
    for nm in ("r0", "r1", "r2"):
        A(f"L_dstub_{nm}:")
        A("s_call_b64 s[62:63], L_dyn")
        A(f"s_branch L_dback_{nm}")
    npool = 16 * P
    A("L_dyn:")
    A("s_cmp_lg_u32 s79, 0")
    A("s_cbranch_scc1 L_dyn_drain")
    A("s_cmp_eq_u32 s55, 1")
    A("s_mov_b32 s55, 0")
    A("s_cbranch_scc1 L_dyn_claim")
    A("s_waitcnt lgkmcnt(0)")
    A(f"s_cmp_ge_u32 s78, {npool}")
    A("s_cbranch_scc1 L_dyn_end")
    if dbg: A("s_add_u32 s83, s83, 1")
    A("s_add_u32 s54, s78, s82")
    A(f"s_cmp_ge_u32 s54, {npool}")
    A(f"s_cselect_b32 s60, {npool}, 0")
    A("s_sub_u32 s54, s54, s60")
    A(f"s_add_u32 s54, s54, {2048 - npool}")
    A("s_lshl_b32 s54, s54, 13")
    A("L_dyn_claim:")
    A("s_mov_b32 s78, 1")
    A("s_atomic_add s78, s[28:29], s77 glc")
    A("s_setpc_b64 s[62:63]")
    A("L_dyn_end:")
    A("s_mov_b32 s38, 0")
    A("s_mov_b32 s42, 0")
    A("s_mov_b32 s79, 4")
    A("L_dyn_drain:")
    A("s_sub_u32 s79, s79, 1")
    A("s_setpc_b64 s[62:63]")
    pad_end("ca")
    for i in (1, 2, 0):
        pad("cx")
        A(f"L_x{i}:")
        if i == 0: A("s_waitcnt lgkmcnt(0)")
        tile(extra[i], False, f"x{i}")
        if i == 0 and anyNL:
            A("s_cmp_eq_u32 s58, s70")
            A("s_cbranch_scc1 L_loop")
            for k in range(16): A(f"ds_read_b128 {R4(extra[0], k)}, v44 offset:{1024*k}")
            A("v_add_u32 v44, 0x4000, v44")
        A("s_branch L_loop")
    pad("cx")
    A("L_sdone:")
    stamp(3)
    if dbg: A("v_writelane_b32 v63, s83, 13")
    A("v_mov_b32 v21, v20")
    A("v_lshrrev_b32 v22, 1, v61")
    A("v_permlane32_swap_b32 v21, v20")
    A("v_lshlrev_b32 v22, 14, v22")
    A("v_add_f32 v20, v20, v21")
    A("v_lshl_add_u32 v22, v60, 5, v22")
    A("v_mov_b32 v21, v20")
    A("v_and_b32 v23, 1, v61")
    A("v_lshl_add_u32 v22, v23, 4, v22")
    A("v_permlane16_swap_b32 v21, v20")
    A("s_lshl_b32 s60, s76, 15")
    A("s_lshl_b32 s61, s32, 9")
    A("s_add_u32 s60, s60, s61")
    A(f"s_add_u32 s60, s60, {WS_REC}")
    A("v_add_u32 v22, s60, v22")
    A("v_add_u32 v23, 0x2000, v22")
    A("v_mov_b32 v26, s59")
    A("s_movk_i32 s61, 0xff")
    A("v_bfi_b32 v32, s61, v26, v32")
    A("v_bfi_b32 v36, s61, v26, v36")
    A(f"global_store_dwordx4 v22, v[32:35], s[28:29] {stf}")
    A(f"global_store_dwordx4 v23, v[36:39], s[28:29] {stf}")
    A("v_add_f32 v25, v20, v21")
    A("v_mov_b32 v24, v19")
    A("s_lshl_b32 s60, s76, 9")
    A("s_lshl_b32 s61, s32, 4")
    A("s_add_u32 s60, s60, s61")
    A(f"s_add_u32 s60, s60, {WS_ML}")
    A("v_lshl_add_u32 v22, v0, 5, s60")
    A("s_mov_b64 exec, 0x101")
    A(f"global_store_dwordx4 v22, v[24:27], s[28:29] {stf}")
    A("s_mov_b64 exec, -1")
    A("s_sub_u32 s60, s34, 1")
    A("s_cmp_lt_u32 s60, 2")
    A("s_cbranch_scc1 L_tail")
    A("s_branch L_fin")
    pad_end("cx")

    def reduce_sum(v, t, width):
        for sh in (8, 4, 2, 1):
            A(f"v_add_f32_dpp v{v}, v{v}, v{v} row_ror:{sh} row_mask:0xf bank_mask:0xf")
        A(f"v_mov_b32 v{t}, v{v}")
        A(f"v_permlane16_swap_b32 v{t}, v{v}")
        A(f"v_add_f32 v{v}, v{v}, v{t}")
        if width == 64:
            A(f"v_mov_b32 v{t}, v{v}")
            A(f"v_permlane32_swap_b32 v{t}, v{v}")
            A(f"v_add_f32 v{v}, v{v}, v{t}")
    def layernorm(X, D_, npair, T, width, out, emask=None):
        P = lambda r: f"v[{r}:{r+1}]"
        if emask:
            A(f"v_mov_b32 v{T}, 0"); A(f"v_mov_b32 v{T+2}, 0")
            A(f"s_mov_b64 exec, {emask}")
        A(f"v_pk_add_f32 {P(T+4)}, {P(X)}, {P(X+2)}")
        for i in range(2, npair): A(f"v_pk_add_f32 {P(T+4)}, {P(T+4)}, {P(X+2*i)}")
        A(f"v_add_f32 v{T}, v{T+4}, v{T+5}")
        if emask: A("s_mov_b64 exec, -1")
        reduce_sum(T, T + 1, width)
        A(f"v_mul_f32 v{T}, 0x{f2u(1.0/448):x}, v{T}")
        if emask: A(f"s_mov_b64 exec, {emask}")
        for i in range(npair):
            A(f"v_pk_add_f32 {P(D_+2*i)}, {P(X+2*i)}, {P(T)} op_sel_hi:[1,0] neg_lo:[0,1] neg_hi:[0,1]")
        A(f"v_pk_mul_f32 {P(T+4)}, {P(D_)}, {P(D_)}")
        for i in range(1, npair): A(f"v_pk_fma_f32 {P(T+4)}, {P(D_+2*i)}, {P(D_+2*i)}, {P(T+4)}")
        A(f"v_add_f32 v{T+2}, v{T+4}, v{T+5}")
        if emask: A("s_mov_b64 exec, -1")
        reduce_sum(T + 2, T + 3, width)
        A(f"v_mul_f32 v{T+2}, 0x{f2u(1.0/448):x}, v{T+2}")
        A(f"v_cvt_pk_bf16_f32 v{T+4}, v{T}, v{T+2}")
        A(f"v_lshlrev_b32 v{T}, 16, v{T+4}")
        A(f"v_and_b32 v{T+2}, 0xffff0000, v{T+4}")
        A(f"v_add_f32 v{T+2}, 0x{f2u(1e-5):x}, v{T+2}")
        A(f"v_pk_add_f32 {P(D_)}, {P(X)}, {P(T)} op_sel_hi:[1,0] neg_lo:[0,1] neg_hi:[0,1]")
        A(f"v_cvt_pk_bf16_f32 v{T+2}, v{T+2}, v{T+2}")
        A(f"v_lshlrev_b32 v{T+2}, 16, v{T+2}")
        A(f"v_sqrt_f32 v{T+2}, v{T+2}")
        for i in range(1, npair):
            A(f"v_pk_add_f32 {P(D_+2*i)}, {P(X+2*i)}, {P(T)} op_sel_hi:[1,0] neg_lo:[0,1] neg_hi:[0,1]")
        A(f"v_cvt_pk_bf16_f32 v{T+2}, v{T+2}, v{T+2}")
        A(f"v_lshlrev_b32 v{T+2}, 16, v{T+2}")
        A(f"v_rcp_f32 v{T+2}, v{T+2}")
        for i in range(npair): A(f"v_cvt_pk_bf16_f32 v{D_+2*i+1}, v{D_+2*i}, v{D_+2*i+1}")
        for i in range(npair):
            A(f"v_lshlrev_b32 v{D_+2*i}, 16, v{D_+2*i+1}")
            A(f"v_and_b32 v{D_+2*i+1}, 0xffff0000, v{D_+2*i+1}")
        for i in range(npair): A(f"v_pk_mul_f32 {P(D_+2*i)}, {P(D_+2*i)}, {P(T+2)} op_sel_hi:[1,0]")
        for i in range(npair): A(f"v_cvt_pk_bf16_f32 v{out+i}, v{D_+2*i}, v{D_+2*i+1}")

    A.raw(".p2align 6")
    A("L_help:")
    A("v_lshrrev_b32 v1, 5, v0")
    A("v_mul_u32_u24 v1, 896, v1")
    A("v_and_b32 v2, 31, v0")
    A("v_lshl_add_u32 v1, v2, 2, v1")
    A("s_waitcnt lgkmcnt(0)")
    if dbg: A("v_writelane_b32 v63, s92, 0")
    A("s_load_dwordx2 s[50:51], s[28:29], 0")
    A("s_cmp_eq_u32 s3, 2")
    A("s_cbranch_scc1 L_w2")
    A("s_cmp_eq_u32 s3, 3")
    A("s_cbranch_scc1 L_w3")
    A("s_cmp_lg_u32 s34, 3")
    A("s_cbranch_scc1 L_w1n")
    for i in range(7): A(f"global_load_dword v{8+i}, v1, s[4:5] offset:{128*i}")
    A(f"v_add_u32 v5, {L_XN}, v1")
    A("s_waitcnt vmcnt(0) lgkmcnt(0)")
    tags()
    stamp(1)
    for i in range(7):
        A(f"v_lshlrev_b32 v{16+2*i}, 16, v{8+i}")
        A(f"v_and_b32 v{17+2*i}, 0xffff0000, v{8+i}")
    layernorm(16, 32, 7, 46, 32, 8)
    for i in range(7): A(f"ds_write_b32 v5, v{8+i} offset:{128*i}")
    stamp(2)
    A("s_call_b64 s[62:63], L_qc")
    A("s_branch L_fin")
    pad("cq")
    A("L_qc:")
    tr_addr("v44", "v45", "v46", "v47")
    A("v_and_b32 v46, 1, v60")
    A("v_cmp_eq_u32 vcc, 0, v46")
    A("v_mul_u32_u24 v45, 896, v46")
    A("v_lshl_add_u32 v45, v61, 4, v45")
    A(f"v_add_u32 v45, {L_XN}, v45")
    A("v_lshlrev_b32 v46, 14, v46")
    A("v_lshl_add_u32 v46, v61, 4, v46")
    A("s_lshl_b32 s60, s30, 11")
    A("s_lshl_b32 s61, s35, 8")
    A("s_add_u32 s60, s60, s61")
    A("s_lshl_b32 s61, s3, 6")
    A("s_add_u32 s60, s60, s61")
    A(f"s_add_u32 s60, s60, {WS_QG}")
    A("v_add_u32 v46, s60, v46")
    A("v_mov_b32 v13, s50")
    A("v_mov_b32 v15, s51")
    A("v_cndmask_b32 v13, v15, v13, vcc")
    A("v_mov_b32 v15, v13")
    A("s_waitcnt lgkmcnt(0)")
    A("s_barrier")
    stamp(11 if not prog else 9)
    for t in range(14):
        A(f"ds_read_b128 v[{64+4*t}:{67+4*t}], v45 offset:{64*t}")
        A(f"ds_read_b64_tr_b16 v[{128+4*t}:{129+4*t}], v44 offset:{L_WT + 4096*t}")
        A(f"ds_read_b64_tr_b16 v[{130+4*t}:{131+4*t}], v44 offset:{L_WT + 4096*t + 512}")
        if t >= 4:
            A("s_waitcnt lgkmcnt(12)")
            tt = t - 4
            A(f"v_mfma_f32_16x16x32_bf16 v[8:11], v[{128+4*tt}:{131+4*tt}], v[{64+4*tt}:{67+4*tt}], {'0' if tt == 0 else 'v[8:11]'}")
    for tt in range(10, 14):
        A(f"s_waitcnt lgkmcnt({3*(13-tt)})")
        A(f"v_mfma_f32_16x16x32_bf16 v[8:11], v[{128+4*tt}:{131+4*tt}], v[{64+4*tt}:{67+4*tt}], v[8:11]")
    A("s_mov_b32 exec_lo, 0x00030003")
    A("s_mov_b32 exec_hi, 0x00030003")
    A("v_cvt_pk_bf16_f32 v12, v8, v9")
    A("v_cvt_pk_bf16_f32 v14, v10, v11")
    A(f"global_store_dwordx4 v46, v[12:15], s[28:29] {stf}")
    A("s_mov_b64 exec, -1")
    stamp(8)
    A("s_nop 1")
    A("s_setpc_b64 s[62:63]")
    pad_end("cq")
    A("L_w2:")
    run_chain("ca")
    A("s_waitcnt lgkmcnt(0)")
    tags()
    stamp(1)
    A("s_cmp_lg_u32 s34, 3")
    A("s_cbranch_scc1 L_hnext")
    A("s_call_b64 s[62:63], L_qc")
    A("s_branch L_fin")
    A("L_w3:")
    A("s_waitcnt lgkmcnt(0)")
    tags()
    A("s_cmp_lg_u32 s34, 3")
    A("s_cbranch_scc1 L_w3n")
    A("s_cmp_ge_u32 s35, 2")
    A("s_cbranch_scc1 L_w3q")
    A("s_lshl_b32 s60, s35, 3")
    A("s_add_u32 s60, s60, s30")
    A("s_lshl_b32 s60, s60, 8")
    A(f"s_add_u32 s60, s60, {WS_CT}")
    A("s_mov_b32 s61, 0")
    A("s_atomic_add s61, s[28:29], s60 glc")
    A("s_waitcnt lgkmcnt(0)")
    A("s_sub_u32 s61, 0, s61")
    A("s_atomic_add s61, s[28:29], s60 glc")
    A("L_w3q:")
    run_chain("cq")
    A("s_waitcnt lgkmcnt(0)")
    A("s_call_b64 s[62:63], L_qc")
    A("L_w3n:")
    run_chain("cx")
    stamp(1)
    A("s_branch L_hnext")
    A("L_w1n:")
    A("s_waitcnt lgkmcnt(0)")
    tags()
    A("s_cmp_eq_u32 s34, 0")
    A("s_cbranch_scc1 L_fin")
    run_chain("cb")
    A("v_mov_b32 v5, 0")
    A("v_lshlrev_b32 v7, 2, v0")
    A(f"v_add_u32 v7, {L_ZB}, v7")
    A("s_mov_b32 exec_hi, 0")
    A("ds_write_b32 v7, v5")
    A("s_mov_b64 exec, -1")
    A("s_waitcnt lgkmcnt(0)")
    stamp(1)
    A("L_hnext:")
    A("s_sub_u32 s60, s34, 1")
    A("s_cmp_ge_u32 s60, 2")
    A("s_cbranch_scc1 L_fin")

    A("L_tail:")
    pad("cb")
    tr_addr("v5", "v7", "v6", "v4")
    A("s_lshl_b32 s52, s3, 5")
    A("v_lshlrev_b32 v4, 4, v61")
    A(f"v_add_u32 v4, {L_OB}, v4")
    A(f"s_mov_b32 s55, {SPIN}")
    A(f"s_mov_b32 s57, 0x{CEXP:x}")
    A("s_movk_i32 s58, 0xff")
    A("v_mov_b32 v59, s59")
    A("s_cmp_eq_u32 s34, 2")
    A("s_cbranch_scc1 L_F")
    def masks(n, regs_of, full):
        for t in range(n):
            rs = regs_of(t)
            A(f"v_xor_b32 v24{t % 8}, v{rs[0]}, v59" if False else f"v_xor_b32 v{240+t}, v{rs[0]}, v59")
            for r in rs[1:]: A(f"v_bitop3_b32 v{240+t}, v{r}, v{240+t}, v59 bitop3:0xde")
        for t in range(n): A(f"v_and_b32 v{240+t}, s58, v{240+t}")
        for t in range(n): A(f"v_cmp_ne_u32 s[{64+2*t}:{65+2*t}], 0, v{240+t}")
        for t in range(n):
            A(f"s_cmp_lg_u64 s[{64+2*t}:{65+2*t}], 0")
            A(f"s_cselect_b64 s[{64+2*t}:{65+2*t}], {full}, 0")
    A("s_lshl_b32 s60, s33, 15")
    A("s_lshl_b32 s61, s3, 13")
    A("s_add_u32 s60, s60, s61")
    A(f"s_add_u32 s60, s60, {WS_REC + 4096}")
    A("v_lshl_add_u32 v1, v0, 4, s60")
    A("s_lshl_b32 s60, s33, 9")
    A("s_lshr_b32 s61, s3, 1")
    A("s_lshl_b32 s61, s61, 8")
    A("s_add_u32 s60, s60, s61")
    A(f"s_add_u32 s60, s60, {WS_ML}")
    A("v_lshrrev_b32 v3, 5, v0")
    A("v_xor_b32 v2, v60, v3")
    A("v_lshl_add_u32 v2, v2, 4, s60")
    A("v_and_b32 v10, 31, v0")
    A("v_lshlrev_b32 v10, 3, v10")
    A("v_lshl_add_u32 v10, v3, 2, v10")
    A("s_lshl_b32 s60, s3, 8")
    A(f"s_add_u32 s60, s60, {L_OB}")
    A("v_add_u32 v56, s60, v10")
    A("s_mul_i32 s60, s33, 1792")
    A("s_lshl_b32 s61, s35, 8")
    A("s_add_u32 s60, s60, s61")
    A("s_lshl_b32 s61, s3, 6")
    A("s_add_u32 s60, s60, s61")
    A(f"s_add_u32 s60, s60, {WS_H}")
    A("v_lshl_add_u32 v57, v61, 4, s60")
    A("s_barrier")
    stamp(6)
    A(f"global_load_dwordx3 v[8:10], v2, s[28:29] {ldf}")
    for t in range(8):
        A(f"global_load_dwordx4 v[{16+4*t}:{19+4*t}], v1, s[28:29] offset:{1024*t - 4096} {ldf}")
    for t in range(16):
        A(f"ds_read_b64_tr_b16 v[{128+4*t}:{129+4*t}], v5 offset:{L_WT + 4096*t}")
        A(f"ds_read_b64_tr_b16 v[{130+4*t}:{131+4*t}], v5 offset:{L_WT + 4096*t + 512}")
    A("s_branch L_wchk")
    pad("cb")
    A("L_wpoll:")
    A(f"global_load_dwordx3 v[8:10], v2, s[28:29] {ldf}")
    masks(8, lambda t: [16 + 4 * t], "-1")
    for t in range(8):
        A(f"s_mov_b64 exec, s[{64+2*t}:{65+2*t}]")
        A(f"global_load_dwordx4 v[{16+4*t}:{19+4*t}], v1, s[28:29] offset:{1024*t - 4096} {ldf}")
    A("s_mov_b64 exec, -1")
    A("s_sub_u32 s55, s55, 1")
    A("s_cbranch_scc1 L_wgot")
    A("L_wchk:")
    A("s_waitcnt vmcnt(0)")
    A("v_xor_b32 v11, v16, v59")
    for t in range(1, 8): A(f"v_bitop3_b32 v11, v{16+4*t}, v11, v59 bitop3:0xde")
    A("v_and_b32 v11, s58, v11")
    A("v_bitop3_b32 v11, v10, v11, v59 bitop3:0xde")
    A("v_cmp_ne_u32 vcc, 0, v11")
    A("s_cbranch_vccnz L_wpoll")
    A("L_wgot:")
    stamp(7)
    if dbg: A("v_writelane_b32 v63, s55, 12")
    A("v_max_f32_dpp v10, v8, v8 row_ror:8 row_mask:0xf bank_mask:0xf")
    for sh in (4, 2, 1): A(f"v_max_f32_dpp v10, v10, v10 row_ror:{sh} row_mask:0xf bank_mask:0xf")
    A("v_sub_f32 v10, v8, v10")
    A("v_mul_f32 v10, s57, v10")
    A("v_exp_f32 v10, v10")
    A("v_mul_f32 v11, v10, v9")
    seq = []
    for t in range(8):
        for k in range(4):
            op = "v_mul_f32_dpp" if t == 0 else "v_fmac_f32_dpp"
            seq.append(f"{op} v{12+k}, v10, v{16+4*t+k} row_newbcast:{2*t} row_mask:0xf bank_mask:0xf")
    red = [f"v_add_f32_dpp v11, v11, v11 row_ror:{sh} row_mask:0xf bank_mask:0xf" for sh in (8, 4, 2, 1)] + ["v_rcp_f32 v11, v11"]
    for i, s_ in enumerate(seq):
        A(s_)
        if i % 4 == 3 and red: A(red.pop(0))
    A("v_permlane32_swap_b32 v12, v14")
    A("v_permlane32_swap_b32 v13, v15")
    A("v_add_f32 v12, v12, v14")
    A("v_add_f32 v13, v13, v15")
    A("v_mul_f32 v12, v12, v11")
    A("v_mul_f32 v13, v13, v11")
    A("v_cvt_pk_bf16_f32 v12, v12, v13")
    A("ds_write_b32 v56, v12")
    A("s_waitcnt lgkmcnt(0)")
    A("s_barrier")
    for t in range(16): A(f"ds_read_b128 v[{64+4*t}:{67+4*t}], v4 offset:{64*t}")
    pad("cb")
    for t in range(16):
        A(f"s_waitcnt lgkmcnt({15-t})")
        A(f"v_mfma_f32_16x16x32_bf16 v[8:11], v[{128+4*t}:{131+4*t}], v[{64+4*t}:{67+4*t}], {'0' if t == 0 else 'v[8:11]'}")
    A("s_mov_b32 exec_lo, 0x00010001")
    A("s_mov_b32 exec_hi, 0x00010001")
    A("v_bfi_b32 v8, s58, v59, v8")
    A(f"global_store_dwordx4 v57, v[8:11], s[28:29] {stf}")
    A("s_mov_b64 exec, -1")
    stamp(8)
    A("s_branch L_fin")

    A("L_F:")
    pad("cb")
    A("s_lshl_b32 s60, s35, 7")
    A("s_add_u32 s60, s60, s52")
    A("v_lshl_add_u32 v1, v61, 3, s60")
    A("global_load_dwordx2 v[48:49], v1, s[18:19] nt")
    A("s_mul_i32 s60, s31, 896")
    A("v_lshl_add_u32 v1, v0, 3, s60")
    A("s_lshl_b32 s60, s35, 5")
    A("v_lshl_add_u32 v2, v60, 1, s60")
    A("s_mov_b32 s80, -1")
    A("s_mov_b32 s81, 0x00ffffff")
    A("s_cmp_lg_u32 s3, 1")
    A("s_cbranch_scc1 L_Ffr")
    A("global_load_ushort v62, v2, s[22:23] nt")
    A("s_mov_b64 exec, s[80:81]")
    A("global_load_dwordx2 v[52:53], v1, s[4:5] nt")
    A("global_load_dwordx2 v[54:55], v1, s[4:5] offset:448 nt")
    A("s_mov_b64 exec, -1")
    A("L_Ffr:")
    A("s_mul_i32 s60, s31, 14336")
    A(f"s_add_u32 s60, s60, {WS_H + 3584}")
    A("v_lshl_add_u32 v1, v0, 4, s60")
    A("v_add_u32 v2, 7168, v1")
    A("v_mul_u32_u24 v3, 896, v7")
    A("v_add_u32 v3, v3, v6")
    A("s_mul_i32 s60, s3, 224")
    A(f"s_add_u32 s60, s60, {L_WT2}")
    A("v_add_u32 v3, s60, v3")
    A("v_lshlrev_b32 v8, 4, v61")
    A(f"v_add_u32 v8, {L_UB}, v8")
    A(f"v_mov_b32 v9, {L_ZB}")
    for nb in range(7):
        A(f"v_cmp_eq_u32 vcc, {nb}, v60")
        A(f"v_cndmask_b32 v{184+nb}, v9, v8, vcc")
    A("v_lshl_add_u32 v57, v61, 3, s52")
    A(f"v_add_u32 v57, {L_UB}, v57")
    A("s_mul_i32 s60, s31, 28")
    A("s_add_u32 s60, s60, s35")
    A("s_mul_i32 s60, s60, 1792")
    A("s_mul_i32 s61, s3, 448")
    A("s_add_u32 s60, s60, s61")
    A(f"s_add_u32 s60, s60, {WS_P}")
    A("v_lshlrev_b32 v56, 6, v60")
    A("v_lshl_add_u32 v56, v61, 4, v56")
    A("v_add_u32 v56, s60, v56")
    A("s_mul_i32 s60, s31, 50176")
    A("s_lshl_b32 s61, s35, 6")
    A("s_add_u32 s60, s60, s61")
    A(f"s_add_u32 s60, s60, {WS_P + 3584}")
    A("v_mul_u32_u24 v40, 12544, v61")
    A("v_lshl_add_u32 v40, v60, 2, v40")
    A("v_add_u32 v40, s60, v40")
    A("v_add_u32 v41, 7168, v40")
    A("s_lshl_b32 s60, s35, 5")
    A("v_lshl_add_u32 v42, v60, 1, s60")
    A(f"v_add_u32 v43, {L_HB}, v42")
    A("s_mul_i32 s60, s31, 896")
    A("v_add_u32 v42, s60, v42")
    A("v_and_b32 v44, 3, v60")
    A("v_cmp_eq_u32 vcc, 0, v44")
    A("v_mov_b32 v45, s58")
    A("v_cndmask_b32 v44, 0, v45, vcc")
    A("s_lshl_b32 s60, s31, 2")
    A("v_mov_b32 v45, s60")
    A("s_barrier")
    stamp(6)
    pad("cb")
    def hloads(masked):
        for t in range(8):
            if masked: A(f"s_mov_b64 exec, s[{64+2*t}:{65+2*t}]")
            base = "v1" if t < 4 else "v2"
            off = 1792 * (t & 3) - 3584
            A(f"global_load_dwordx4 v[{64+8*t}:{67+8*t}], {base}, s[28:29] offset:{off} {ldf}")
            A(f"global_load_dwordx4 v[{68+8*t}:{71+8*t}], {base}, s[28:29] offset:{off + 896} {ldf}")
    for t in range(14):
        A(f"ds_read_b64_tr_b16 v[{128+4*t}:{129+4*t}], v5 offset:{L_WT + 4096*t}")
        A(f"ds_read_b64_tr_b16 v[{130+4*t}:{131+4*t}], v5 offset:{L_WT + 4096*t + 512}")
    for nb in range(7):
        for t in range(2):
            r = 8 * nb + 4 * t
            A(f"ds_read_b64_tr_b16 a[{192+r}:{193+r}], v3 offset:{28672*t + 32*nb}")
            A(f"ds_read_b64_tr_b16 a[{194+r}:{195+r}], v3 offset:{28672*t + 32*nb + 3584}")
    A("s_waitcnt vmcnt(0)")
    A("v_lshlrev_b32 v46, 16, v48")
    A("v_and_b32 v47, 0xffff0000, v48")
    A("v_lshlrev_b32 v48, 16, v49")
    A("v_and_b32 v49, 0xffff0000, v49")
    A("s_cmp_lg_u32 s3, 1")
    A("s_cbranch_scc1 L_Fb1")
    for i in range(4):
        A(f"v_lshlrev_b32 v{8+2*i}, 16, v{52+i}")
        A(f"v_and_b32 v{9+2*i}, 0xffff0000, v{52+i}")
    A("v_lshlrev_b32 v62, 16, v62")
    A("v_lshlrev_b32 v52, 3, v0")
    A(f"v_add_u32 v52, {L_OB}, v52")
    A("s_mov_b64 exec, s[80:81]")
    hloads(False)
    A("s_branch L_hchk")
    pad("cb")
    A("L_hpoll:")
    masks(8, lambda t: [64 + 8 * t, 68 + 8 * t], "s[80:81]")
    hloads(True)
    A("s_mov_b64 exec, s[80:81]")
    A("s_sub_u32 s55, s55, 1")
    A("s_cbranch_scc1 L_hgot")
    A("L_hchk:")
    A("s_waitcnt vmcnt(0)")
    A("v_xor_b32 v16, v64, v59")
    A("v_xor_b32 v17, v68, v59")
    for t in range(1, 8):
        A(f"v_bitop3_b32 v16, v{64+8*t}, v16, v59 bitop3:0xde")
        A(f"v_bitop3_b32 v17, v{68+8*t}, v17, v59 bitop3:0xde")
    A("v_or_b32 v16, v16, v17")
    A("v_and_b32 v16, s58, v16")
    A("v_cmp_ne_u32 vcc, 0, v16")
    A("s_cbranch_vccnz L_hpoll")
    A("L_hgot:")
    A("s_mov_b64 exec, -1")
    stamp(7)
    if dbg: A("v_writelane_b32 v63, s55, 12")
    pad("cb")
    for (a, b_) in ((0, 1), (2, 3), (4, 5), (6, 7), (0, 2), (4, 6), (0, 4)):
        for i in range(4):
            A(f"v_pk_add_f32 v[{64+8*a+2*i}:{65+8*a+2*i}], v[{64+8*a+2*i}:{65+8*a+2*i}], v[{64+8*b_+2*i}:{65+8*b_+2*i}]")
    for i in range(4): A(f"v_cvt_pk_bf16_f32 v{65+2*i}, v{64+2*i}, v{65+2*i}")
    for i in range(4):
        A(f"v_lshlrev_b32 v{64+2*i}, 16, v{65+2*i}")
        A(f"v_and_b32 v{65+2*i}, 0xffff0000, v{65+2*i}")
    for i in range(4): A(f"v_pk_add_f32 v[{8+2*i}:{9+2*i}], v[{8+2*i}:{9+2*i}], v[{64+2*i}:{65+2*i}]")
    for i in range(4): A(f"v_cvt_pk_bf16_f32 v{16+i}, v{8+2*i}, v{9+2*i}")
    for i in range(4):
        A(f"v_lshlrev_b32 v{8+2*i}, 16, v{16+i}")
        A(f"v_and_b32 v{9+2*i}, 0xffff0000, v{16+i}")
    layernorm(8, 24, 4, 32, 64, 20, emask="s[80:81]")
    A("s_mov_b64 exec, s[80:81]")
    A("ds_write_b64 v52, v[20:21]")
    A("ds_write_b64 v52, v[22:23] offset:448")
    A(f"ds_write_b64 v52, v[16:17] offset:{L_HB - L_OB}")
    A(f"ds_write_b64 v52, v[18:19] offset:{L_HB - L_OB + 448}")
    A("s_mov_b64 exec, -1")
    A("L_Fb1:")
    pad("cb")
    A("s_waitcnt lgkmcnt(0)")
    A("s_barrier")
    for t in range(14): A(f"ds_read_b128 v[{64+4*t}:{67+4*t}], v4 offset:{64*t}")
    for t in range(14):
        A(f"s_waitcnt lgkmcnt({13-t})")
        A(f"v_mfma_f32_16x16x32_bf16 v[8:11], v[{128+4*t}:{131+4*t}], v[{64+4*t}:{67+4*t}], {'0' if t == 0 else 'v[8:11]'}")
    A("v_cvt_pk_bf16_f32 v12, v8, v9")
    A("v_cvt_pk_bf16_f32 v13, v10, v11")
    A("v_lshlrev_b32 v8, 16, v12")
    A("v_and_b32 v9, 0xffff0000, v12")
    A("v_lshlrev_b32 v10, 16, v13")
    A("v_and_b32 v11, 0xffff0000, v13")
    A("v_pk_add_f32 v[8:9], v[8:9], v[46:47]")
    A("v_pk_add_f32 v[10:11], v[10:11], v[48:49]")
    A("v_cvt_pk_bf16_f32 v12, v8, v9")
    A("v_cvt_pk_bf16_f32 v13, v10, v11")
    A("v_lshlrev_b32 v8, 16, v12")
    A("v_and_b32 v9, 0xffff0000, v12")
    A("v_lshlrev_b32 v10, 16, v13")
    A("v_and_b32 v11, 0xffff0000, v13")
    for k in range(4): A(f"v_max_f32 v{8+k}, 0, v{8+k}")
    A("v_pk_mul_f32 v[8:9], v[8:9], v[8:9]")
    A("v_pk_mul_f32 v[10:11], v[10:11], v[10:11]")
    A("s_mov_b32 exec_lo, 0x00010001")
    A("s_mov_b32 exec_hi, 0x00010001")
    A("v_cvt_pk_bf16_f32 v12, v8, v9")
    A("v_cvt_pk_bf16_f32 v13, v10, v11")
    A("ds_write_b64 v57, v[12:13]")
    A("s_mov_b64 exec, -1")
    A("s_waitcnt lgkmcnt(0)")
    A("s_barrier")
    for nb in range(7):
        for t in range(2):
            i = 2 * nb + t
            A(f"ds_read_b128 v[{64+4*i}:{67+4*i}], v{184+nb} offset:{64*t}")
    A("ds_read_u16 v43, v43")
    pad("cb")
    for i in range(14):
        A(f"s_waitcnt lgkmcnt({14-i})")
        A(f"v_mfma_f32_16x16x32_bf16 v[8:11], a[{192+4*i}:{195+4*i}], v[{64+4*i}:{67+4*i}], {'0' if i == 0 else 'v[8:11]'}")
    A("s_mov_b32 exec_lo, 0x007f007f")
    A("s_mov_b32 exec_hi, 0x007f007f")
    A("v_bfi_b32 v8, s58, v59, v8")
    A(f"global_store_dwordx4 v56, v[8:11], s[28:29] {stf}")
    A("s_mov_b64 exec, -1")
    stamp(8)
    A("s_cmp_lg_u32 s3, 1")
    A("s_cbranch_scc1 L_fin")
    A(f"s_mov_b32 s55, {SPIN}")
    A("L_ppoll:")
    for k in range(7):
        base = "v40" if k < 4 else "v41"
        A(f"global_load_dword v{16+k}, {base}, s[28:29] offset:{1792*(k&3) - 3584} {ldf}")
    A("s_sub_u32 s55, s55, 1")
    A("s_cbranch_scc1 L_pgot")
    A("s_waitcnt vmcnt(0)")
    A("v_xor_b32 v24, v16, v59")
    for k in range(1, 7): A(f"v_bitop3_b32 v24, v{16+k}, v24, v59 bitop3:0xde")
    A("v_and_b32 v24, v24, v44")
    A("v_cmp_ne_u32 vcc, 0, v24")
    A("s_cbranch_vccnz L_ppoll")
    A("L_pgot:")
    A("s_waitcnt lgkmcnt(0)")
    stamp(9)
    if dbg: A("v_writelane_b32 v63, s55, 14")
    A("v_add_f32 v16, v16, v17")
    A("v_add_f32 v18, v18, v19")
    A("v_add_f32 v20, v20, v21")
    A("v_add_f32 v16, v16, v18")
    A("v_add_f32 v20, v20, v22")
    A("v_add_f32 v16, v16, v20")
    A("v_lshlrev_b32 v43, 16, v43")
    A("v_mov_b32 v17, v16")
    A("v_permlane16_swap_b32 v17, v16")
    A("v_add_f32 v16, v16, v17")
    A("v_mov_b32 v17, v16")
    A("v_permlane32_swap_b32 v17, v16")
    A("v_add_f32 v16, v16, v17")
    A("v_cvt_pk_bf16_f32 v16, v16, v16")
    A("v_lshlrev_b32 v16, 16, v16")
    A("v_add_f32 v16, v16, v62")
    A("v_cvt_pk_bf16_f32 v16, v16, v16")
    A("v_lshlrev_b32 v16, 16, v16")
    A("v_add_f32 v16, v16, v43")
    A("v_cvt_pk_bf16_f32 v16, v16, v16")
    A("s_mov_b64 exec, 0xffff")
    A(f"global_store_short v42, v16, s[24:25] {stf}")
    A("s_mov_b64 exec, -1")
    A("s_cmp_lg_u32 s35, 0")
    A("s_cbranch_scc1 L_fin")
    A("s_mov_b64 exec, 1")
    A(f"global_store_dword v45, v59, s[28:29] {stf}")
    A("s_mov_b64 exec, -1")
    pad_end("cb")
    A("L_fin:")
    if dbg:
        A("s_waitcnt vmcnt(0)")
        stamp(10)
        A("s_barrier")
        A("s_lshl_b32 s60, s2, 2")
        A("s_add_u32 s60, s60, s3")
        A("s_lshl_b32 s60, s60, 6")
        A(f"s_add_u32 s60, s60, {WS_TS}")
        A("v_lshl_add_u32 v1, v0, 2, s60")
        A("s_mov_b64 exec, 0xffff")
        A("global_store_dword v1, v63, s[28:29]")
    A("L_end:")
    A("s_endpgm")
    A.raw(".p2align 7")
    A.raw(".type L_tab,@object")
    A.raw("L_tab:")
    if counts is None: counts = [[128] * 5, [128] * 5]
    for (cW, cF, c10, c11, cQ) in counts:
        cs = [cW] * 7 + [cF] * 3 + [c10, c11] + [cQ] * 4
        assert sum(cs) == 2048, sum(cs)
        cs = [c_ - P for c_ in cs]
        st = 0
        for c_ in cs:
            A.raw(f".long {st | (c_ << 16)}"); st += c_
    A.raw(".size L_tab, 128")
    A.raw('.section .rodata,"a"')
    A.raw(".p2align 6")
    A.raw(f".amdhsa_kernel {NAME}_kernel")
    A.raw("  .amdhsa_next_free_vgpr 512")
    A.raw("  .amdhsa_next_free_sgpr 96")
    A.raw("  .amdhsa_accum_offset 256")
    A.raw("  .amdhsa_group_segment_fixed_size 0")
    A.raw("  .amdhsa_kernarg_size 104")
    A.raw("  .amdhsa_user_sgpr_count 2")
    A.raw("  .amdhsa_user_sgpr_kernarg_segment_ptr 1")
    A.raw("  .amdhsa_system_sgpr_workgroup_id_x 1")
    A.raw("  .amdhsa_float_denorm_mode_32 3")
    A.raw(".end_amdhsa_kernel")
    bad = A.check_edges(returns=[("L_rare_ret", f"L_back_{nm}") for nm in sites])
    for b in bad: print("EDGE HAZARD", b, file=sys.stderr)
    return A.text()

if __name__ == "__main__":
    import json
    kw = json.loads(sys.argv[2]) if len(sys.argv) > 2 else {}
    open(sys.argv[1], "w").write(gen(**kw))
```

```python
import sys, struct
from asmlib import Asm
NAME = "sequential_preLN__gqa_block_cached__dense_activation_squared_relu__decode"

def f2u(x): return struct.unpack("<I", struct.pack("<f", x))[0]

WS_EP = 0x0
WS_QG = 0x1000
WS_REC = 0x10000
WS_ML = 0x90000
WS_H = 0xA0000
WS_P = 0xB0000
WS_CT = 0xD0000
WS_TS = 0x100000
L_WT = 0
L_WT2 = 57344
L_SM = 158464
L_XN = L_SM
L_QB = L_SM + 2048
L_OB = 147456
L_HB = L_SM + 4096
L_FL = L_SM + 3072
L_UB = L_SM + 5120
L_ZB = L_SM + 5248
L_END = L_SM + 5376

SPIN = 1 << 19
CEXP = f2u(0.0625 * 1.4426950408889634)

def layout(lay="floc", costs=(0, 2.7, 5.2, 3.1), P=4, fx=(0, 4), rotm=0, shuf=9, **_):
    W = []
    for wg in range(256):
        x, j = wg & 7, wg >> 3
        r = dict(role=0, rb=0, rh=0, idx=0, rot=j)
        if lay == "old":
            sp = j >> 1
            r.update(rb=j & 1, rh=x)
            if sp < 7: r.update(role=1, idx=sp)
            elif (sp - 7) * 8 + x < 28: r.update(role=2, idx=(sp - 7) * 8 + x)
            elif sp >= 12: r.update(role=3, idx=j - 24)
        else:
            rest = [k for k in range(8) if k not in fx]
            two, one = [rest[0], rest[3]], [rest[1], rest[2], rest[4], rest[5]]
            if x in fx:
                if j < 28: r.update(role=2, rb=fx.index(x), idx=j)
            elif x in two:
                if j < 28: r.update(role=1, rh=2 * two.index(x) + j // 14, rb=(j % 14) & 1, idx=(j % 14) >> 1)
            else:
                xi = one.index(x)
                if j < 14: r.update(role=1, rh=4 + xi, rb=j & 1, idx=j >> 1)
                elif j < 30: r.update(role=3, rh=(16 * xi + j - 14) >> 3, idx=(j - 14) & 7)
        W.append(r)
    load = [0.0] * 16; mem = [[] for _ in range(16)]
    for x in range(8):
        ws = sorted((wg for wg in range(256) if wg & 7 == x), key=lambda wg: -costs[W[wg]["role"]])
        cnt = [0] * 16
        for wg in ws:
            g = min((g for g in range(16) if cnt[g] < 2), key=lambda g: (load[g], (g - 2 * x) % 16))
            cnt[g] += 1; load[g] += costs[W[wg]["role"]]; mem[g].append(wg)
    if shuf == 9:
        load = [0.0] * 16; mem = [[] for _ in range(16)]
        for wg in range(256):
            g = ((wg >> 3) & 1) * 8 + (((wg & 7) + (wg >> 4)) & 7)
            mem[g].append(wg); load[g] += costs[W[wg]["role"]]
    for g in range(16):
        if shuf == 1: mem[g] = mem[g][g:] + mem[g][:g]
        if shuf == 2:
            m = mem[g][0::2] + mem[g][1::2]
            mem[g] = m[g // 2:] + m[:g // 2]
        tot = 2048 - 16 * P
        base = (tot + load[g]) / 16
        want = [base - costs[W[wg]["role"]] for wg in mem[g]]
        n = [int(w) for w in want]
        for k in sorted(range(16), key=lambda k: n[k] - want[k])[: tot - sum(n)]: n[k] += 1
        st = 0
        for k, wg in enumerate(mem[g]):
            W[wg].update(pr=g, sp=k, first=st, n=n[k])
            if rotm == 1: W[wg]["rot"] = ((wg >> 3) - st) % 32
            if rotm == 2: W[wg]["rot"] = (2 * (wg >> 3) + (wg & 1) - st) % 64
            if rotm == 3: W[wg]["rot"] = ((wg >> 3) + 4 * (wg & 7) - st) % 32
            st += n[k]
        assert st == tot
    return W

def gen(dbg=False, kflags="nt", vflags="nt", wflags="nt", PD=24, DD=28, vperm=True, warm=True,
        lay='floc', costs=(0, 2.7, 5.2, 3.1), fx=(0, 4), stops=(0, 0, 0, 0), fast=True, fflags=None, rotm=0, shuf=9, ostf='sc1', rows=(9, 10, 11, 16), rot=True, round_scores=True, NLs=(4, 0, 0, 0), prog=False, D=48, skip="",
        pollpos=64, dmau=8, P=4, prot=4, early=False, touch=True, slp=0, d2=1, d3=2, cyc=False, stf="sc1", ldf="sc1"):
    A = Asm()
    nextra = 3
    def stamp(k):
        if dbg and not (cyc and k in (7, 8, 9)):
            A("s_memrealtime s[92:93]")
            A("s_waitcnt lgkmcnt(0)")
            A(f"v_writelane_b32 v63, s92, {k}")
    cycregs = [64, 66, 68, 70, 72, 74, 76, 78, 84, 86, 88, 90]
    def cy(k):
        if cyc: A(f"s_memtime s[{cycregs[k]}:{cycregs[k]+1}]")
    pads = []
    def pad(chain):
        if not warm: return
        n = sum(1 for p in pads if p == chain)
        pads.append(chain)
        A(f"L_{chain}{n}:")
        A(f"s_cbranch_execz L_{chain}{n-1}" if n else f"s_cbranch_execz L_{chain}_ret")
    def pad_end(chain):
        if warm: A(f"L_{chain}_end:")
    def gap():
        if warm:
            A.raw(".p2align 6")
            A.raw(".fill 272, 4, 0xbf810000")
    def run_chain(chain):
        if not warm: return
        A("s_mov_b64 exec, 0")
        A(f"s_branch L_{chain}_top")
        A(f"L_{chain}_ret:")
        A("s_mov_b64 exec, -1")
    def fin():
        A("s_branch L_fin" if dbg else "s_endpgm")
    def tr_addr(v, row, c8, t):
        A(f"v_lshrrev_b32 {row}, 2, v60")
        A(f"v_lshl_add_u32 {row}, v61, 3, {row}")
        A(f"v_and_b32 {c8}, 3, v60")
        A(f"v_lshlrev_b32 {c8}, 3, {c8}")
        A(f"v_bfe_u32 {t}, v0, 3, 2")
        A(f"v_xor_b32 {t}, s3, {t}")
        A(f"v_lshl_add_u32 {v}, {row}, 7, {c8}")
        A(f"v_lshl_add_u32 {v}, {t}, 5, {v}")
    def tags():
        A("s_mul_i32 s50, s50, 0x9e3779b1")
        A("s_mul_i32 s51, s51, 0x9e3779b1")
        A("s_add_u32 s50, s50, 0x7f4a7c15")
        A("s_add_u32 s51, s51, 0x7f4a7c15")
        A("s_cmp_eq_u32 s31, 0")
        A("s_cselect_b32 s59, s50, s51")
        A("s_cmp_lt_u32 s76, 8")
        A("s_cselect_b32 s49, s50, s51")
    def sel4(dst, vals):
        A(f"s_mov_b32 {dst}, {vals[0]}")
        for r in (1, 2, 3):
            if vals[r] != vals[0]:
                A(f"s_cmp_eq_u32 s34, {r}")
                A(f"s_cselect_b32 {dst}, {vals[r]}, {dst}")

    A.raw(f"; @launch grid=(256,1,1) block=(256,1,1) lds={L_END}")
    A.raw('.amdgcn_target "amdgcn-amd-amdhsa--gfx950"')
    A.raw(".text")
    A.raw(f".globl {NAME}_kernel")
    A.raw(".p2align 8")
    A.raw(f".type {NAME}_kernel,@function")
    A.raw(f"{NAME}_kernel:")
    A("s_cmp_ge_u32 s2, 256")
    A("s_cbranch_scc1 L_end")
    A("s_load_dwordx16 s[4:19], s[0:1], 0")
    A("s_load_dwordx8 s[20:27], s[0:1], 64")
    A("s_load_dwordx2 s[28:29], s[0:1], 96")
    if dbg:
        A("v_mov_b32 v63, 0")
        A("s_memrealtime s[92:93]")
    A("s_getpc_b64 s[72:73]")
    A("L_pc0:")
    A("s_add_u32 s72, s72, L_tab-L_pc0")
    A("s_addc_u32 s73, s73, 0")
    A("s_lshl_b32 s60, s2, 4")
    A("s_load_dwordx4 s[84:87], s[72:73], s60")
    A("v_lshrrev_b32 v1, 6, v0")
    A("v_and_b32 v0, 63, v0")
    A("v_readfirstlane_b32 s3, v1")
    A("v_and_b32 v60, 15, v0")
    A("v_lshrrev_b32 v61, 4, v0")
    def decode():
        A("s_bfe_u32 s30, s84, 0x30003")
        A("s_bfe_u32 s31, s84, 0x10002")
        A("s_lshl_b32 s33, s31, 3")
        A("s_or_b32 s33, s33, s30")
        A("s_bfe_u32 s35, s84, 0x50006")
        A("s_bfe_u32 s76, s84, 0x4000b")
        A("s_and_b32 s75, s76, 7")
        A("s_bfe_u32 s32, s84, 0x4000f")
    A("s_cmp_lg_u32 s3, 0")
    A("s_cbranch_scc1 L_help")

    A("s_mov_b32 s47, 0x20000")
    A("v_lshrrev_b32 v8, 3, v0")
    A("v_and_b32 v9, 7, v0")
    A("v_lshlrev_b32 v9, 4, v9")
    A("v_and_b32 v10, 16, v0")
    A("v_lshlrev_b32 v10, 1, v10")
    A("v_xor_b32 v9, v9, v10")
    A("s_mov_b32 s67, 64")
    A(f"s_mov_b32 m0, {L_WT}")
    smask = sum(1 << b for b in range(9, 24) if b not in rows)
    A("v_lshlrev_b32 v1, 4, v61")
    A("v_lshlrev_b32 v2, 4, v60")
    for k in range(4):
        A(f"v_bfe_u32 v3, v60, {(k + 2) & 3}, 1")
        A(f"v_lshl_add_u32 v1, v3, {rows[k]}, v1")
    for k in range(2):
        A(f"v_bfe_u32 v3, v61, {k}, 1")
        A(f"v_lshl_add_u32 v2, v3, {rows[k]}, v2")
    vld = []; vregs = {0: "v2"}; spare = ["v3", "v56", "v57"]
    for r in range(4):
        o = (r & 1) << rows[2] | (r >> 1) << rows[3]
        hi = o & ~0xfff
        if hi not in vregs:
            vregs[hi] = spare.pop(0)
            A(f"v_add_u32 {vregs[hi]}, {hi}, v2")
        for dh in range(2): vld.append((vregs[hi], (o & 0xfff) + dh * 256))
    def pdep(reg, tmp):
        segs = []; src = 0; b = 9
        while b < 24:
            if smask >> b & 1:
                e = b
                while e < 24 and smask >> e & 1: e += 1
                segs.append((src, e - b, b)); src += e - b; b = e
            else: b += 1
        for n_ in range(len(segs) - 1, 0, -1):
            sb, _, db = segs[n_]; gapw = db - (segs[n_-1][2] + segs[n_-1][1])
            A(f"s_lshr_b32 {tmp}, {reg}, {sb}")
            A(f"s_mul_i32 {tmp}, {tmp}, {((1 << gapw) - 1) << sb}")
            A(f"s_add_u32 {reg}, {reg}, {tmp}")
        A(f"s_lshl_b32 {reg}, {reg}, {segs[0][2]}")
    A("s_mov_b32 s38, 0x1000000")
    A("s_mov_b32 s39, 0x20000")
    A("s_mov_b32 s42, 0x1000000")
    A("s_mov_b32 s43, 0x20000")
    A("s_mov_b32 s46, 3670016")
    A("s_waitcnt lgkmcnt(0)")
    if dbg: A("v_writelane_b32 v63, s92, 0")
    A("s_load_dwordx2 s[50:51], s[28:29], 0")
    A("s_and_b32 s34, s84, 3")
    A("s_cbranch_scc0 L_nodma")
    A("s_and_b32 s64, s87, 0xffff")
    A("v_mad_u32_u24 v8, v8, s64, v9")
    A("s_lshl_b32 s64, s64, 3")
    A("s_lshr_b32 s66, s87, 16")
    A("s_mov_b32 s65, s86")
    A("s_cmp_eq_u32 s34, 2")
    A("s_cselect_b64 s[44:45], s[16:17], s[12:13]")
    A("s_cselect_b32 s46, 1605632, s46")
    A("s_cmp_eq_u32 s34, 3")
    A("s_cselect_b64 s[44:45], s[10:11], s[44:45]")
    A("s_and_b32 s45, s45, 0xffff")
    if "d" in skip:
        A("s_cmp_lg_u32 s34, 3")
        A("s_cbranch_scc1 L_nodma")
    A("L_dma:")
    if dmau == 1:
        A(f"s_waitcnt vmcnt({DD-1})")
        A(f"buffer_load_dwordx4 v8, s[44:47], s65 offen {wflags} lds")
        A("v_xor_b32 v8, s67, v8")
        A("s_add_u32 m0, m0, 1024")
        A("s_add_u32 s65, s65, s64")
        A("s_sub_u32 s66, s66, 1")
        A("s_cmp_lg_u32 s66, 0")
        A("s_cbranch_scc1 L_dma")
    else:
        A("v_xor_b32 v9, s67, v8")
        A("s_sub_u32 s74, s64, 1024")
        def dmaloop(lab, fl):
            A(f"{lab}:")
            for h in range(2):
                A(f"s_waitcnt vmcnt({DD-4})")
                for k in range(4):
                    A(f"buffer_load_dwordx4 {'v9' if k & 1 else 'v8'}, s[44:47], s65 offen offset:{1024*k} {fl} lds")
                    A("s_add_u32 s65, s65, s74")
                A("s_add_u32 m0, m0, 4096")
                A("s_add_u32 s65, s65, 4096")
            A("s_sub_u32 s66, s66, 8")
            A("s_cmp_lg_u32 s66, 0")
            A(f"s_cbranch_scc1 {lab}")
        if fflags is not None and fflags != wflags:
            A("s_cmp_eq_u32 s34, 2")
            A("s_cbranch_scc1 L_dma2")
            dmaloop("L_dma1", wflags)
            A("s_branch L_nodma")
            dmaloop("L_dma2", fflags)
        else:
            dmaloop("L_dma1", wflags)
    A("s_cmp_lg_u32 s34, 2")
    A("s_cbranch_scc1 L_nodma")
    A("s_cmp_eq_u32 s67, 0")
    A("s_cbranch_scc1 L_nodma")
    A("s_mov_b32 s44, s20")
    A("s_and_b32 s45, s21, 0xffff")
    A("s_mul_i32 s65, s86, 448")
    A("s_movk_i32 s64, 1024")
    A("s_mov_b32 s67, 0")
    A("s_mov_b32 s66, 56")
    A("v_lshlrev_b32 v8, 4, v0")
    A("s_branch L_dma")
    A("L_nodma:")
    decode()
    A("s_lshl_b32 s56, s76, 24")
    A("s_add_u32 s36, s6, s56")
    A("s_addc_u32 s37, s7, 0")
    A("s_and_b32 s37, s37, 0xffff")
    A("s_add_u32 s40, s8, s56")
    A("s_addc_u32 s41, s9, 0")
    A("s_and_b32 s41, s41, 0xffff")
    A("s_bfe_u32 s55, s85, 0x80010")
    A("s_and_b32 s52, s85, 0xffff")
    A("s_add_u32 s53, s52, s55")
    A("s_lshr_b32 s54, s85, 24")
    A("s_add_u32 s54, s54, s52")
    pdep("s54", "s60")
    A(f"s_mov_b32 s71, {smask}")
    ring = [("a", 0), ("a", 64), ("a", 128)]
    extra = [("a", 192), ("v", 128), ("v", 192)]
    def R4(slot, k):
        c, b = slot
        return f"{c}[{b+4*k}:{b+4*k+3}]"
    def ldK(slot, j): A(f"buffer_load_dwordx4 {R4(slot, j)}, v1, s[36:39], s54 offen offset:{64*j} {kflags}")
    def ldV(slot, i): A(f"buffer_load_dwordx4 {R4(slot, 8+i)}, {vld[i][0]}, s[40:43], s54 offen offset:{vld[i][1]} {vflags}")
    def adv():
        A("s_orn2_b32 s54, s54, s71")
        A("s_add_u32 s54, s54, 1")
        A("s_and_b32 s54, s54, s71")
        A("s_cmp_eq_u32 s54, s53")
        A("s_cselect_b32 s54, s52, s54")
    def qpoll():
        A(f"global_load_dwordx4 v[48:51], v45, s[28:29] {ldf}")
        A(f"global_load_dwordx4 v[52:55], v45, s[28:29] offset:1024 {ldf}")
    def qcheck():
        A("v_cmp_ne_u32 s[60:61], s49, v49")
        A("v_cmp_ne_u32 s[62:63], s49, v51")
        A("v_cmp_ne_u32 s[64:65], s49, v53")
        A("v_cmp_ne_u32 vcc, s49, v55")
        A("s_or_b64 s[60:61], s[60:61], s[62:63]")
        A("s_or_b64 vcc, vcc, s[64:65]")
        A("s_or_b64 vcc, vcc, s[60:61]")
    nissued = 0
    anyNL = any(NLs)
    for slot in ring + extra:
        for k in range(16):
            if nissued == pollpos: qpoll()
            if nissued % 4 == 0 and nissued <= pollpos + PD - 4: A(f"s_waitcnt vmcnt({PD-4})")
            if nissued == PD - 4:
                A("s_waitcnt lgkmcnt(0)")
                tags()
                A("s_cmp_lg_u32 s34, 3")
                A("s_cbranch_scc1 L_qc_ret0")
                A("s_call_b64 s[62:63], L_qc")
                A("L_qc_ret0:")
                A("v_and_b32 v21, 1, v60")
                A("v_mov_b32 v22, 0xffff")
                A("v_lshlrev_b32 v21, 4, v21")
                A("v_lshlrev_b32 v22, v21, v22")
                A("v_bfe_u32 v21, v60, 1, 2")
                for kk in range(4):
                    A(f"v_cmp_eq_u32 vcc, {kk}, v21")
                    A(f"v_cndmask_b32 v{4+kk}, 0, v22, vcc")
                A("v_mov_b32 v19, 0xff7fffff")
                A("v_mov_b32 v20, 0")
                for kk in range(32, 40): A(f"v_mov_b32 v{kk}, 0")
                A(f"s_mov_b32 s57, 0x{CEXP:x}")
                A("s_mov_b32 s58, 0")
                if dbg: A("s_mov_b32 s83, 0")
                A("v_lshrrev_b32 v21, 3, v60")
                A("v_lshlrev_b32 v21, 9, v21")
                A("v_lshl_add_u32 v21, v61, 4, v21")
                A(f"v_add_u32 v21, {L_QB}, v21")
                A("s_lshl_b32 s60, s76, 11")
                A(f"s_add_u32 s60, s60, {WS_QG}")
                A("v_lshl_add_u32 v45, v0, 4, s60")
                A("v_lshrrev_b32 v22, 1, v61")
                A("v_lshlrev_b32 v22, 10, v22")
                A("v_lshl_add_u32 v22, v60, 5, v22")
                A("v_and_b32 v23, 1, v61")
                A("v_lshl_add_u32 v22, v23, 4, v22")
                A("s_lshl_b32 s60, s76, 15")
                A("s_lshl_b32 s61, s32, 11")
                A("s_add_u32 s60, s60, s61")
                A(f"s_add_u32 s60, s60, {WS_REC}")
                A("v_add_u32 v22, s60, v22")
                A("s_lshl_b32 s60, s76, 9")
                A("s_lshl_b32 s61, s32, 4")
                A("s_add_u32 s60, s60, s61")
                A(f"s_add_u32 s60, s60, {WS_ML}")
                A("v_lshl_add_u32 v23, v0, 5, s60")
                A("s_lshl_b32 s77, s76, 8")
                A(f"s_add_u32 s77, s77, {WS_CT}")
                A("s_mov_b32 s79, 0")
                A(f"s_mul_i32 s82, s76, {prot}")
                A("v_lshlrev_b32 v46, 3, v0")
                A(f"v_add_u32 v46, {L_QB}, v46")
                A("s_bfe_u32 s68, s84, 0x40013")
                A("s_bfe_u32 s48, s84, 0x80017")
                sel4("s69", (65536, 65536, 114688, 65536))
                A("v_lshl_add_u32 v44, v0, 4, s69")
                A("s_add_u32 s70, s68, 3")
                A("s_sub_u32 s55, s55, s70")
                A("s_sub_u32 s55, s55, 3")
            if k < 8: ldK(slot, k)
            else: ldV(slot, k - 8)
            nissued += 1
        if nissued == 16:
            pdep("s52", "s60")
            pdep("s53", "s60")
        adv()
        if prog and nissued in (32, 96): stamp({32: 12, 96: 14}[nissued])
        if nissued == 48 and anyNL:
            A("s_cmp_eq_u32 s68, 0")
            A("s_cbranch_scc1 L_pfl_end")
            A("L_pfl:")
            for k in range(16):
                off = 64 * k if k < 8 else vld[k - 8][1]
                A(f"s_add_u32 m0, s69, {1024 * k - off}")
                if k % 4 == 0: A(f"s_waitcnt vmcnt({PD-4})")
                if k < 8: A(f"buffer_load_dwordx4 v1, s[36:39], s54 offen offset:{off} {kflags} lds")
                else: A(f"buffer_load_dwordx4 {vld[k-8][0]}, s[40:43], s54 offen offset:{off} {vflags} lds")
            adv()
            A("s_add_u32 s69, s69, 0x4000")
            A("s_sub_u32 s68, s68, 1")
            A("s_cmp_lg_u32 s68, 0")
            A("s_cbranch_scc1 L_pfl")
            A("L_pfl_end:")
    stamp(1)
    A(f"s_waitcnt vmcnt({96 - pollpos})")
    A(f"s_mov_b32 s66, {SPIN}")
    A("s_branch L_qchk")
    A("L_qpoll:")
    qpoll()
    A("s_sub_u32 s66, s66, 1")
    A("s_cbranch_scc1 L_qgot")
    A("s_waitcnt vmcnt(0)")
    A("L_qchk:")
    qcheck()
    A("s_cbranch_scc1 L_qpoll")
    A("L_qgot:")
    A("ds_write2_b32 v46, v48, v50 offset0:0 offset1:1")
    A("ds_write2_b32 v46, v52, v54 offset0:128 offset1:129")
    A("s_waitcnt lgkmcnt(0)")
    for j in range(8):
        A(f"ds_read_b128 v[{64+4*j}:{67+4*j}], v21 offset:{64*j}")
    A("s_waitcnt lgkmcnt(0)")
    if dbg: A("v_writelane_b32 v63, s66, 5")
    stamp(2)

    sites = []
    def tile(slot, loads, name):
        if loads:
            A("s_cmp_le_u32 s55, 1")
            A(f"s_cbranch_scc1 L_dstub_{name}")
            A("s_sub_u32 s55, s55, 1")
            A(f"L_dback_{name}:")
        for j in range(8):
            if loads: A(f"s_waitcnt vmcnt({D-1})")
            A(f"v_mfma_f32_16x16x32_bf16 v[8:11], {R4(slot, j)}, v[{64+4*j}:{67+4*j}], {'0' if j == 0 else 'v[8:11]'}")
            if loads: ldK(slot, j)
        if round_scores:
            A("v_cvt_pk_bf16_f32 v12, v8, v9")
            A("v_cvt_pk_bf16_f32 v13, v10, v11")
            A("v_lshlrev_b32 v14, 16, v12")
            A("v_and_b32 v15, 0xffff0000, v12")
            A("v_lshlrev_b32 v16, 16, v13")
            A("v_and_b32 v17, 0xffff0000, v13")
        else:
            for r in range(4): A(f"v_mov_b32 v{14+r}, v{8+r}")
        A("v_max3_f32 v18, v14, v15, v16")
        A("v_max_f32 v18, v18, v17")
        A("v_cmp_gt_f32 vcc, v18, v19")
        A(f"s_cbranch_vccnz L_stub_{name}")
        A(f"L_back_{name}:")
        sites.append(name)
        for r in range(4): A(f"v_sub_f32 v{14+r}, v{14+r}, v19")
        for r in range(4): A(f"v_mul_f32 v{14+r}, s57, v{14+r}")
        for r in range(4): A(f"v_exp_f32 v{14+r}, v{14+r}")
        for r in range(4): A(f"v_cvt_pk_bf16_f32 v{40+r}, v{14+r}, v{14+r}")
        def mkA(r):
            for k in range(4): A(f"v_and_b32 v{24+4*(r&1)+k}, v{40+r}, v{4+k}")
        mkA(0)
        A("v_add_f32 v14, v14, v15")
        A("v_add_f32 v16, v16, v17")
        for r in range(4):
            a = 24 + 4 * (r & 1)
            if loads: A(f"s_waitcnt vmcnt({D-1})")
            A(f"v_mfma_f32_16x16x32_bf16 v[32:35], v[{a}:{a+3}], {R4(slot, 8+2*r)}, v[32:35]")
            if loads: ldV(slot, 2 * r)
            if loads: A(f"s_waitcnt vmcnt({D-1})")
            A(f"v_mfma_f32_16x16x32_bf16 v[36:39], v[{a}:{a+3}], {R4(slot, 9+2*r)}, v[36:39]")
            if loads: ldV(slot, 2 * r + 1)
            if r < 3: mkA(r + 1)
            if r == 0: A("v_add_f32 v14, v14, v16")
            if r == 1: A("v_add_f32 v20, v20, v14")
        if loads:
            A("s_cmp_eq_u32 s79, 1")
            A("s_cbranch_scc1 L_sdone")
            adv()
    A("s_branch L_loop")
    gap()
    A("L_loop:")
    for i, slot in enumerate(ring):
        pad("ca")
        tile(slot, True, f"r{i}")
    A("s_add_u32 s58, s58, 1")
    if prog:
        for (itn, k) in ((10, 11), (20, 4), (30, 15)):
            A(f"s_cmp_lg_u32 s58, {itn}")
            A(f"s_cbranch_scc1 L_pg{itn}")
            stamp(k)
            A(f"L_pg{itn}:")
    A("s_cmp_gt_u32 s58, s70")
    A("s_cbranch_scc1 L_loop")
    for i in range(1, nextra):
        A(f"s_cmp_eq_u32 s58, {i}")
        A(f"s_cbranch_scc1 L_x{i}")
    A("s_branch L_x0")
    pad("ca")
    A("L_rare:")
    A("v_mov_b32 v21, v18")
    A("v_permlane32_swap_b32 v21, v18")
    A("v_max_f32 v18, v18, v21")
    A("v_mov_b32 v21, v18")
    A("v_permlane16_swap_b32 v21, v18")
    A("v_max3_f32 v18, v18, v21, v19")
    A("v_sub_f32 v21, v19, v18")
    A("v_mul_f32 v21, s57, v21")
    A("v_exp_f32 v21, v21")
    A("v_mov_b32 v19, v18")
    A("v_mul_f32 v20, v20, v21")
    A("v_readlane_b32 s60, v21, 0")
    A("v_readlane_b32 s61, v21, 8")
    A("v_mov_b32 v21, s60")
    A("s_mov_b32 exec_lo, 0")
    A("v_mov_b32 v21, s61")
    A("s_mov_b64 exec, -1")
    for k in range(32, 40): A(f"v_mul_f32 v{k}, v{k}, v21")
    A("L_rare_ret:")
    A("s_setpc_b64 s[62:63]")
    for nm in ("r0", "r1", "r2", "x0", "x1", "x2"):
        A(f"L_stub_{nm}:")
        A("s_call_b64 s[62:63], L_rare")
        A(f"s_branch L_back_{nm}")
    for nm in ("r0", "r1", "r2"):
        A(f"L_dstub_{nm}:")
        A("s_call_b64 s[62:63], L_dyn")
        A(f"s_branch L_dback_{nm}")
    npool = 16 * P
    A("L_dyn:")
    A("s_cmp_lg_u32 s79, 0")
    A("s_cbranch_scc1 L_dyn_drain")
    A("s_cmp_eq_u32 s55, 1")
    A("s_mov_b32 s55, 0")
    A("s_cbranch_scc1 L_dyn_claim")
    A("s_waitcnt lgkmcnt(0)")
    A(f"s_cmp_ge_u32 s78, {npool}")
    A("s_cbranch_scc1 L_dyn_end")
    if dbg: A("s_add_u32 s83, s83, 1")
    A("s_add_u32 s54, s78, s82")
    A(f"s_cmp_ge_u32 s54, {npool}")
    A(f"s_cselect_b32 s60, {npool}, 0")
    A("s_sub_u32 s54, s54, s60")
    A(f"s_add_u32 s54, s54, {2048 - npool}")
    pdep("s54", "s60")
    if any(stops):
        A("s_cmp_ge_u32 s78, s48")
        A("s_movk_i32 s78, 0x7fff")
        A("s_cbranch_scc1 L_dyn_ret")
    A("L_dyn_claim:")
    A("s_mov_b32 s78, 1")
    A("s_atomic_add s78, s[28:29], s77 glc")
    A("L_dyn_ret:")
    A("s_setpc_b64 s[62:63]")
    A("L_dyn_end:")
    A("s_mov_b32 s38, 0")
    A("s_mov_b32 s42, 0")
    A("s_mov_b32 s79, 4")
    if early:
        A("s_sub_u32 s60, s34, 1")
        A("s_cmp_ge_u32 s60, 2")
        A("s_cbranch_scc1 L_dyn_drain")
        A("s_barrier")
    A("L_dyn_drain:")
    A("s_sub_u32 s79, s79, 1")
    A("s_setpc_b64 s[62:63]")
    pad_end("ca")
    gap()
    for i in (1, 2, 0):
        pad("cx")
        A(f"L_x{i}:")
        if i == 0: A("s_waitcnt lgkmcnt(0)")
        tile(extra[i], False, f"x{i}")
        if i == 0 and anyNL:
            A("s_cmp_eq_u32 s58, s70")
            A("s_cbranch_scc1 L_loop")
            for k in range(16): A(f"ds_read_b128 {R4(extra[0], k)}, v44 offset:{1024*k}")
            A("v_add_u32 v44, 0x4000, v44")
        A("s_branch L_loop")
    pad("cx")
    A("L_sdone:")
    stamp(3)
    if dbg: A("v_writelane_b32 v63, s83, 13")
    A("v_mov_b32 v21, v20")
    A("v_mov_b32 v24, v19")
    A("v_mov_b32 v26, s49")
    A("v_permlane32_swap_b32 v21, v20")
    A("s_movk_i32 s61, 0xff")
    A("v_add_f32 v20, v20, v21")
    A("v_mov_b32 v21, v20")
    A("v_bfi_b32 v32, s61, v26, v32")
    A(f"global_store_dwordx4 v22, v[32:35], s[28:29] {stf}")
    A("v_permlane16_swap_b32 v21, v20")
    A("v_bfi_b32 v36, s61, v26, v36")
    A(f"global_store_dwordx4 v22, v[36:39], s[28:29] offset:512 {stf}")
    A("v_add_f32 v25, v20, v21")
    A("s_mov_b64 exec, 0x101")
    A(f"global_store_dwordx4 v23, v[24:27], s[28:29] {stf}")
    A("s_mov_b64 exec, -1")
    A("s_sub_u32 s60, s34, 1")
    A("s_cmp_lt_u32 s60, 2")
    A("s_cbranch_scc1 L_tail")
    fin()
    pad_end("cx")

    def reduce_sum(v, t, width):
        for sh in (8, 4, 2, 1):
            A(f"v_add_f32_dpp v{v}, v{v}, v{v} row_ror:{sh} row_mask:0xf bank_mask:0xf")
        A(f"v_mov_b32 v{t}, v{v}")
        A(f"v_permlane16_swap_b32 v{t}, v{v}")
        A(f"v_add_f32 v{v}, v{v}, v{t}")
        if width == 64:
            A(f"v_mov_b32 v{t}, v{v}")
            A(f"v_permlane32_swap_b32 v{t}, v{v}")
            A(f"v_add_f32 v{v}, v{v}, v{t}")
    def layernorm(X, D_, npair, T, width, out, emask=None):
        P = lambda r: f"v[{r}:{r+1}]"
        if width == 64:
            A(f"v_readfirstlane_b32 s60, v{X}")
            A(f"s_mov_b64 exec, {emask}")
            A("s_mov_b32 s61, s60")
            for i in range(npair):
                A(f"v_pk_add_f32 {P(D_+2*i)}, {P(X+2*i)}, s[60:61] neg_lo:[0,1] neg_hi:[0,1]")
            A(f"v_pk_add_f32 {P(T+4)}, {P(D_)}, {P(D_+2)}")
            A(f"v_pk_mul_f32 {P(T+6)}, {P(D_)}, {P(D_)}")
            for i in range(1, npair):
                if i >= 2: A(f"v_pk_add_f32 {P(T+4)}, {P(T+4)}, {P(D_+2*i)}")
                A(f"v_pk_fma_f32 {P(T+6)}, {P(D_+2*i)}, {P(D_+2*i)}, {P(T+6)}")
            A(f"v_add_f32 v{T}, v{T+4}, v{T+5}")
            A(f"v_add_f32 v{T+2}, v{T+6}, v{T+7}")
            A("s_mov_b64 exec, -1")
            for sh in (8, 4, 2, 1):
                for v in (T, T + 2):
                    A(f"v_add_f32_dpp v{v}, v{v}, v{v} row_ror:{sh} row_mask:0xf bank_mask:0xf")
            A(f"v_permlane32_swap_b32 v{T}, v{T+2}")
            A(f"v_add_f32 v{T}, v{T}, v{T+2}")
            A(f"v_mov_b32 v{T+2}, v{T}")
            A(f"v_permlane16_swap_b32 v{T+2}, v{T}")
            A(f"v_add_f32 v{T}, v{T}, v{T+2}")
            A(f"v_mul_f32 v{T}, 0x{f2u(1.0/448):x}, v{T}")
            A(f"v_mov_b32 v{T+2}, v{T}")
            A(f"v_permlane32_swap_b32 v{T}, v{T+2}")
            A(f"v_fma_f32 v{T+2}, -v{T}, v{T}, v{T+2}")
            A(f"v_add_f32 v{T}, s60, v{T}")
            A(f"v_max_f32 v{T+2}, 0, v{T+2}")
        else:
            A(f"v_pk_add_f32 {P(T+4)}, {P(X)}, {P(X+2)}")
            for i in range(2, npair): A(f"v_pk_add_f32 {P(T+4)}, {P(T+4)}, {P(X+2*i)}")
            A(f"v_add_f32 v{T}, v{T+4}, v{T+5}")
            reduce_sum(T, T + 1, width)
            A(f"v_mul_f32 v{T}, 0x{f2u(1.0/448):x}, v{T}")
            for i in range(npair):
                A(f"v_pk_add_f32 {P(D_+2*i)}, {P(X+2*i)}, {P(T)} op_sel_hi:[1,0] neg_lo:[0,1] neg_hi:[0,1]")
            A(f"v_pk_mul_f32 {P(T+4)}, {P(D_)}, {P(D_)}")
            for i in range(1, npair): A(f"v_pk_fma_f32 {P(T+4)}, {P(D_+2*i)}, {P(D_+2*i)}, {P(T+4)}")
            A(f"v_add_f32 v{T+2}, v{T+4}, v{T+5}")
            reduce_sum(T + 2, T + 3, width)
            A(f"v_mul_f32 v{T+2}, 0x{f2u(1.0/448):x}, v{T+2}")
        A(f"v_cvt_pk_bf16_f32 v{T+4}, v{T}, v{T+2}")
        A(f"v_lshlrev_b32 v{T}, 16, v{T+4}")
        A(f"v_and_b32 v{T+2}, 0xffff0000, v{T+4}")
        A(f"v_add_f32 v{T+2}, 0x{f2u(1e-5):x}, v{T+2}")
        A(f"v_pk_add_f32 {P(D_)}, {P(X)}, {P(T)} op_sel_hi:[1,0] neg_lo:[0,1] neg_hi:[0,1]")
        A(f"v_cvt_pk_bf16_f32 v{T+2}, v{T+2}, v{T+2}")
        A(f"v_lshlrev_b32 v{T+2}, 16, v{T+2}")
        A(f"v_sqrt_f32 v{T+2}, v{T+2}")
        for i in range(1, npair):
            A(f"v_pk_add_f32 {P(D_+2*i)}, {P(X+2*i)}, {P(T)} op_sel_hi:[1,0] neg_lo:[0,1] neg_hi:[0,1]")
        A(f"v_cvt_pk_bf16_f32 v{T+2}, v{T+2}, v{T+2}")
        A(f"v_lshlrev_b32 v{T+2}, 16, v{T+2}")
        A(f"v_rcp_f32 v{T+2}, v{T+2}")
        for i in range(npair): A(f"v_cvt_pk_bf16_f32 v{D_+2*i+1}, v{D_+2*i}, v{D_+2*i+1}")
        for i in range(npair):
            A(f"v_lshlrev_b32 v{D_+2*i}, 16, v{D_+2*i+1}")
            A(f"v_and_b32 v{D_+2*i+1}, 0xffff0000, v{D_+2*i+1}")
        for i in range(npair): A(f"v_pk_mul_f32 {P(D_+2*i)}, {P(D_+2*i)}, {P(T+2)} op_sel_hi:[1,0]")
        for i in range(npair): A(f"v_cvt_pk_bf16_f32 v{out+i}, v{D_+2*i}, v{D_+2*i+1}")

    A.raw(".p2align 6")
    A("L_help:")
    A("v_lshrrev_b32 v1, 5, v0")
    A("v_mul_u32_u24 v1, 896, v1")
    A("v_and_b32 v2, 31, v0")
    A("v_lshl_add_u32 v1, v2, 2, v1")
    A("s_waitcnt lgkmcnt(0)")
    if dbg: A("v_writelane_b32 v63, s92, 0")
    A("s_load_dwordx2 s[50:51], s[28:29], 0")
    A("s_and_b32 s34, s84, 3")
    decode()
    A("s_cmp_eq_u32 s3, 2")
    A("s_cbranch_scc1 L_w2")
    A("s_cmp_eq_u32 s3, 3")
    A("s_cbranch_scc1 L_w3")
    A("s_cmp_lg_u32 s34, 3")
    A("s_cbranch_scc1 L_w1n")
    for i in range(7): A(f"global_load_dword v{8+i}, v1, s[4:5] offset:{128*i}")
    A(f"v_add_u32 v5, {L_XN}, v1")
    A("s_waitcnt vmcnt(0) lgkmcnt(0)")
    tags()
    stamp(1)
    for i in range(7):
        A(f"v_lshlrev_b32 v{16+2*i}, 16, v{8+i}")
        A(f"v_and_b32 v{17+2*i}, 0xffff0000, v{8+i}")
    layernorm(16, 32, 7, 46, 32, 8)
    for i in range(7): A(f"ds_write_b32 v5, v{8+i} offset:{128*i}")
    stamp(2)
    A("s_call_b64 s[62:63], L_qc")
    fin()
    gap()
    pad("cq")
    A("L_qc:")
    tr_addr("v44", "v45", "v46", "v47")
    A("v_and_b32 v46, 1, v60")
    A("v_cmp_eq_u32 vcc, 0, v46")
    A("v_mul_u32_u24 v45, 896, v46")
    A("v_lshl_add_u32 v45, v61, 4, v45")
    A(f"v_add_u32 v45, {L_XN}, v45")
    A("v_lshlrev_b32 v46, 14, v46")
    A("v_lshl_add_u32 v46, v61, 4, v46")
    A("s_lshl_b32 s60, s30, 11")
    A("s_lshl_b32 s61, s35, 8")
    A("s_add_u32 s60, s60, s61")
    A("s_lshl_b32 s61, s3, 6")
    A("s_add_u32 s60, s60, s61")
    A(f"s_add_u32 s60, s60, {WS_QG}")
    A("v_add_u32 v46, s60, v46")
    A("v_mov_b32 v13, s50")
    A("v_mov_b32 v15, s51")
    A("v_cndmask_b32 v13, v15, v13, vcc")
    A("v_mov_b32 v15, v13")
    A("s_waitcnt lgkmcnt(0)")
    A("s_barrier")
    stamp(11 if not prog else 9)
    for t in range(14):
        A(f"ds_read_b128 v[{64+4*t}:{67+4*t}], v45 offset:{64*t}")
        A(f"ds_read_b64_tr_b16 v[{128+4*t}:{129+4*t}], v44 offset:{L_WT + 4096*t}")
        A(f"ds_read_b64_tr_b16 v[{130+4*t}:{131+4*t}], v44 offset:{L_WT + 4096*t + 512}")
        if t >= 4:
            A("s_waitcnt lgkmcnt(12)")
            tt = t - 4
            A(f"v_mfma_f32_16x16x32_bf16 v[8:11], v[{128+4*tt}:{131+4*tt}], v[{64+4*tt}:{67+4*tt}], {'0' if tt == 0 else 'v[8:11]'}")
    for tt in range(10, 14):
        A(f"s_waitcnt lgkmcnt({3*(13-tt)})")
        A(f"v_mfma_f32_16x16x32_bf16 v[8:11], v[{128+4*tt}:{131+4*tt}], v[{64+4*tt}:{67+4*tt}], v[8:11]")
    A("s_mov_b32 exec_lo, 0x00030003")
    A("s_mov_b32 exec_hi, 0x00030003")
    A("v_cvt_pk_bf16_f32 v12, v8, v9")
    A("v_cvt_pk_bf16_f32 v14, v10, v11")
    A(f"global_store_dwordx4 v46, v[12:15], s[28:29] {stf}")
    A("s_mov_b64 exec, -1")
    stamp(8)
    A("s_nop 1")
    A("s_setpc_b64 s[62:63]")
    pad_end("cq")
    A("L_w2:")
    if touch:
        A("s_lshl_b32 s60, s76, 15")
        A("s_lshl_b32 s61, s32, 11")
        A("s_add_u32 s60, s60, s61")
        A(f"s_add_u32 s60, s60, {WS_REC}")
        A("v_lshl_add_u32 v2, v60, 7, s60")
        A("s_mul_i32 s60, s33, 1792")
        A("s_lshl_b32 s61, s35, 8")
        A("s_add_u32 s60, s60, s61")
        A(f"s_add_u32 s60, s60, {WS_H}")
        A("s_mul_i32 s61, s31, 28")
        A("s_add_u32 s61, s61, s35")
        A("s_mul_i32 s61, s61, 1792")
        A(f"s_add_u32 s61, s61, {WS_P}")
        A("s_lshl_b32 s62, s76, 9")
        A(f"s_add_u32 s62, s62, {WS_ML}")
        A("s_cmp_eq_u32 s34, 1")
        A("s_cselect_b32 s62, s60, s62")
        A("s_cselect_b32 s63, 0x3ffff, 0xfffff" if False else "s_mov_b32 s63, 0xfffff")
        A("s_cselect_b32 s63, 0x3ffff, s63")
        A("s_cmp_eq_u32 s34, 2")
        A("s_cselect_b32 s62, s61, s62")
        A("s_cselect_b32 s63, 0x3fffffff, s63")
        A("v_lshl_add_u32 v3, v60, 7, s62")
        A("v_cmp_gt_u32 vcc, 16, v0")
        A("v_cndmask_b32 v2, v3, v2, vcc")
        A("s_mov_b32 exec_lo, s63")
        A("s_mov_b32 exec_hi, 0")
        A("global_load_dword v255, v2, s[28:29]")
        A("s_mov_b64 exec, -1")
    run_chain("ca")
    A("s_waitcnt lgkmcnt(0)")
    tags()
    stamp(1)
    A("s_cmp_lg_u32 s34, 3")
    A("s_cbranch_scc1 L_hnext")
    A("s_call_b64 s[62:63], L_qc")
    A("s_branch L_fin")
    A("L_w3:")
    A("s_waitcnt lgkmcnt(0)")
    tags()
    A("s_cmp_lg_u32 s34, 3")
    A("s_cbranch_scc1 L_w3n")
    A("s_cmp_ge_u32 s35, 2")
    A("s_cbranch_scc1 L_w3q")
    A("s_lshl_b32 s60, s35, 3")
    A("s_add_u32 s60, s60, s30")
    A("s_lshl_b32 s60, s60, 8")
    A(f"s_add_u32 s60, s60, {WS_CT}")
    A("s_mov_b32 s61, 0")
    A("s_atomic_add s61, s[28:29], s60 glc")
    A("s_waitcnt lgkmcnt(0)")
    A("s_sub_u32 s61, 0, s61")
    A("s_atomic_add s61, s[28:29], s60 glc")
    A("L_w3q:")
    run_chain("cq")
    A("s_waitcnt lgkmcnt(0)")
    A("s_call_b64 s[62:63], L_qc")
    A("L_w3n:")
    run_chain("cx")
    if fast:
        A("s_cmp_lg_u32 s34, 2")
        A("s_cbranch_scc1 L_hnext")
        A("s_getreg_b32 s60, hwreg(HW_REG_XCC_ID, 0, 4)")
        A("s_and_b32 s60, s60, 7")
        A("s_lshl_b32 s64, s31, 7")
        A("s_and_b32 s61, s60, 4")
        A("s_add_u32 s61, s61, s64")
        A("s_and_b32 s60, s60, 3")
        A("s_lshl_b32 s60, s60, 3")
        A("s_lshl_b32 s65, 1, s60")
        A("s_atomic_add s65, s[26:27], s61")
        A("s_lshl_b32 s69, 28, s60")
        A(f"s_mov_b32 s55, {SPIN}")
        A("L_xpoll:")
        A("s_sleep 16")
        A("s_load_dwordx2 s[66:67], s[26:27], s64 glc")
        A("s_sub_u32 s55, s55, 1")
        A("s_cbranch_scc1 L_xgot")
        A("s_waitcnt lgkmcnt(0)")
        A("s_add_u32 s68, s66, s67")
        A("s_mul_i32 s68, s68, 0x01010101")
        A("s_lshr_b32 s68, s68, 24")
        A("s_cmp_lt_u32 s68, 28")
        A("s_cbranch_scc1 L_xpoll")
        A("L_xgot:")
        A("s_waitcnt lgkmcnt(0)")
        A("s_bitcmp1_b32 s61, 2")
        A("s_cselect_b32 s66, s67, s66")
        A("s_cmp_eq_u32 s66, s69")
        A("s_cselect_b32 s66, 1, 0")
        A("v_mov_b32 v5, s66")
        A(f"v_mov_b32 v7, {L_FL}")
        A("ds_write_b32 v7, v5")
        A("s_waitcnt lgkmcnt(0)")
    stamp(1)
    A("s_branch L_hnext")
    A("L_w1n:")
    A("s_waitcnt lgkmcnt(0)")
    tags()
    A("s_cmp_eq_u32 s34, 0")
    A("s_cbranch_scc1 L_fin")
    A("s_cmp_eq_u32 s34, 2")
    A("s_cbranch_scc1 L_w1f")
    run_chain("cw")
    A("s_branch L_hnext")
    A("L_w1f:")
    run_chain("cf")
    A("v_mov_b32 v5, 0")
    A("v_lshlrev_b32 v7, 2, v0")
    A(f"v_add_u32 v7, {L_ZB}, v7")
    A("s_mov_b32 exec_hi, 0")
    A("ds_write_b32 v7, v5")
    A("s_mov_b64 exec, -1")
    A("s_waitcnt lgkmcnt(0)")
    stamp(1)
    A("L_hnext:")
    A("s_sub_u32 s60, s34, 1")
    A("s_cmp_ge_u32 s60, 2")
    A("s_cbranch_scc1 L_fin")

    A("L_tail:")
    def gate(nm):
        if early:
            A("s_cmp_eq_u32 s3, 0")
            A(f"s_cbranch_scc1 L_gate{nm}")
            A("s_barrier")
            A(f"L_gate{nm}:")
        else: A("s_barrier")
    def backoff():
        if slp: A(f"s_sleep {slp}")
    A("s_lshl_b32 s52, s3, 5")
    A(f"s_mov_b32 s55, {SPIN}")
    A("s_movk_i32 s58, 0xff")
    A("v_mov_b32 v59, s59")
    A("s_cmp_eq_u32 s34, 2")
    A("s_cbranch_scc1 L_F")
    A("s_lshl_b32 s60, s33, 15")
    A("s_lshl_b32 s61, s3, 13")
    A("s_add_u32 s60, s60, s61")
    A(f"s_add_u32 s60, s60, {WS_REC + 4096}")
    A("v_lshl_add_u32 v1, v0, 4, s60")
    A("s_lshl_b32 s60, s33, 9")
    A(f"s_add_u32 s60, s60, {WS_ML}")
    A("s_lshl_b32 s61, s3, 2")
    A("v_add_u32 v2, s61, v60")
    A("v_and_b32 v2, 15, v2")
    A("v_lshl_add_u32 v2, v2, 4, s60")
    gate("W")
    stamp(6)
    A("s_branch L_W2")
    gap()
    pad("cw")
    A("L_W2:")
    def wml():
        A(f"global_load_dwordx3 v[8:10], v2, s[28:29] {ldf}")
        A(f"global_load_dwordx3 v[12:14], v2, s[28:29] offset:256 {ldf}")
    def wdata():
        for t in range(8):
            A(f"global_load_dwordx4 v[{16+4*t}:{19+4*t}], v1, s[28:29] offset:{1024*t - 4096} {ldf}")
    wdata()
    wml()
    tr_addr("v5", "v7", "v6", "v4")
    for t in range(16):
        A(f"ds_read_b64_tr_b16 v[{128+4*t}:{129+4*t}], v5 offset:{L_WT + 4096*t}")
        A(f"ds_read_b64_tr_b16 v[{130+4*t}:{131+4*t}], v5 offset:{L_WT + 4096*t + 512}")
    A(f"s_mov_b32 s57, 0x{CEXP:x}")
    A("s_mul_i32 s60, s3, 1088")
    A(f"s_add_u32 s60, s60, {L_OB}")
    A("v_lshl_add_u32 v56, v0, 3, s60")
    A("v_and_b32 v4, 3, v60")
    A("v_mul_u32_u24 v4, 1088, v4")
    A("v_lshl_add_u32 v4, v61, 4, v4")
    A(f"v_add_u32 v4, {L_OB}, v4")
    A("s_mul_i32 s60, s33, 1792")
    A("s_lshl_b32 s61, s35, 8")
    A("s_add_u32 s60, s60, s61")
    A("s_lshl_b32 s61, s3, 6")
    A("s_add_u32 s60, s60, s61")
    A(f"s_add_u32 s60, s60, {WS_H}")
    A("v_lshl_add_u32 v57, v61, 4, s60")
    A("s_branch L_wchk")
    pad("cw")
    A("L_wpoll:")
    backoff()
    wdata()
    A("L_wpoll2:")
    wml()
    A("s_sub_u32 s55, s55, 1")
    A("s_cbranch_scc1 L_wgot")
    A("L_wchk:")
    A("s_waitcnt vmcnt(2)")
    A("v_xor_b32 v11, v16, v59")
    for t in range(1, 8): A(f"v_bitop3_b32 v11, v{16+4*t}, v11, v59 bitop3:0xde")
    A("v_and_b32 v11, s58, v11")
    A("v_cmp_ne_u32 vcc, 0, v11")
    A("s_waitcnt vmcnt(0)")
    A("v_xor_b32 v11, v10, v59")
    A("s_cbranch_vccnz L_wpoll")
    A("v_bitop3_b32 v11, v14, v11, v59 bitop3:0xde")
    A("v_cmp_ne_u32 vcc, 0, v11")
    A("v_max_f32_dpp v10, v8, v8 row_ror:8 row_mask:0xf bank_mask:0xf")
    A("v_max_f32_dpp v14, v12, v12 row_ror:8 row_mask:0xf bank_mask:0xf")
    A("s_cbranch_vccnz L_wpoll2")
    A("L_wgot:")
    cy(0)
    stamp(7)
    if dbg: A("v_writelane_b32 v63, s55, 12")
    for sh in (4, 2, 1):
        for v in (10, 14): A(f"v_max_f32_dpp v{v}, v{v}, v{v} row_ror:{sh} row_mask:0xf bank_mask:0xf")
    for v in (10, 14): A(f"v_sub_f32 v{v}, v{v-2}, v{v}")
    for v in (10, 14): A(f"v_mul_f32 v{v}, s57, v{v}")
    for v in (10, 14): A(f"v_exp_f32 v{v}, v{v}")
    for v in (10, 14): A(f"v_mul_f32 v{v+1}, v{v}, v{v-1}")
    cy(1)
    seq = []
    for i in range(4):
        for h in range(2):
            for k in range(4):
                op = "v_mul_f32_dpp" if i == 0 else "v_fmac_f32_dpp"
                seq.append(f"{op} v{48+4*h+k}, v{10+4*h}, v{16+8*i+4*h+k} row_newbcast:{i} row_mask:0xf bank_mask:0xf")
    red = [f"v_add_f32_dpp v{v}, v{v}, v{v} row_ror:{sh} row_mask:0xf bank_mask:0xf" for sh in (8, 4, 2, 1) for v in (11, 15)] + ["v_rcp_f32 v8, v11", "v_rcp_f32 v12, v15"]
    for i, s_ in enumerate(seq):
        A(s_)
        if i % 3 == 2 and red: A(red.pop(0))
    assert not red
    for h in range(2):
        for k in range(2):
            A(f"v_pk_mul_f32 v[{48+4*h+2*k}:{49+4*h+2*k}], v[{48+4*h+2*k}:{49+4*h+2*k}], v[{8+4*h}:{9+4*h}] op_sel_hi:[1,0]")
    for k in range(4): A(f"v_cvt_pk_bf16_f32 v{16+k}, v{48+2*k}, v{49+2*k}")
    cy(2)
    A("ds_write_b64 v56, v[16:17]")
    A("ds_write_b64 v56, v[18:19] offset:512")
    A("s_waitcnt lgkmcnt(0)")
    cy(3)
    A("s_barrier")
    cy(4)
    for t in range(16):
        A(f"ds_read_b128 v[{64+4*t}:{67+4*t}], v4 offset:{64*t}")
    pad("cw")
    for t in range(16):
        A(f"s_waitcnt lgkmcnt({15-t})")
        A(f"v_mfma_f32_16x16x32_bf16 v[8:11], v[{128+4*t}:{131+4*t}], v[{64+4*t}:{67+4*t}], {'0' if t == 0 else 'v[8:11]'}")
    cy(5)
    for qp in ("[1,0,3,2]", "[2,3,0,1]"):
        for k in range(4): A(f"v_add_f32_dpp v{8+k}, v{8+k}, v{8+k} quad_perm:{qp} row_mask:0xf bank_mask:0xf")
    A("s_mov_b32 exec_lo, 0x00010001")
    A("s_mov_b32 exec_hi, 0x00010001")
    A("v_bfi_b32 v8, s58, v59, v8")
    A(f"global_store_dwordx4 v57, v[8:11], s[28:29] {stf}")
    cy(6)
    A("s_mov_b64 exec, -1")
    stamp(8)
    fin()
    pad_end("cw")

    A("L_F:")
    A("s_mov_b32 s80, 0x3fff3fff")
    A("s_mov_b32 s81, 0x3fff3fff")
    A("v_mul_u32_u24 v3, 14, v61")
    A("v_add_u32 v3, v3, v60")
    A("s_lshl_b32 s60, s35, 7")
    A("s_add_u32 s60, s60, s52")
    A("v_lshl_add_u32 v1, v61, 3, s60")
    A("global_load_dwordx2 v[48:49], v1, s[18:19] nt")
    A("s_lshl_b32 s60, s35, 5")
    A("v_and_b32 v42, 3, v0")
    A("v_lshl_add_u32 v42, v42, 2, v61")
    A("v_lshl_add_u32 v42, v42, 1, s60")
    A("global_load_ushort v62, v42, s[22:23] nt")
    A("s_mul_i32 s60, s31, 896")
    A("v_lshl_add_u32 v1, v3, 3, s60")
    A("s_mov_b64 exec, s[80:81]")
    A("global_load_dwordx2 v[52:53], v1, s[4:5] nt")
    A("global_load_dwordx2 v[54:55], v1, s[4:5] offset:448 nt")
    A("s_mov_b64 exec, -1")
    A(f"v_add_u32 v43, {L_HB}, v42")
    A("v_add_u32 v42, s60, v42")
    A("v_lshlrev_b32 v58, 3, v3")
    A(f"v_add_u32 v58, {L_HB}, v58")
    A("s_mul_i32 s60, s31, 14336")
    A("s_mul_i32 s61, s3, 3584")
    A("s_add_u32 s60, s60, s61")
    A(f"s_add_u32 s60, s60, {WS_H}")
    A("v_lshl_add_u32 v1, v3, 4, s60")
    A("v_lshlrev_b32 v4, 4, v0")
    A(f"v_add_u32 v4, {L_OB}, v4")
    A("s_lshl_b32 s60, s3, 11")
    A("v_add_u32 v2, s60, v4")
    A("v_lshrrev_b32 v7, 2, v60")
    A("v_and_b32 v6, 3, v60")
    A("v_lshlrev_b32 v6, 3, v6")
    A("v_mul_u32_u24 v5, 56, v61")
    A("v_add_u32 v5, v5, v7")
    A("v_lshl_add_u32 v5, v5, 7, v6")
    A("v_bfe_u32 v8, v0, 3, 2")
    A("v_xor_b32 v8, s3, v8")
    A("v_lshl_add_u32 v5, v8, 5, v5")
    A("v_xor_b32 v9, 64, v5")
    A("v_lshl_add_u32 v7, v61, 3, v7")
    A("v_mul_u32_u24 v3, 896, v7")
    A("v_add_u32 v3, v3, v6")
    A("s_mul_i32 s60, s3, 224")
    A(f"s_add_u32 s60, s60, {L_WT2}")
    A("v_add_u32 v3, s60, v3")
    A("v_lshlrev_b32 v10, 4, v61")
    A(f"v_add_u32 v10, {L_UB}, v10")
    A(f"v_mov_b32 v11, {L_ZB}")
    for nb in range(7):
        A(f"v_cmp_eq_u32 vcc, {nb}, v60")
        A(f"v_cndmask_b32 v{184+nb}, v11, v10, vcc")
    A("v_lshl_add_u32 v57, v61, 3, s52")
    A(f"v_add_u32 v57, {L_UB}, v57")
    A("s_mul_i32 s60, s31, 28")
    A("s_add_u32 s60, s60, s35")
    A("s_mul_i32 s60, s60, 1792")
    A("s_mul_i32 s61, s3, 448")
    A("s_add_u32 s60, s60, s61")
    A(f"s_add_u32 s60, s60, {WS_P}")
    A("v_lshlrev_b32 v56, 6, v60")
    A("v_lshl_add_u32 v56, v61, 4, v56")
    A("v_add_u32 v56, s60, v56")
    A("s_mul_i32 s60, s31, 50176")
    A("s_lshl_b32 s61, s35, 6")
    A("s_add_u32 s60, s60, s61")
    A(f"s_add_u32 s60, s60, {WS_P}")
    A("v_lshrrev_b32 v40, 2, v0")
    A("v_min_u32 v41, 11, v40")
    A("v_add_u32 v41, 16, v41")
    A("v_and_b32 v44, 3, v0")
    A("v_lshl_add_u32 v44, v44, 4, s60")
    A("s_movk_i32 s61, 1792")
    A("v_mad_u32_u24 v40, v40, s61, v44")
    A("v_mad_u32_u24 v41, v41, s61, v44")
    A("v_cmp_gt_u32 vcc, 48, v0")
    A("v_cndmask_b32 v44, 0, 1.0, vcc")
    A("s_lshl_b32 s60, s31, 2")
    A("v_mov_b32 v45, s60")
    gate("F")
    stamp(6)
    A("s_branch L_F2")
    gap()
    pad("cf")
    A("L_F2:")
    if fast:
        A(f"v_mov_b32 v50, {L_FL}")
        A("ds_read_b32 v50, v50")
        A("s_mov_b32 exec_lo, 0x007f007f")
        A("s_mov_b32 exec_hi, 0x007f007f")
        A(f"global_load_dword v51, v56, s[28:29] {ldf}")
        A("s_mov_b64 exec, -1")
    for t in range(14):
        va = "v9" if (t >> 1) & 1 else "v5"
        A(f"ds_read_b64_tr_b16 v[{128+4*t}:{129+4*t}], {va} offset:{L_WT + 512*t}")
        A(f"ds_read_b64_tr_b16 v[{130+4*t}:{131+4*t}], {va} offset:{L_WT + 512*t + 28672}")
    for nb in range(7):
        for t in range(2):
            r = 8 * nb + 4 * t
            A(f"ds_read_b64_tr_b16 a[{192+r}:{193+r}], v3 offset:{28672*t + 32*nb}")
            A(f"ds_read_b64_tr_b16 a[{194+r}:{195+r}], v3 offset:{28672*t + 32*nb + 3584}")
    A("s_waitcnt vmcnt(0)")
    A("v_lshlrev_b32 v46, 16, v48")
    A("v_and_b32 v47, 0xffff0000, v48")
    A("v_lshlrev_b32 v48, 16, v49")
    A("v_and_b32 v49, 0xffff0000, v49")
    for i in range(4):
        A(f"v_lshlrev_b32 v{8+2*i}, 16, v{52+i}")
        A(f"v_and_b32 v{9+2*i}, 0xffff0000, v{52+i}")
    A("v_lshlrev_b32 v62, 16, v62")
    A("v_mov_b32 v32, 0")
    A("v_mov_b32 v34, 0")
    A("s_waitcnt lgkmcnt(0)")
    if fast: A("v_readfirstlane_b32 s82, v50")
    pad("cf")
    A("s_mov_b64 exec, s[80:81]")
    hs = lambda k: 192 + 16 * k
    def hissue(k):
        for i in range(4):
            A(f"global_load_dwordx4 v[{hs(k)+4*i}:{hs(k)+4*i+3}], v1, s[28:29] offset:{896*i} {ldf}")
    for k in range(d2 - 1): hissue(k)
    A("L_hpoll:")
    for k in range(d2):
        hissue((k + d2 - 1) % d2)
        A(f"s_waitcnt vmcnt({4*(d2-1)})")
        A(f"v_xor_b32 v16, v{hs(k)}, v59")
        for i in range(1, 4): A(f"v_bitop3_b32 v16, v{hs(k)+4*i}, v16, v59 bitop3:0xde")
        A("v_and_b32 v16, s58, v16")
        A("v_cmp_ne_u32 vcc, 0, v16")
        for i in range(4):
            A(f"v_pk_add_f32 v[{80+2*i}:{81+2*i}], v[{hs(k)+2*i}:{hs(k)+2*i+1}], v[{hs(k)+8+2*i}:{hs(k)+9+2*i}]")
        A("s_cbranch_vccz L_hgot")
    A("s_sub_u32 s55, s55, 1")
    A("s_cbranch_scc0 L_hpoll")
    A("L_hgot:")
    cy(0)
    A("ds_write_b128 v2, v[80:83]")
    A("ds_write_b128 v2, v[84:87] offset:1024")
    A("s_mov_b64 exec, -1")
    stamp(7)
    if dbg: A("v_writelane_b32 v63, s55, 12")
    A("s_waitcnt lgkmcnt(0)")
    A("s_barrier")
    cy(1)
    for hf in range(2):
        for w in range(4):
            A(f"ds_read_b128 v[{64+8*w+4*hf}:{67+8*w+4*hf}], v4 offset:{2048*w + 1024*hf}")
    for hf in range(2):
        A(f"s_waitcnt lgkmcnt({6 - 4*hf})")
        for i in (2*hf, 2*hf+1): A(f"v_pk_add_f32 v[{64+2*i}:{65+2*i}], v[{64+2*i}:{65+2*i}], v[{72+2*i}:{73+2*i}]")
        A(f"s_waitcnt lgkmcnt({4 - 4*hf})")
        for i in (2*hf, 2*hf+1): A(f"v_pk_add_f32 v[{80+2*i}:{81+2*i}], v[{80+2*i}:{81+2*i}], v[{88+2*i}:{89+2*i}]")
        for i in (2*hf, 2*hf+1): A(f"v_pk_add_f32 v[{64+2*i}:{65+2*i}], v[{64+2*i}:{65+2*i}], v[{80+2*i}:{81+2*i}]")
        for i in (2*hf, 2*hf+1): A(f"v_cvt_pk_bf16_f32 v{65+2*i}, v{64+2*i}, v{65+2*i}")
    cy(2)
    for i in range(4):
        A(f"v_lshlrev_b32 v{64+2*i}, 16, v{65+2*i}")
        A(f"v_and_b32 v{65+2*i}, 0xffff0000, v{65+2*i}")
    for i in range(4): A(f"v_pk_add_f32 v[{8+2*i}:{9+2*i}], v[{8+2*i}:{9+2*i}], v[{64+2*i}:{65+2*i}]")
    for i in range(4): A(f"v_cvt_pk_bf16_f32 v{16+i}, v{8+2*i}, v{9+2*i}")
    for i in range(4):
        A(f"v_lshlrev_b32 v{8+2*i}, 16, v{16+i}")
        A(f"v_and_b32 v{9+2*i}, 0xffff0000, v{16+i}")
    pad("cf")
    cy(3)
    layernorm(8, 24, 4, 32, 64, 20, emask="s[80:81]")
    cy(4)
    def bc(t):
        r = 64 + 4 * (t % 3)
        A(f"v_mov_b64_dpp v[{r}:{r+1}], v[20:21] row_newbcast:{t} row_mask:0xf bank_mask:0xf")
        A(f"v_mov_b64_dpp v[{r+2}:{r+3}], v[22:23] row_newbcast:{t} row_mask:0xf bank_mask:0xf")
    bc(0); bc(1)
    for t in range(14):
        r = 64 + 4 * (t % 3)
        A(f"v_mfma_f32_16x16x32_bf16 v[8:11], v[{128+4*t}:{131+4*t}], v[{r}:{r+3}], {'0' if t == 0 else 'v[8:11]'}")
        if t + 2 < 14: bc(t + 2)
    cy(5)
    A("s_mov_b64 exec, s[80:81]")
    A("ds_write_b64 v58, v[16:17]")
    A("ds_write_b64 v58, v[18:19] offset:448")
    A("s_mov_b64 exec, -1")
    pad("cf")
    A("v_cvt_pk_bf16_f32 v12, v8, v9")
    A("v_cvt_pk_bf16_f32 v13, v10, v11")
    A("v_lshlrev_b32 v8, 16, v12")
    A("v_and_b32 v9, 0xffff0000, v12")
    A("v_lshlrev_b32 v10, 16, v13")
    A("v_and_b32 v11, 0xffff0000, v13")
    A("v_pk_add_f32 v[8:9], v[8:9], v[46:47]")
    A("v_pk_add_f32 v[10:11], v[10:11], v[48:49]")
    for k in range(4): A(f"v_max_f32 v{8+k}, 0, v{8+k}")
    A("v_cvt_pk_bf16_f32 v12, v8, v9")
    A("v_cvt_pk_bf16_f32 v13, v10, v11")
    A("v_lshlrev_b32 v8, 16, v12")
    A("v_and_b32 v9, 0xffff0000, v12")
    A("v_lshlrev_b32 v10, 16, v13")
    A("v_and_b32 v11, 0xffff0000, v13")
    A("v_pk_mul_f32 v[8:9], v[8:9], v[8:9]")
    A("v_pk_mul_f32 v[10:11], v[10:11], v[10:11]")
    A("s_mov_b32 exec_lo, 0x00010001")
    A("s_mov_b32 exec_hi, 0x00010001")
    A("v_cvt_pk_bf16_f32 v12, v8, v9")
    A("v_cvt_pk_bf16_f32 v13, v10, v11")
    cy(6)
    A("ds_write_b64 v57, v[12:13]")
    A("s_mov_b64 exec, -1")
    A("s_waitcnt lgkmcnt(0)")
    A("s_barrier")
    cy(7)
    for nb in range(7):
        for t in range(2):
            i = 2 * nb + t
            A(f"ds_read_b128 v[{64+4*i}:{67+4*i}], v{184+nb} offset:{64*t}")
    A("ds_read_u16 v43, v43")
    for i in range(14):
        A(f"s_waitcnt lgkmcnt({14-i})")
        A(f"v_mfma_f32_16x16x32_bf16 v[8:11], a[{192+4*i}:{195+4*i}], v[{64+4*i}:{67+4*i}], {'0' if i == 0 else 'v[8:11]'}")
    cy(8)
    A("s_mov_b32 exec_lo, 0x007f007f")
    A("s_mov_b32 exec_hi, 0x007f007f")
    A(f"s_mov_b32 s55, {SPIN}")
    if fast:
        A("s_cmp_eq_u32 s82, 0")
        A("s_cbranch_scc1 L_Pfar")
        A("v_bfi_b32 v8, s58, v59, v8")
        A("global_store_dwordx4 v56, v[8:11], s[28:29]")
        A("L_Pdone:")
    else:
        A("v_bfi_b32 v8, s58, v59, v8")
        A(f"global_store_dwordx4 v56, v[8:11], s[28:29] {stf}")
    cy(9)
    A("s_mov_b64 exec, -1")
    stamp(8)
    A("s_cmp_lg_u32 s3, 1")
    A("s_cbranch_scc1 L_fin")
    pad("cf")
    ps = lambda k: 128 + 8 * k
    def pissue(k):
        A(f"global_load_dwordx4 v[{ps(k)}:{ps(k)+3}], v40, s[28:29] {ldf}")
        A(f"global_load_dwordx4 v[{ps(k)+4}:{ps(k)+7}], v41, s[28:29] {ldf}")
    for k in range(d3 - 1):
        pissue(k)
        if k < d3 - 2: A("s_nop 15")
    A("L_ppoll:")
    for k in range(d3):
        pissue((k + d3 - 1) % d3)
        A(f"s_waitcnt vmcnt({2*(d3-1)})")
        A(f"v_xor_b32 v24, v{ps(k)}, v59")
        A(f"v_bitop3_b32 v24, v{ps(k)+4}, v24, v59 bitop3:0xde")
        A("v_and_b32 v24, s58, v24")
        A("v_cmp_ne_u32 vcc, 0, v24")
        for i in range(4): A(f"v_fma_f32 v{16+i}, v{ps(k)+4+i}, v44, v{ps(k)+i}")
        A("s_cbranch_vccz L_pgot")
    A("s_sub_u32 s55, s55, 1")
    A("s_cbranch_scc0 L_ppoll")
    A("L_pgot:")
    cy(10)
    A("s_waitcnt lgkmcnt(0)")
    stamp(9)
    if dbg: A("v_writelane_b32 v63, s55, 14")
    A("v_permlane32_swap_b32 v16, v18")
    A("v_permlane32_swap_b32 v17, v19")
    A("v_add_f32 v16, v16, v18")
    A("v_add_f32 v17, v17, v19")
    A("v_lshlrev_b32 v43, 16, v43")
    A("v_permlane16_swap_b32 v16, v17")
    A("v_add_f32 v16, v16, v17")
    A("v_add_f32_dpp v16, v16, v16 row_ror:4 row_mask:0xf bank_mask:0xf")
    A("v_add_f32_dpp v16, v16, v16 row_ror:8 row_mask:0xf bank_mask:0xf")
    A("v_cvt_pk_bf16_f32 v16, v16, v16")
    A("v_lshlrev_b32 v16, 16, v16")
    A("v_add_f32 v16, v16, v62")
    A("v_cvt_pk_bf16_f32 v16, v16, v16")
    A("v_lshlrev_b32 v16, 16, v16")
    A("v_add_f32 v16, v16, v43")
    A("v_cvt_pk_bf16_f32 v16, v16, v16")
    A("s_mov_b32 exec_lo, 0x000f000f")
    A("s_mov_b32 exec_hi, 0x000f000f")
    A(f"global_store_short v42, v16, s[24:25] {ostf}")
    cy(11)
    A("s_mov_b64 exec, -1")
    A("s_cmp_lg_u32 s35, 0")
    A("s_cbranch_scc1 L_fin")
    A("s_mov_b64 exec, 1")
    A(f"global_store_dword v45, v59, s[28:29] {ostf}")
    A("s_mov_b64 exec, -1")
    if fast:
        A("s_branch L_fin")
        A("L_Pfar:")
        A("s_nop 7")
        A("v_bfi_b32 v8, s58, v59, v8")
        A(f"global_store_dwordx4 v56, v[8:11], s[28:29] {stf}")
        A("s_branch L_Pdone")
    A("L_fin:")
    if dbg:
        A("s_waitcnt vmcnt(0)")
        stamp(10)
        A("s_barrier")
        if cyc:
            for k in range(12): A(f"v_writelane_b32 v63, s{cycregs[k]}, {16+k}")
        A("s_lshl_b32 s60, s2, 2")
        A("s_add_u32 s60, s60, s3")
        A("s_lshl_b32 s60, s60, 7")
        A(f"s_add_u32 s60, s60, {WS_TS}")
        A("v_lshl_add_u32 v1, v0, 2, s60")
        A("s_mov_b32 exec_hi, 0")
        A("global_store_dword v1, v63, s[28:29]")
    A("L_end:")
    A("s_endpgm")
    pad_end("cf")
    A.raw(".p2align 7")
    A.raw(".type L_tab,@object")
    A.raw("L_tab:")
    for r in layout(lay, costs, P, fx, rotm, shuf):
        ro = r["role"]
        d0 = ro | r["rb"] << 2 | r["rh"] << 3 | r["idx"] << 6 | r["pr"] << 11 | r["sp"] << 15 | NLs[ro] << 19 | max(0, 16 * P - stops[ro]) << 23
        d1 = r["first"] | r["n"] << 16 | r["rot"] << 24
        d2 = (0, 458752, 0, 1024)[ro] * r["rh"] + 128 * r["idx"]
        d3 = (0, 896, 3584, 8192)[ro] | (0, 64, 56, 56)[ro] << 16
        A.raw(f".long {d0}, {d1}, {d2}, {d3}")
    A.raw(".size L_tab, 4096")
    A.raw('.section .rodata,"a"')
    A.raw(".p2align 6")
    A.raw(f".amdhsa_kernel {NAME}_kernel")
    A.raw("  .amdhsa_next_free_vgpr 512")
    A.raw("  .amdhsa_next_free_sgpr 96")
    A.raw("  .amdhsa_accum_offset 256")
    A.raw("  .amdhsa_group_segment_fixed_size 0")
    A.raw("  .amdhsa_kernarg_size 104")
    A.raw("  .amdhsa_user_sgpr_count 2")
    A.raw("  .amdhsa_user_sgpr_kernarg_segment_ptr 1")
    A.raw("  .amdhsa_system_sgpr_workgroup_id_x 1")
    A.raw("  .amdhsa_float_denorm_mode_32 3")
    A.raw(".end_amdhsa_kernel")
    from asmlib import Ins
    for n_, i_ in enumerate(A.L):
        if i_.is_ins and i_.target and i_.target.endswith("_top"):
            ch = i_.target[2:-4]
            A.L[n_] = Ins(f"s_branch L_{ch}{pads.count(ch)-1}")
    bad = A.check_edges(returns=[("L_rare_ret", f"L_back_{nm}") for nm in sites])
    for b in bad: print("EDGE HAZARD", b, file=sys.stderr)
    return A.text()

if __name__ == "__main__":
    import json
    kw = json.loads(sys.argv[2]) if len(sys.argv) > 2 else {}
    open(sys.argv[1], "w").write(gen(**kw))
    import subprocess, re
    subprocess.run(["clang", "-x", "assembler", "-target", "amdgcn-amd-amdhsa", "-mcpu=gfx950", "-c", sys.argv[1], "-o", "_g.o"], check=True)
    sy = subprocess.run(["llvm-objdump", "-t", "_g.o"], capture_output=True, text=True).stdout
    ch = {}
    for l in sy.splitlines():
        m = re.match(r"([0-9a-f]+) .* L_(c[a-z])(\d+|_end)$", l)
        if m: ch.setdefault(m.group(2), []).append(int(m.group(1), 16))
    for k, v in ch.items():
        v.sort()
        d = [(b_ - 1) // 64 - a // 64 for a, b_ in zip(v, v[1:])]
        print(k, "pad spans (lines):", d, "TOO FAR" if max(d) > 16 else "", file=sys.stderr)
```

```python
import sys, struct
from asmlib import Asm
NAME = "sequential_preLN__gqa_block_cached__dense_activation_squared_relu__decode"

def f2u(x): return struct.unpack("<I", struct.pack("<f", x))[0]

WS_EP = 0x0
WS_QG = 0x1000
WS_REC = 0x10000
WS_ML = 0x90000
WS_H = 0xA0000
WS_P = 0xB0000
WS_CT = 0xD0000
WS_TS = 0x100000
L_WT = 0
L_WT2 = 57344
L_SB = 147456
L_SM = 158464
L_XN = L_SM
L_QB = L_SM + 2048
L_OB = 147456
L_HB = L_SM + 4096
L_FL = L_SM + 3072
L_UB = L_SM + 5120
L_ZB = L_SM + 5248
L_END = L_SM + 5376

SPIN = 1 << 19
CEXP = f2u(0.0625 * 1.4426950408889634)

def layout(lay="floc", costs=(0, 1.3, 4.0, 1.7), P=5, fx=(0, 4), rotm=1, shuf=9, **_):
    W = []
    for wg in range(256):
        x, j = wg & 7, wg >> 3
        r = dict(role=0, rb=0, rh=0, idx=0, rot=j)
        if lay == "old":
            sp = j >> 1
            r.update(rb=j & 1, rh=x)
            if sp < 7: r.update(role=1, idx=sp)
            elif (sp - 7) * 8 + x < 28: r.update(role=2, idx=(sp - 7) * 8 + x)
            elif sp >= 12: r.update(role=3, idx=j - 24)
        else:
            rest = [k for k in range(8) if k not in fx]
            two, one = [rest[0], rest[3]], [rest[1], rest[2], rest[4], rest[5]]
            if x in fx:
                if j < 28: r.update(role=2, rb=fx.index(x), idx=j)
            elif x in two:
                if j < 28: r.update(role=1, rh=2 * two.index(x) + j // 14, rb=(j % 14) & 1, idx=(j % 14) >> 1)
            else:
                xi = one.index(x)
                if j < 14: r.update(role=1, rh=4 + xi, rb=j & 1, idx=j >> 1)
                elif j < 30: r.update(role=3, rh=(16 * xi + j - 14) >> 3, idx=(j - 14) & 7)
        W.append(r)
    load = [0.0] * 16; mem = [[] for _ in range(16)]
    for x in range(8):
        ws = sorted((wg for wg in range(256) if wg & 7 == x), key=lambda wg: -costs[W[wg]["role"]])
        cnt = [0] * 16
        for wg in ws:
            g = min((g for g in range(16) if cnt[g] < 2), key=lambda g: (load[g], (g - 2 * x) % 16))
            cnt[g] += 1; load[g] += costs[W[wg]["role"]]; mem[g].append(wg)
    if shuf == 9:
        load = [0.0] * 16; mem = [[] for _ in range(16)]
        for wg in range(256):
            g = ((wg >> 3) & 1) * 8 + (((wg & 7) + (wg >> 4)) & 7)
            mem[g].append(wg); load[g] += costs[W[wg]["role"]]
    for g in range(16):
        if shuf == 1: mem[g] = mem[g][g:] + mem[g][:g]
        if shuf == 2:
            m = mem[g][0::2] + mem[g][1::2]
            mem[g] = m[g // 2:] + m[:g // 2]
        tot = 2048 - 16 * P
        base = (tot + load[g]) / 16
        want = [base - costs[W[wg]["role"]] for wg in mem[g]]
        n = [int(w) for w in want]
        for k in sorted(range(16), key=lambda k: n[k] - want[k])[: tot - sum(n)]: n[k] += 1
        st = 0
        for k, wg in enumerate(mem[g]):
            W[wg].update(pr=g, sp=k, first=st, n=n[k])
            if rotm == 1: W[wg]["rot"] = ((wg >> 3) - st) % 32
            if rotm == 2: W[wg]["rot"] = (2 * (wg >> 3) + (wg & 1) - st) % 64
            if rotm == 3: W[wg]["rot"] = ((wg >> 3) + 4 * (wg & 7) - st) % 32
            st += n[k]
        assert st == tot
    return W

def gen(dbg=False, kflags="nt", vflags="nt", wflags="nt", PD=22, DD=24, vperm=True, warm=True,
        lay='floc', costs=(0, 1.3, 4.0, 1.7), fx=(0, 4), stops=(0, 0, 0, 0), fast=True, fflags='', rotm=1, shuf=9, ostf='sc1', rows=(9, 10, 11, 16), rot=True, round_scores=True, NLs=(12, 6, 0, 6), prog=False, D=22, DV=None, CL=3, skip="",
        pollpos=64, dmau=8, P=5, prot=4, early=False, touch=True, slp=0, d2=1, d3=2, cyc=False, stf="sc1", ldf="sc1"):
    A = Asm()
    nextra = 3
    def stamp(k):
        if dbg and not (cyc and k in (7, 8, 9)):
            A("s_memrealtime s[92:93]")
            A("s_waitcnt lgkmcnt(0)")
            A(f"v_writelane_b32 v63, s92, {k}")
    cycregs = [64, 66, 68, 70, 72, 74, 76, 78, 84, 86, 88, 90]
    def cy(k):
        if cyc: A(f"s_memtime s[{cycregs[k]}:{cycregs[k]+1}]")
    pads = []
    def pad(chain):
        if not warm: return
        n = sum(1 for p in pads if p == chain)
        pads.append(chain)
        A(f"L_{chain}{n}:")
        A(f"s_cbranch_execz L_{chain}{n-1}" if n else f"s_cbranch_execz L_{chain}_ret")
    def pad_end(chain):
        if warm: A(f"L_{chain}_end:")
    def gap():
        if warm:
            A.raw(".p2alignl 12, 0xbf810000")
    def run_chain(chain):
        if not warm: return
        A("s_mov_b64 exec, 0")
        A(f"s_branch L_{chain}_top")
        A(f"L_{chain}_ret:")
        A("s_mov_b64 exec, -1")
    def fin():
        A("s_branch L_fin" if dbg else "s_endpgm")
    def tr_addr(v, row, c8, t):
        A(f"v_lshrrev_b32 {row}, 2, v60")
        A(f"v_lshl_add_u32 {row}, v61, 3, {row}")
        A(f"v_and_b32 {c8}, 3, v60")
        A(f"v_lshlrev_b32 {c8}, 3, {c8}")
        A(f"v_bfe_u32 {t}, v0, 3, 2")
        A(f"v_xor_b32 {t}, s3, {t}")
        A(f"v_lshl_add_u32 {v}, {row}, 7, {c8}")
        A(f"v_lshl_add_u32 {v}, {t}, 5, {v}")
    def tags():
        A("s_mul_i32 s50, s50, 0x9e3779b1")
        A("s_mul_i32 s51, s51, 0x9e3779b1")
        A("s_add_u32 s50, s50, 0x7f4a7c15")
        A("s_add_u32 s51, s51, 0x7f4a7c15")
        A("s_cmp_eq_u32 s31, 0")
        A("s_cselect_b32 s59, s50, s51")
        A("s_cmp_lt_u32 s76, 8")
        A("s_cselect_b32 s49, s50, s51")
    def sel4(dst, vals):
        A(f"s_mov_b32 {dst}, {vals[0]}")
        for r in (1, 2, 3):
            if vals[r] != vals[0]:
                A(f"s_cmp_eq_u32 s34, {r}")
                A(f"s_cselect_b32 {dst}, {vals[r]}, {dst}")

    A.raw(f"; @launch grid=(256,1,1) block=(256,1,1) lds={L_END}")
    A.raw('.amdgcn_target "amdgcn-amd-amdhsa--gfx950"')
    A.raw(".text")
    A.raw(f".globl {NAME}_kernel")
    A.raw(".p2align 8")
    A.raw(f".type {NAME}_kernel,@function")
    A.raw(f"{NAME}_kernel:")
    A("s_cmp_ge_u32 s2, 256")
    A("s_cbranch_scc1 L_end")
    A("s_load_dwordx16 s[4:19], s[0:1], 0")
    A("s_load_dwordx8 s[20:27], s[0:1], 64")
    A("s_load_dwordx2 s[28:29], s[0:1], 96")
    if dbg:
        A("v_mov_b32 v63, 0")
        A("s_memrealtime s[92:93]")
    A("s_getpc_b64 s[72:73]")
    A("L_pc0:")
    A("s_add_u32 s72, s72, L_tab-L_pc0")
    A("s_addc_u32 s73, s73, 0")
    A("s_lshl_b32 s60, s2, 4")
    A("s_load_dwordx4 s[84:87], s[72:73], s60")
    A("v_lshrrev_b32 v1, 6, v0")
    A("v_and_b32 v0, 63, v0")
    A("v_readfirstlane_b32 s3, v1")
    A("v_and_b32 v60, 15, v0")
    A("v_lshrrev_b32 v61, 4, v0")
    def decode():
        A("s_bfe_u32 s30, s84, 0x30003")
        A("s_bfe_u32 s31, s84, 0x10002")
        A("s_lshl_b32 s33, s31, 3")
        A("s_or_b32 s33, s33, s30")
        A("s_bfe_u32 s35, s84, 0x50006")
        A("s_bfe_u32 s76, s84, 0x4000b")
        A("s_and_b32 s75, s76, 7")
        A("s_bfe_u32 s32, s84, 0x4000f")
    A("s_cmp_lg_u32 s3, 0")
    A("s_cbranch_scc1 L_help")

    A("s_mov_b32 s47, 0x20000")
    A("v_lshrrev_b32 v8, 3, v0")
    A("v_and_b32 v9, 7, v0")
    A("v_lshlrev_b32 v9, 4, v9")
    A("v_and_b32 v10, 16, v0")
    A("v_lshlrev_b32 v10, 1, v10")
    A("v_xor_b32 v9, v9, v10")
    A("s_mov_b32 s67, 64")
    A(f"s_mov_b32 m0, {L_WT}")
    smask = sum(1 << b for b in range(9, 24) if b not in rows)
    A("v_and_b32 v44, 1, v0")
    A("v_lshlrev_b32 v44, 4, v44")
    A("v_lshl_add_u32 v44, v61, 5, v44")
    for k, rb in ((1, rows[2]), (2, rows[0]), (3, rows[1])):
        A(f"v_bfe_u32 v3, v0, {k}, 1")
        A(f"v_lshl_add_u32 v44, v3, {rb}, v44")
    A("v_add_u32 v45, 128, v44")
    A(f"v_add_u32 v46, {1 << rows[3]}, v44")
    A("v_add_u32 v47, 128, v46")
    def pdep(reg, tmp):
        segs = []; src = 0; b = 9
        while b < 24:
            if smask >> b & 1:
                e = b
                while e < 24 and smask >> e & 1: e += 1
                segs.append((src, e - b, b)); src += e - b; b = e
            else: b += 1
        for n_ in range(len(segs) - 1, 0, -1):
            sb, _, db = segs[n_]; gapw = db - (segs[n_-1][2] + segs[n_-1][1])
            A(f"s_lshr_b32 {tmp}, {reg}, {sb}")
            A(f"s_mul_i32 {tmp}, {tmp}, {((1 << gapw) - 1) << sb}")
            A(f"s_add_u32 {reg}, {reg}, {tmp}")
        A(f"s_lshl_b32 {reg}, {reg}, {segs[0][2]}")
    A("s_mov_b32 s38, 0x1000000")
    A("s_mov_b32 s39, 0x20000")
    A("s_mov_b32 s46, 3670016")
    A("s_waitcnt lgkmcnt(0)")
    if dbg: A("v_writelane_b32 v63, s92, 0")
    A("s_load_dwordx2 s[50:51], s[28:29], 0")
    A("s_and_b32 s34, s84, 3")
    A("s_cbranch_scc0 L_nodma")
    A("s_and_b32 s64, s87, 0xffff")
    A("v_mad_u32_u24 v8, v8, s64, v9")
    A("s_lshl_b32 s64, s64, 3")
    A("s_lshr_b32 s66, s87, 16")
    A("s_mov_b32 s65, s86")
    A("s_cmp_eq_u32 s34, 2")
    A("s_cselect_b64 s[44:45], s[16:17], s[12:13]")
    A("s_cselect_b32 s46, 1605632, s46")
    A("s_cmp_eq_u32 s34, 3")
    A("s_cselect_b64 s[44:45], s[10:11], s[44:45]")
    A("s_and_b32 s45, s45, 0xffff")
    if "d" in skip:
        A("s_cmp_lg_u32 s34, 3")
        A("s_cbranch_scc1 L_nodma")
    A("L_dma:")
    if dmau == 1:
        A(f"s_waitcnt vmcnt({DD-1})")
        A(f"buffer_load_dwordx4 v8, s[44:47], s65 offen {wflags} lds")
        A("v_xor_b32 v8, s67, v8")
        A("s_add_u32 m0, m0, 1024")
        A("s_add_u32 s65, s65, s64")
        A("s_sub_u32 s66, s66, 1")
        A("s_cmp_lg_u32 s66, 0")
        A("s_cbranch_scc1 L_dma")
    else:
        A("v_xor_b32 v9, s67, v8")
        A("s_sub_u32 s74, s64, 1024")
        def dmaloop(lab, fl):
            A(f"{lab}:")
            for h in range(2):
                A(f"s_waitcnt vmcnt({DD-4})")
                for k in range(4):
                    A(f"buffer_load_dwordx4 {'v9' if k & 1 else 'v8'}, s[44:47], s65 offen offset:{1024*k} {fl} lds")
                    A("s_add_u32 s65, s65, s74")
                A("s_add_u32 m0, m0, 4096")
                A("s_add_u32 s65, s65, 4096")
            A("s_sub_u32 s66, s66, 8")
            A("s_cmp_lg_u32 s66, 0")
            A(f"s_cbranch_scc1 {lab}")
        if fflags is not None and fflags != wflags:
            A("s_cmp_eq_u32 s34, 2")
            A("s_cbranch_scc1 L_dma2")
            dmaloop("L_dma1", wflags)
            A("s_branch L_nodma")
            dmaloop("L_dma2", fflags)
        else:
            dmaloop("L_dma1", wflags)
    A("s_cmp_lg_u32 s34, 2")
    A("s_cbranch_scc1 L_nodma")
    A("s_cmp_eq_u32 s67, 0")
    A("s_cbranch_scc1 L_nodma")
    A("s_mov_b32 s44, s20")
    A("s_and_b32 s45, s21, 0xffff")
    A("s_mul_i32 s65, s86, 448")
    A("s_movk_i32 s64, 1024")
    A("s_mov_b32 s67, 0")
    A("s_mov_b32 s66, 56")
    A("v_lshlrev_b32 v8, 4, v0")
    A("s_branch L_dma")
    A("L_nodma:")
    decode()
    A("s_lshl_b32 s56, s76, 24")
    A("s_add_u32 s36, s6, s56")
    A("s_addc_u32 s37, s7, 0")
    A("s_and_b32 s37, s37, 0xffff")
    A("s_bfe_u32 s55, s85, 0x80010")
    A("s_and_b32 s52, s85, 0xffff")
    A("s_add_u32 s53, s52, s55")
    A("s_lshr_b32 s54, s85, 24")
    A("s_add_u32 s54, s54, s52")
    pdep("s54", "s60")
    A(f"s_mov_b32 s71, {smask}")
    DV_ = DV or D
    ring = [("a", 0), ("a", 32), ("a", 64)]
    stage = ("a", 96)
    park = [("a", 128 + 32 * k) for k in range(4)] + [("v", 128 + 32 * k) for k in range(4)]
    NP = len(park)
    def R4(slot, k):
        c, b = slot
        return f"{c}[{b+4*k}:{b+4*k+3}]"
    def ld(slot, u): A(f"buffer_load_dwordx4 {R4(slot, u)}, v{44+(u>>1)}, s[36:39], s54 offen offset:{256*(u&1)} {kflags}")
    def adv():
        A("s_orn2_b32 s54, s54, s71")
        A("s_add_u32 s54, s54, 1")
        A("s_and_b32 s54, s54, s71")
        A("s_cmp_eq_u32 s54, s53")
        A("s_cselect_b32 s54, s52, s54")
    def qpoll():
        A(f"global_load_dwordx4 v[88:91], v83, s[28:29] {ldf}")
        A(f"global_load_dwordx4 v[92:95], v83, s[28:29] offset:1024 {ldf}")
    def qcheck():
        A("v_cmp_ne_u32 s[60:61], s49, v89")
        A("v_cmp_ne_u32 s[62:63], s49, v91")
        A("v_cmp_ne_u32 s[64:65], s49, v93")
        A("v_cmp_ne_u32 vcc, s49, v95")
        A("s_or_b64 s[60:61], s[60:61], s[62:63]")
        A("s_or_b64 vcc, vcc, s[64:65]")
        A("s_or_b64 vcc, vcc, s[60:61]")
    nissued = 0
    PW = PD - 2
    for slot in park + ring:
        if slot == ring[0]:
            A("s_cmp_eq_u32 s68, 0")
            A("s_cbranch_scc1 L_pfl_end")
            A("L_pfl:")
            for u in range(8):
                A(f"s_add_u32 m0, s69, {1024 * u - 256 * (u & 1)}")
                if u % 2 == 0: A(f"s_waitcnt vmcnt({PW})")
                A(f"buffer_load_dwordx4 v{44+(u>>1)}, s[36:39], s54 offen offset:{256*(u&1)} {kflags} lds")
            adv()
            A("s_add_u32 s69, s69, 0x2000")
            A("s_sub_u32 s68, s68, 1")
            A("s_cmp_lg_u32 s68, 0")
            A("s_cbranch_scc1 L_pfl")
            A("L_pfl_end:")
            qpoll()
        for u in range(8):
            if nissued % 2 == 0: A(f"s_waitcnt vmcnt({PW})")
            if nissued == PW:
                A("s_waitcnt lgkmcnt(0)")
                tags()
                A("s_cmp_lg_u32 s34, 3")
                A("s_cbranch_scc1 L_qc_ret0")
                A("s_call_b64 s[62:63], L_qc")
                A("L_qc_ret0:")
            if nissued == PW + 2:
                A("v_and_b32 v21, 1, v60")
                A("v_mov_b32 v22, 0xffff")
                A("v_lshlrev_b32 v85, 4, v21")
                A("v_lshlrev_b32 v22, v85, v22")
                A("v_bfe_u32 v21, v60, 1, 2")
                for kk in range(4):
                    A(f"v_cmp_eq_u32 vcc, {kk}, v21")
                    A(f"v_cndmask_b32 v{4+kk}, 0, v22, vcc")
                A("v_mov_b32 v58, 0xff7f0000")
                A("v_mov_b32 v57, 0")
                for kk in range(32, 40): A(f"v_mov_b32 v{kk}, 0")
                A(f"s_mov_b32 s57, 0x{CEXP:x}")
                A("s_mov_b32 s58, 0")
                if dbg: A("s_mov_b32 s83, 0")
                A("v_lshrrev_b32 v21, 3, v60")
                A("v_lshl_add_u32 v85, v21, 9, v85")
                A("v_lshl_add_u32 v85, v61, 5, v85")
                A(f"v_add_u32 v85, {L_QB}, v85")
                A("v_lshl_add_u32 v2, v61, 1, v21")
                A("v_lshlrev_b32 v2, 3, v2")
                A(f"v_add_u32 v2, {L_SB}, v2")
                A("v_mov_b32 v3, v2")
            if nissued == PW + 4:
                A("s_lshl_b32 s60, s76, 11")
                A(f"s_add_u32 s60, s60, {WS_QG}")
                A("v_lshl_add_u32 v83, v0, 4, s60")
                A("v_lshlrev_b32 v84, 3, v0")
                A(f"v_add_u32 v84, {L_QB}, v84")
                A("v_lshrrev_b32 v80, 1, v61")
                A("v_lshlrev_b32 v80, 10, v80")
                A("v_lshl_add_u32 v80, v60, 5, v80")
                A("v_and_b32 v81, 1, v61")
                A("v_lshl_add_u32 v80, v81, 4, v80")
                A("s_lshl_b32 s60, s76, 15")
                A("s_lshl_b32 s61, s32, 11")
                A("s_add_u32 s60, s60, s61")
                A(f"s_add_u32 s60, s60, {WS_REC}")
                A("v_add_u32 v80, s60, v80")
                A("s_lshl_b32 s60, s76, 9")
                A("s_lshl_b32 s61, s32, 4")
                A("s_add_u32 s60, s60, s61")
                A(f"s_add_u32 s60, s60, {WS_ML}")
                A("v_lshl_add_u32 v81, v0, 5, s60")
                A("s_lshl_b32 s77, s76, 8")
                A(f"s_add_u32 s77, s77, {WS_CT}")
                A(f"s_mul_i32 s82, s76, {prot}")
            if nissued == PW + 6:
                for k in range(4): A(f"v_mov_b32 v{48+k}, v{44+k}")
                A("v_lshlrev_b32 v52, 4, v60")
                for k in range(2):
                    A(f"v_bfe_u32 v21, v61, {k}, 1")
                    A(f"v_lshl_add_u32 v52, v21, {rows[k]}, v52")
                for r in range(1, 4): A(f"v_add_u32 v{52+r}, {(r & 1) << rows[2] | (r >> 1) << rows[3]}, v52")
                A("s_mov_b64 s[42:43], s[36:37]")
                A("s_add_u32 s40, s8, s56")
                A("s_addc_u32 s41, s9, 0")
                A("s_and_b32 s41, s41, 0xffff")
                A("s_bfe_u32 s68, s84, 0x40013")
                A("s_bfe_u32 s48, s84, 0x80017")
                sel4("s69", (0, 65536, 114688, 65536))
                A("v_lshl_add_u32 v82, v0, 4, s69")
                A(f"s_add_u32 s70, s68, {NP}")
                A("v_lshl_add_u32 v1, s70, 6, v2")
                A("s_sub_u32 s72, s55, s70")
                A("s_sub_u32 s73, s72, 3")
                A("s_mov_b32 s79, 0")
                A("s_mov_b32 s75, 0")
            ld(slot, u)
            nissued += 1
        if nissued == 8:
            A("s_mov_b32 s74, s54")
            pdep("s52", "s60")
            pdep("s53", "s60")
        adv()
    stamp(1)
    A("s_waitcnt vmcnt(24)")
    A(f"s_mov_b32 s66, {SPIN}")
    A("s_branch L_qchk")
    A("L_qpoll:")
    qpoll()
    A("s_sub_u32 s66, s66, 1")
    A("s_cbranch_scc1 L_qgot")
    A("s_waitcnt vmcnt(0)")
    A("L_qchk:")
    qcheck()
    A("s_cbranch_scc1 L_qpoll")
    A("L_qgot:")
    A("ds_write2_b32 v84, v88, v90 offset0:0 offset1:1")
    A("ds_write2_b32 v84, v92, v94 offset0:128 offset1:129")
    A("s_waitcnt lgkmcnt(0)")
    for u, ci in enumerate((0, 2, 1, 3)):
        A(f"ds_read_b128 v[{64+4*u}:{67+4*u}], v85 offset:{128*ci}")
    A("s_waitcnt lgkmcnt(0)")
    if dbg: A("v_writelane_b32 v63, s66, 5")
    stamp(2)
    A("s_branch L_k0")
    gap()

    def hook(name):
        A("s_sub_u32 s73, s73, 1")
        A(f"s_cbranch_scc1 L_ls_{name}")
        A(f"L_lb_{name}:")
    def fold(h):
        for c in range(2):
            A(f"v_mov_b32_dpp v{16+2*h+c}, v{8+4*h+2*c} quad_perm:[0,0,2,2] row_mask:0xf bank_mask:0xf")
        A("s_nop 0")
        for c in range(2):
            A(f"v_add_f32_dpp v{16+2*h+c}, v{9+4*h+2*c}, v{16+2*h+c} quad_perm:[1,1,3,3] row_mask:0xf bank_mask:0xf")
        A(f"v_cvt_pk_bf16_f32 v{20+h}, v{16+2*h}, v{17+2*h}")
        A(f"v_max3_f32 v58, v{16+2*h}, v{17+2*h}, v58")
    def kstep(slot, loads, sa):
        for u in range(8):
            d = 8 + 4 * (u >> 2)
            if loads: A(f"s_waitcnt vmcnt({D-1})")
            A(f"v_mfma_f32_16x16x32_bf16 v[{d}:{d+3}], {R4(slot, u)}, v[{64+4*(u&3)}:{67+4*(u&3)}], {'0' if u & 3 == 0 else f'v[{d}:{d+3}]'}")
            if loads: ld(slot, u)
        if loads: adv()
        fold(0)
        fold(1)
        A(f"ds_write_b64 {sa}, v[20:21]")
        A(f"v_add_u32 {sa}, 64, {sa}")
    def vstep(slot):
        A("s_waitcnt lgkmcnt(1)")
        A("v_lshlrev_b32 v16, 16, v22")
        A("v_and_b32 v17, 0xffff0000, v22")
        A("v_lshlrev_b32 v18, 16, v23")
        A("v_and_b32 v19, 0xffff0000, v23")
        A("v_add_u32 v3, 64, v3")
        for r in range(4): A(f"v_sub_f32 v{16+r}, v{16+r}, v56")
        A("ds_read_b64 v[22:23], v3")
        A("ds_read_b32 v62, v3")
        for r in range(4): A(f"v_mul_f32 v{16+r}, s57, v{16+r}")
        for r in range(4): A(f"v_exp_f32 v{16+r}, v{16+r}")
        A("v_cvt_pk_bf16_f32 v40, v16, v16")
        def mkA(r):
            for k in range(4): A(f"v_and_b32 v{24+4*(r&1)+k}, v{40+r}, v{4+k}")
        mkA(0)
        A("v_cvt_pk_bf16_f32 v41, v17, v17")
        for r in range(4):
            a = 24 + 4 * (r & 1)
            A(f"s_waitcnt vmcnt({DV_-1})")
            A(f"v_mfma_f32_16x16x32_bf16 v[32:35], v[{a}:{a+3}], {R4(slot, 2*r)}, v[32:35]")
            ld(slot, 2 * r)
            if r < 3: mkA(r + 1)
            A(f"s_waitcnt vmcnt({DV_-1})")
            A(f"v_mfma_f32_16x16x32_bf16 v[36:39], v[{a}:{a+3}], {R4(slot, 2*r+1)}, v[36:39]")
            ld(slot, 2 * r + 1)
            if r == 0:
                A("v_cvt_pk_bf16_f32 v42, v18, v18")
                A("v_add_f32 v16, v16, v17")
            if r == 1:
                A("v_cvt_pk_bf16_f32 v43, v19, v19")
                A("v_add_f32 v18, v18, v19")
            if r == 2:
                A("v_add_f32 v16, v16, v18")
                A("v_add_f32 v57, v57, v16")
    for i, slot in enumerate(ring):
        if i != 1: pad("ca")
        A(f"L_k{i}:")
        hook(f"k{i}")
        kstep(slot, True, "v1")
        A("s_sub_u32 s72, s72, 1")
        A("s_cmp_eq_u32 s72, 0")
        A(f"s_cbranch_scc1 L_mid{(i+1)%3}")
    A("s_add_u32 s58, s58, 1")
    A("s_cmp_gt_u32 s58, s70")
    A("s_cbranch_scc1 L_k0")
    for i in range(NP):
        A(f"s_cmp_eq_u32 s58, {i+1}")
        A(f"s_cbranch_scc1 L_x{i}")
    A("s_branch L_xs")
    pad_end("ca")
    gap()
    def stage_reads():
        A("s_cmp_eq_u32 s58, s70")
        A("s_cbranch_scc1 L_k0")
        for k in range(8): A(f"ds_read_b128 {R4(stage, k)}, v82 offset:{1024*k}")
        A("v_add_u32 v82, 0x2000, v82")
    for i in range(NP):
        if i % 5 == 0: pad("cx")
        A(f"L_x{i}:")
        kstep(park[i], False, "v2")
        A("s_branch L_k0" if i < NP - 1 else "s_branch L_xr")
    A("L_xs:")
    A("s_waitcnt lgkmcnt(0)")
    kstep(stage, False, "v2")
    A("L_xr:")
    stage_reads()
    A("s_branch L_k0")
    pad_end("cx")
    gap()
    for i, slot in enumerate(ring):
        if i != 1: pad("cv")
        A(f"L_v{i}:")
        hook(f"v{i}")
        vstep(slot)
        A("s_sub_u32 s72, s72, 1")
        A("s_cmp_eq_u32 s72, 0")
        A(f"s_cbranch_scc1 L_nxt{(i+1)%3}")
        adv()
    A("s_branch L_v0")
    for i in range(3):
        A(f"L_nxt{i}:")
        A("s_sub_u32 s75, s75, 1")
        A("s_cbranch_scc1 L_sdone")
        A("s_mov_b32 s72, 1")
        A(f"s_branch L_k{i}")
    for i in range(3):
        A(f"L_mid{i}:")
        A("s_call_b64 s[62:63], L_mid")
        A(f"s_branch L_v{i}")
    for nm in ("k0", "k1", "k2", "v0", "v1", "v2"):
        A(f"L_ls_{nm}:")
        A("s_call_b64 s[62:63], L_ls")
        A(f"s_branch L_lb_{nm}")
    pad("cv")
    A("L_mid:")
    A("s_cmp_ge_u32 s79, 2")
    A("s_cbranch_scc1 L_midp")
    stamp(4)
    A("ds_read_b64 v[22:23], v3")
    A("ds_read_b32 v62, v3")
    A("v_mov_b32 v59, v58")
    A("s_mov_b32 s72, s55")
    A("v_permlane32_swap_b32 v59, v58")
    A("v_max_f32 v58, v58, v59")
    A("v_mov_b32 v59, v58")
    A("v_permlane16_swap_b32 v59, v58")
    A("v_max_f32 v58, v58, v59")
    A("v_cvt_pk_bf16_f32 v56, v58, v58")
    A("v_lshlrev_b32 v56, 16, v56")
    A("L_mid_ret:")
    A("s_setpc_b64 s[62:63]")
    A("L_midp:")
    A("s_waitcnt lgkmcnt(1)")
    A("v_mov_b32 v22, v20")
    A("v_mov_b32 v23, v21")
    A("v_subrev_u32 v1, 64, v1")
    A("v_subrev_u32 v3, 64, v3")
    A("v_cvt_pk_bf16_f32 v18, v58, v58")
    A("v_lshlrev_b32 v18, 16, v18")
    A("s_mov_b32 s72, 1")
    A("v_cmp_gt_f32 vcc, v18, v56")
    A("s_cbranch_vccz L_mid_ret")
    A("v_mov_b32 v59, v18")
    A("v_permlane32_swap_b32 v59, v18")
    A("v_max_f32 v18, v18, v59")
    A("v_mov_b32 v59, v18")
    A("v_permlane16_swap_b32 v59, v18")
    A("v_max3_f32 v18, v18, v59, v56")
    A("v_sub_f32 v59, v56, v18")
    A("v_mul_f32 v59, s57, v59")
    A("v_exp_f32 v59, v59")
    A("v_mov_b32 v56, v18")
    A("v_mul_f32 v57, v57, v59")
    A("v_readlane_b32 s60, v59, 0")
    A("v_readlane_b32 s61, v59, 8")
    A("v_mov_b32 v59, s60")
    A("s_mov_b32 exec_lo, 0")
    A("v_mov_b32 v59, s61")
    A("s_mov_b64 exec, -1")
    for k in range(32, 40): A(f"v_mul_f32 v{k}, v{k}, v59")
    A("L_mid_ret2:")
    A("s_setpc_b64 s[62:63]")
    npool = 16 * P
    A("L_ls:")
    A("s_cmp_eq_u32 s79, 2")
    A("s_cbranch_scc1 L_ls2")
    A("s_cmp_eq_u32 s79, 1")
    A("s_cbranch_scc1 L_ls1")
    A("s_mov_b64 s[36:37], s[40:41]")
    for k in range(4): A(f"v_mov_b32 v{44+k}, v{52+k}")
    A("s_mov_b32 s54, s74")
    A(f"s_sub_u32 s60, s55, {1 + CL}")
    A("s_cmp_eq_u32 s79, 0")
    A("s_cselect_b32 s73, s60, 0")
    A("s_cselect_b32 s79, 1, 2")
    A("s_setpc_b64 s[62:63]")
    A("L_ls1:")
    A(f"s_mov_b32 s73, {CL - 1}")
    A("s_mov_b32 s79, 2")
    A("s_branch L_claim")
    A("L_ls2:")
    A("s_waitcnt lgkmcnt(0)")
    A(f"s_cmp_ge_u32 s78, {npool}")
    A("s_cbranch_scc1 L_ls_end")
    if dbg: A("s_add_u32 s83, s83, 1")
    A("s_add_u32 s54, s78, s82")
    A(f"s_cmp_ge_u32 s54, {npool}")
    A(f"s_cselect_b32 s60, {npool}, 0")
    A("s_sub_u32 s54, s54, s60")
    A(f"s_add_u32 s54, s54, {2048 - npool}")
    pdep("s54", "s60")
    A("s_mov_b32 s74, s54")
    A("s_mov_b64 s[36:37], s[42:43]")
    for k in range(4): A(f"v_mov_b32 v{44+k}, v{48+k}")
    A("s_add_u32 s75, s75, 1")
    A("s_mov_b32 s73, 0")
    A("s_mov_b32 s79, 3")
    if any(stops):
        A("s_cmp_ge_u32 s78, s48")
        A("s_movk_i32 s78, 0x7fff")
        A("s_cbranch_scc1 L_ls_ret")
    A("L_claim:")
    A("s_mov_b32 s78, 1")
    A("s_atomic_add s78, s[28:29], s77 glc")
    A("L_ls_ret:")
    A("s_setpc_b64 s[62:63]")
    A("L_ls_end:")
    A("s_mov_b32 s38, 0")
    A("s_movk_i32 s73, 0x7fff")
    A("s_setpc_b64 s[62:63]")
    A("L_sdone:")
    stamp(3)
    if dbg: A("v_writelane_b32 v63, s83, 13")
    A("v_mov_b32 v21, v57")
    A("v_mov_b32 v24, v56")
    A("v_mov_b32 v26, s49")
    A("v_permlane32_swap_b32 v21, v57")
    A("s_movk_i32 s61, 0xff")
    A("v_add_f32 v57, v57, v21")
    A("v_mov_b32 v21, v57")
    A("v_bfi_b32 v32, s61, v26, v32")
    A(f"global_store_dwordx4 v80, v[32:35], s[28:29] {stf}")
    A("v_permlane16_swap_b32 v21, v57")
    A("v_bfi_b32 v36, s61, v26, v36")
    A(f"global_store_dwordx4 v80, v[36:39], s[28:29] offset:512 {stf}")
    A("v_add_f32 v25, v57, v21")
    A("s_mov_b64 exec, 0x101")
    A(f"global_store_dwordx4 v81, v[24:27], s[28:29] {stf}")
    A("s_mov_b64 exec, -1")
    A("s_sub_u32 s60, s34, 1")
    A("s_cmp_lt_u32 s60, 2")
    A("s_cbranch_scc1 L_tail")
    fin()
    pad_end("cv")

    def reduce_sum(v, t, width):
        for sh in (8, 4, 2, 1):
            A(f"v_add_f32_dpp v{v}, v{v}, v{v} row_ror:{sh} row_mask:0xf bank_mask:0xf")
        A(f"v_mov_b32 v{t}, v{v}")
        A(f"v_permlane16_swap_b32 v{t}, v{v}")
        A(f"v_add_f32 v{v}, v{v}, v{t}")
        if width == 64:
            A(f"v_mov_b32 v{t}, v{v}")
            A(f"v_permlane32_swap_b32 v{t}, v{v}")
            A(f"v_add_f32 v{v}, v{v}, v{t}")
    def layernorm(X, D_, npair, T, width, out, emask=None):
        P = lambda r: f"v[{r}:{r+1}]"
        if width == 64:
            A(f"v_readfirstlane_b32 s60, v{X}")
            A(f"s_mov_b64 exec, {emask}")
            A("s_mov_b32 s61, s60")
            for i in range(npair):
                A(f"v_pk_add_f32 {P(D_+2*i)}, {P(X+2*i)}, s[60:61] neg_lo:[0,1] neg_hi:[0,1]")
            A(f"v_pk_add_f32 {P(T+4)}, {P(D_)}, {P(D_+2)}")
            A(f"v_pk_mul_f32 {P(T+6)}, {P(D_)}, {P(D_)}")
            for i in range(1, npair):
                if i >= 2: A(f"v_pk_add_f32 {P(T+4)}, {P(T+4)}, {P(D_+2*i)}")
                A(f"v_pk_fma_f32 {P(T+6)}, {P(D_+2*i)}, {P(D_+2*i)}, {P(T+6)}")
            A(f"v_add_f32 v{T}, v{T+4}, v{T+5}")
            A(f"v_add_f32 v{T+2}, v{T+6}, v{T+7}")
            A("s_mov_b64 exec, -1")
            for sh in (8, 4, 2, 1):
                for v in (T, T + 2):
                    A(f"v_add_f32_dpp v{v}, v{v}, v{v} row_ror:{sh} row_mask:0xf bank_mask:0xf")
            A(f"v_permlane32_swap_b32 v{T}, v{T+2}")
            A(f"v_add_f32 v{T}, v{T}, v{T+2}")
            A(f"v_mov_b32 v{T+2}, v{T}")
            A(f"v_permlane16_swap_b32 v{T+2}, v{T}")
            A(f"v_add_f32 v{T}, v{T}, v{T+2}")
            A(f"v_mul_f32 v{T}, 0x{f2u(1.0/448):x}, v{T}")
            A(f"v_mov_b32 v{T+2}, v{T}")
            A(f"v_permlane32_swap_b32 v{T}, v{T+2}")
            A(f"v_fma_f32 v{T+2}, -v{T}, v{T}, v{T+2}")
            A(f"v_add_f32 v{T}, s60, v{T}")
            A(f"v_max_f32 v{T+2}, 0, v{T+2}")
        else:
            A(f"v_pk_add_f32 {P(T+4)}, {P(X)}, {P(X+2)}")
            for i in range(2, npair): A(f"v_pk_add_f32 {P(T+4)}, {P(T+4)}, {P(X+2*i)}")
            A(f"v_add_f32 v{T}, v{T+4}, v{T+5}")
            reduce_sum(T, T + 1, width)
            A(f"v_mul_f32 v{T}, 0x{f2u(1.0/448):x}, v{T}")
            for i in range(npair):
                A(f"v_pk_add_f32 {P(D_+2*i)}, {P(X+2*i)}, {P(T)} op_sel_hi:[1,0] neg_lo:[0,1] neg_hi:[0,1]")
            A(f"v_pk_mul_f32 {P(T+4)}, {P(D_)}, {P(D_)}")
            for i in range(1, npair): A(f"v_pk_fma_f32 {P(T+4)}, {P(D_+2*i)}, {P(D_+2*i)}, {P(T+4)}")
            A(f"v_add_f32 v{T+2}, v{T+4}, v{T+5}")
            reduce_sum(T + 2, T + 3, width)
            A(f"v_mul_f32 v{T+2}, 0x{f2u(1.0/448):x}, v{T+2}")
        A(f"v_cvt_pk_bf16_f32 v{T+4}, v{T}, v{T+2}")
        A(f"v_lshlrev_b32 v{T}, 16, v{T+4}")
        A(f"v_and_b32 v{T+2}, 0xffff0000, v{T+4}")
        A(f"v_add_f32 v{T+2}, 0x{f2u(1e-5):x}, v{T+2}")
        A(f"v_pk_add_f32 {P(D_)}, {P(X)}, {P(T)} op_sel_hi:[1,0] neg_lo:[0,1] neg_hi:[0,1]")
        A(f"v_cvt_pk_bf16_f32 v{T+2}, v{T+2}, v{T+2}")
        A(f"v_lshlrev_b32 v{T+2}, 16, v{T+2}")
        A(f"v_sqrt_f32 v{T+2}, v{T+2}")
        for i in range(1, npair):
            A(f"v_pk_add_f32 {P(D_+2*i)}, {P(X+2*i)}, {P(T)} op_sel_hi:[1,0] neg_lo:[0,1] neg_hi:[0,1]")
        A(f"v_cvt_pk_bf16_f32 v{T+2}, v{T+2}, v{T+2}")
        A(f"v_lshlrev_b32 v{T+2}, 16, v{T+2}")
        A(f"v_rcp_f32 v{T+2}, v{T+2}")
        for i in range(npair): A(f"v_cvt_pk_bf16_f32 v{D_+2*i+1}, v{D_+2*i}, v{D_+2*i+1}")
        for i in range(npair):
            A(f"v_lshlrev_b32 v{D_+2*i}, 16, v{D_+2*i+1}")
            A(f"v_and_b32 v{D_+2*i+1}, 0xffff0000, v{D_+2*i+1}")
        for i in range(npair): A(f"v_pk_mul_f32 {P(D_+2*i)}, {P(D_+2*i)}, {P(T+2)} op_sel_hi:[1,0]")
        for i in range(npair): A(f"v_cvt_pk_bf16_f32 v{out+i}, v{D_+2*i}, v{D_+2*i+1}")

    A.raw(".p2align 6")
    A("L_help:")
    A("v_lshrrev_b32 v1, 5, v0")
    A("v_mul_u32_u24 v1, 896, v1")
    A("v_and_b32 v2, 31, v0")
    A("v_lshl_add_u32 v1, v2, 2, v1")
    A("s_waitcnt lgkmcnt(0)")
    if dbg: A("v_writelane_b32 v63, s92, 0")
    A("s_load_dwordx2 s[50:51], s[28:29], 0")
    A("s_and_b32 s34, s84, 3")
    decode()
    A("s_cmp_eq_u32 s3, 2")
    A("s_cbranch_scc1 L_w2")
    A("s_cmp_eq_u32 s3, 3")
    A("s_cbranch_scc1 L_w3")
    A("s_cmp_lg_u32 s34, 3")
    A("s_cbranch_scc1 L_w1n")
    for i in range(7): A(f"global_load_dword v{8+i}, v1, s[4:5] offset:{128*i}")
    A(f"v_add_u32 v5, {L_XN}, v1")
    A("s_waitcnt vmcnt(0) lgkmcnt(0)")
    tags()
    stamp(1)
    for i in range(7):
        A(f"v_lshlrev_b32 v{16+2*i}, 16, v{8+i}")
        A(f"v_and_b32 v{17+2*i}, 0xffff0000, v{8+i}")
    layernorm(16, 32, 7, 46, 32, 8)
    for i in range(7): A(f"ds_write_b32 v5, v{8+i} offset:{128*i}")
    stamp(2)
    A("s_call_b64 s[62:63], L_qc")
    fin()
    gap()
    pad("cq")
    A("L_qc:")
    tr_addr("v120", "v121", "v122", "v123")
    A("v_and_b32 v122, 1, v60")
    A("v_cmp_eq_u32 vcc, 0, v122")
    A("v_mul_u32_u24 v121, 896, v122")
    A("v_lshl_add_u32 v121, v61, 4, v121")
    A(f"v_add_u32 v121, {L_XN}, v121")
    A("v_lshlrev_b32 v122, 14, v122")
    A("v_lshl_add_u32 v122, v61, 4, v122")
    A("s_lshl_b32 s60, s30, 11")
    A("s_lshl_b32 s61, s35, 8")
    A("s_add_u32 s60, s60, s61")
    A("s_lshl_b32 s61, s3, 6")
    A("s_add_u32 s60, s60, s61")
    A(f"s_add_u32 s60, s60, {WS_QG}")
    A("v_add_u32 v122, s60, v122")
    A("v_mov_b32 v13, s50")
    A("v_mov_b32 v15, s51")
    A("v_cndmask_b32 v13, v15, v13, vcc")
    A("v_mov_b32 v15, v13")
    A("s_waitcnt lgkmcnt(0)")
    A("s_barrier")
    stamp(11 if not prog else 9)
    for t in range(14):
        A(f"ds_read_b128 v[{64+4*t}:{67+4*t}], v121 offset:{64*t}")
        A(f"ds_read_b64_tr_b16 v[{128+4*t}:{129+4*t}], v120 offset:{L_WT + 4096*t}")
        A(f"ds_read_b64_tr_b16 v[{130+4*t}:{131+4*t}], v120 offset:{L_WT + 4096*t + 512}")
        if t >= 4:
            A("s_waitcnt lgkmcnt(12)")
            tt = t - 4
            A(f"v_mfma_f32_16x16x32_bf16 v[8:11], v[{128+4*tt}:{131+4*tt}], v[{64+4*tt}:{67+4*tt}], {'0' if tt == 0 else 'v[8:11]'}")
    for tt in range(10, 14):
        A(f"s_waitcnt lgkmcnt({3*(13-tt)})")
        A(f"v_mfma_f32_16x16x32_bf16 v[8:11], v[{128+4*tt}:{131+4*tt}], v[{64+4*tt}:{67+4*tt}], v[8:11]")
    A("s_mov_b32 exec_lo, 0x00030003")
    A("s_mov_b32 exec_hi, 0x00030003")
    A("v_cvt_pk_bf16_f32 v12, v8, v9")
    A("v_cvt_pk_bf16_f32 v14, v10, v11")
    A(f"global_store_dwordx4 v122, v[12:15], s[28:29] {stf}")
    A("s_mov_b64 exec, -1")
    stamp(8)
    A("s_nop 1")
    A("s_setpc_b64 s[62:63]")
    pad_end("cq")
    A("L_w2:")
    if touch:
        A("s_lshl_b32 s60, s76, 15")
        A("s_lshl_b32 s61, s32, 11")
        A("s_add_u32 s60, s60, s61")
        A(f"s_add_u32 s60, s60, {WS_REC}")
        A("v_lshl_add_u32 v2, v60, 7, s60")
        A("s_mul_i32 s60, s33, 1792")
        A("s_lshl_b32 s61, s35, 8")
        A("s_add_u32 s60, s60, s61")
        A(f"s_add_u32 s60, s60, {WS_H}")
        A("s_mul_i32 s61, s31, 28")
        A("s_add_u32 s61, s61, s35")
        A("s_mul_i32 s61, s61, 1792")
        A(f"s_add_u32 s61, s61, {WS_P}")
        A("s_lshl_b32 s62, s76, 9")
        A(f"s_add_u32 s62, s62, {WS_ML}")
        A("s_cmp_eq_u32 s34, 1")
        A("s_cselect_b32 s62, s60, s62")
        A("s_cselect_b32 s63, 0x3ffff, 0xfffff" if False else "s_mov_b32 s63, 0xfffff")
        A("s_cselect_b32 s63, 0x3ffff, s63")
        A("s_cmp_eq_u32 s34, 2")
        A("s_cselect_b32 s62, s61, s62")
        A("s_cselect_b32 s63, 0x3fffffff, s63")
        A("v_lshl_add_u32 v3, v60, 7, s62")
        A("v_cmp_gt_u32 vcc, 16, v0")
        A("v_cndmask_b32 v2, v3, v2, vcc")
        A("s_mov_b32 exec_lo, s63")
        A("s_mov_b32 exec_hi, 0")
        A("global_load_dword v255, v2, s[28:29]")
        A("s_mov_b64 exec, -1")
    run_chain("ca")
    A("s_waitcnt lgkmcnt(0)")
    tags()
    stamp(1)
    A("s_cmp_lg_u32 s34, 3")
    A("s_cbranch_scc1 L_w2n")
    A("s_call_b64 s[62:63], L_qc")
    A("L_w2n:")
    run_chain("cv")
    A("s_branch L_hnext")
    A("L_w3:")
    A("s_waitcnt lgkmcnt(0)")
    tags()
    A("s_cmp_lg_u32 s34, 3")
    A("s_cbranch_scc1 L_w3n")
    A("s_cmp_ge_u32 s35, 2")
    A("s_cbranch_scc1 L_w3q")
    A("s_lshl_b32 s60, s35, 3")
    A("s_add_u32 s60, s60, s30")
    A("s_lshl_b32 s60, s60, 8")
    A(f"s_add_u32 s60, s60, {WS_CT}")
    A("s_mov_b32 s61, 0")
    A("s_atomic_add s61, s[28:29], s60 glc")
    A("s_waitcnt lgkmcnt(0)")
    A("s_sub_u32 s61, 0, s61")
    A("s_atomic_add s61, s[28:29], s60 glc")
    A("L_w3q:")
    run_chain("cq")
    A("s_waitcnt lgkmcnt(0)")
    A("s_call_b64 s[62:63], L_qc")
    A("L_w3n:")
    run_chain("cx")
    if fast:
        A("s_cmp_lg_u32 s34, 2")
        A("s_cbranch_scc1 L_hnext")
        A("s_getreg_b32 s60, hwreg(HW_REG_XCC_ID, 0, 4)")
        A("s_and_b32 s60, s60, 7")
        A("s_lshl_b32 s64, s31, 7")
        A("s_and_b32 s61, s60, 4")
        A("s_add_u32 s61, s61, s64")
        A("s_and_b32 s60, s60, 3")
        A("s_lshl_b32 s60, s60, 3")
        A("s_lshl_b32 s65, 1, s60")
        A("s_atomic_add s65, s[26:27], s61")
        A("s_lshl_b32 s69, 28, s60")
        A(f"s_mov_b32 s55, {SPIN}")
        A("L_xpoll:")
        A("s_sleep 16")
        A("s_load_dwordx2 s[66:67], s[26:27], s64 glc")
        A("s_sub_u32 s55, s55, 1")
        A("s_cbranch_scc1 L_xgot")
        A("s_waitcnt lgkmcnt(0)")
        A("s_add_u32 s68, s66, s67")
        A("s_mul_i32 s68, s68, 0x01010101")
        A("s_lshr_b32 s68, s68, 24")
        A("s_cmp_lt_u32 s68, 28")
        A("s_cbranch_scc1 L_xpoll")
        A("L_xgot:")
        A("s_waitcnt lgkmcnt(0)")
        A("s_bitcmp1_b32 s61, 2")
        A("s_cselect_b32 s66, s67, s66")
        A("s_cmp_eq_u32 s66, s69")
        A("s_cselect_b32 s66, 1, 0")
        A("v_mov_b32 v5, s66")
        A(f"v_mov_b32 v7, {L_FL}")
        A("ds_write_b32 v7, v5")
        A("s_waitcnt lgkmcnt(0)")
    stamp(1)
    A("s_branch L_hnext")
    A("L_w1n:")
    A("s_waitcnt lgkmcnt(0)")
    tags()
    A("s_cmp_eq_u32 s34, 0")
    A("s_cbranch_scc1 L_fin")
    A("s_cmp_eq_u32 s34, 2")
    A("s_cbranch_scc1 L_w1f")
    run_chain("cw")
    A("s_branch L_hnext")
    A("L_w1f:")
    run_chain("cf")
    A("v_mov_b32 v5, 0")
    A("v_lshlrev_b32 v7, 2, v0")
    A(f"v_add_u32 v7, {L_ZB}, v7")
    A("s_mov_b32 exec_hi, 0")
    A("ds_write_b32 v7, v5")
    A("s_mov_b64 exec, -1")
    A("s_waitcnt lgkmcnt(0)")
    stamp(1)
    A("L_hnext:")
    A("s_sub_u32 s60, s34, 1")
    A("s_cmp_ge_u32 s60, 2")
    A("s_cbranch_scc1 L_fin")

    A("L_tail:")
    def gate(nm):
        if early:
            A("s_cmp_eq_u32 s3, 0")
            A(f"s_cbranch_scc1 L_gate{nm}")
            A("s_barrier")
            A(f"L_gate{nm}:")
        else: A("s_barrier")
    def backoff():
        if slp: A(f"s_sleep {slp}")
    A("s_lshl_b32 s52, s3, 5")
    A(f"s_mov_b32 s55, {SPIN}")
    A("s_movk_i32 s58, 0xff")
    A("v_mov_b32 v59, s59")
    A("s_cmp_eq_u32 s34, 2")
    A("s_cbranch_scc1 L_F")
    A("s_lshl_b32 s60, s33, 15")
    A("s_lshl_b32 s61, s3, 13")
    A("s_add_u32 s60, s60, s61")
    A(f"s_add_u32 s60, s60, {WS_REC + 4096}")
    A("v_lshl_add_u32 v1, v0, 4, s60")
    A("s_lshl_b32 s60, s33, 9")
    A(f"s_add_u32 s60, s60, {WS_ML}")
    A("s_lshl_b32 s61, s3, 2")
    A("v_add_u32 v2, s61, v60")
    A("v_and_b32 v2, 15, v2")
    A("v_lshl_add_u32 v2, v2, 4, s60")
    gate("W")
    stamp(6)
    A("s_branch L_W2")
    gap()
    pad("cw")
    A("L_W2:")
    def wml():
        A(f"global_load_dwordx3 v[8:10], v2, s[28:29] {ldf}")
        A(f"global_load_dwordx3 v[12:14], v2, s[28:29] offset:256 {ldf}")
    def wdata():
        for t in range(8):
            A(f"global_load_dwordx4 v[{16+4*t}:{19+4*t}], v1, s[28:29] offset:{1024*t - 4096} {ldf}")
    wdata()
    wml()
    tr_addr("v5", "v7", "v6", "v4")
    for t in range(16):
        A(f"ds_read_b64_tr_b16 v[{128+4*t}:{129+4*t}], v5 offset:{L_WT + 4096*t}")
        A(f"ds_read_b64_tr_b16 v[{130+4*t}:{131+4*t}], v5 offset:{L_WT + 4096*t + 512}")
    A(f"s_mov_b32 s57, 0x{CEXP:x}")
    A("s_mul_i32 s60, s3, 1088")
    A(f"s_add_u32 s60, s60, {L_OB}")
    A("v_lshl_add_u32 v56, v0, 3, s60")
    A("v_and_b32 v4, 3, v60")
    A("v_mul_u32_u24 v4, 1088, v4")
    A("v_lshl_add_u32 v4, v61, 4, v4")
    A(f"v_add_u32 v4, {L_OB}, v4")
    A("s_mul_i32 s60, s33, 1792")
    A("s_lshl_b32 s61, s35, 8")
    A("s_add_u32 s60, s60, s61")
    A("s_lshl_b32 s61, s3, 6")
    A("s_add_u32 s60, s60, s61")
    A(f"s_add_u32 s60, s60, {WS_H}")
    A("v_lshl_add_u32 v57, v61, 4, s60")
    A("s_branch L_wchk")
    pad("cw")
    A("L_wpoll:")
    backoff()
    wdata()
    A("L_wpoll2:")
    wml()
    A("s_sub_u32 s55, s55, 1")
    A("s_cbranch_scc1 L_wgot")
    A("L_wchk:")
    A("s_waitcnt vmcnt(2)")
    A("v_xor_b32 v11, v16, v59")
    for t in range(1, 8): A(f"v_bitop3_b32 v11, v{16+4*t}, v11, v59 bitop3:0xde")
    A("v_and_b32 v11, s58, v11")
    A("v_cmp_ne_u32 vcc, 0, v11")
    A("s_waitcnt vmcnt(0)")
    A("v_xor_b32 v11, v10, v59")
    A("s_cbranch_vccnz L_wpoll")
    A("v_bitop3_b32 v11, v14, v11, v59 bitop3:0xde")
    A("v_cmp_ne_u32 vcc, 0, v11")
    A("v_max_f32_dpp v10, v8, v8 row_ror:8 row_mask:0xf bank_mask:0xf")
    A("v_max_f32_dpp v14, v12, v12 row_ror:8 row_mask:0xf bank_mask:0xf")
    A("s_cbranch_vccnz L_wpoll2")
    A("L_wgot:")
    cy(0)
    stamp(7)
    if dbg: A("v_writelane_b32 v63, s55, 12")
    for sh in (4, 2, 1):
        for v in (10, 14): A(f"v_max_f32_dpp v{v}, v{v}, v{v} row_ror:{sh} row_mask:0xf bank_mask:0xf")
    for v in (10, 14): A(f"v_sub_f32 v{v}, v{v-2}, v{v}")
    for v in (10, 14): A(f"v_mul_f32 v{v}, s57, v{v}")
    for v in (10, 14): A(f"v_exp_f32 v{v}, v{v}")
    for v in (10, 14): A(f"v_mul_f32 v{v+1}, v{v}, v{v-1}")
    cy(1)
    seq = []
    for i in range(4):
        for h in range(2):
            for k in range(4):
                op = "v_mul_f32_dpp" if i == 0 else "v_fmac_f32_dpp"
                seq.append(f"{op} v{48+4*h+k}, v{10+4*h}, v{16+8*i+4*h+k} row_newbcast:{i} row_mask:0xf bank_mask:0xf")
    red = [f"v_add_f32_dpp v{v}, v{v}, v{v} row_ror:{sh} row_mask:0xf bank_mask:0xf" for sh in (8, 4, 2, 1) for v in (11, 15)] + ["v_rcp_f32 v8, v11", "v_rcp_f32 v12, v15"]
    for i, s_ in enumerate(seq):
        A(s_)
        if i % 3 == 2 and red: A(red.pop(0))
    assert not red
    for h in range(2):
        for k in range(2):
            A(f"v_pk_mul_f32 v[{48+4*h+2*k}:{49+4*h+2*k}], v[{48+4*h+2*k}:{49+4*h+2*k}], v[{8+4*h}:{9+4*h}] op_sel_hi:[1,0]")
    for k in range(4): A(f"v_cvt_pk_bf16_f32 v{16+k}, v{48+2*k}, v{49+2*k}")
    cy(2)
    A("ds_write_b64 v56, v[16:17]")
    A("ds_write_b64 v56, v[18:19] offset:512")
    A("s_waitcnt lgkmcnt(0)")
    cy(3)
    A("s_barrier")
    cy(4)
    for t in range(16):
        A(f"ds_read_b128 v[{64+4*t}:{67+4*t}], v4 offset:{64*t}")
    pad("cw")
    for t in range(16):
        A(f"s_waitcnt lgkmcnt({15-t})")
        A(f"v_mfma_f32_16x16x32_bf16 v[8:11], v[{128+4*t}:{131+4*t}], v[{64+4*t}:{67+4*t}], {'0' if t == 0 else 'v[8:11]'}")
    cy(5)
    for qp in ("[1,0,3,2]", "[2,3,0,1]"):
        for k in range(4): A(f"v_add_f32_dpp v{8+k}, v{8+k}, v{8+k} quad_perm:{qp} row_mask:0xf bank_mask:0xf")
    A("s_mov_b32 exec_lo, 0x00010001")
    A("s_mov_b32 exec_hi, 0x00010001")
    A("v_bfi_b32 v8, s58, v59, v8")
    A(f"global_store_dwordx4 v57, v[8:11], s[28:29] {stf}")
    cy(6)
    A("s_mov_b64 exec, -1")
    stamp(8)
    fin()
    pad_end("cw")

    A("L_F:")
    A("s_mov_b32 s80, 0x3fff3fff")
    A("s_mov_b32 s81, 0x3fff3fff")
    A("v_mul_u32_u24 v3, 14, v61")
    A("v_add_u32 v3, v3, v60")
    A("s_lshl_b32 s60, s35, 7")
    A("s_add_u32 s60, s60, s52")
    A("v_lshl_add_u32 v1, v61, 3, s60")
    A("global_load_dwordx2 v[48:49], v1, s[18:19] nt")
    A("s_lshl_b32 s60, s35, 5")
    A("v_and_b32 v42, 3, v0")
    A("v_lshl_add_u32 v42, v42, 2, v61")
    A("v_lshl_add_u32 v42, v42, 1, s60")
    A("global_load_ushort v62, v42, s[22:23] nt")
    A("s_mul_i32 s60, s31, 896")
    A("v_lshl_add_u32 v1, v3, 3, s60")
    A("s_mov_b64 exec, s[80:81]")
    A("global_load_dwordx2 v[52:53], v1, s[4:5] nt")
    A("global_load_dwordx2 v[54:55], v1, s[4:5] offset:448 nt")
    A("s_mov_b64 exec, -1")
    A(f"v_add_u32 v43, {L_HB}, v42")
    A("v_add_u32 v42, s60, v42")
    A("v_lshlrev_b32 v58, 3, v3")
    A(f"v_add_u32 v58, {L_HB}, v58")
    A("s_mul_i32 s60, s31, 14336")
    A("s_mul_i32 s61, s3, 3584")
    A("s_add_u32 s60, s60, s61")
    A(f"s_add_u32 s60, s60, {WS_H}")
    A("v_lshl_add_u32 v1, v3, 4, s60")
    A("v_lshlrev_b32 v4, 4, v0")
    A(f"v_add_u32 v4, {L_OB}, v4")
    A("s_lshl_b32 s60, s3, 11")
    A("v_add_u32 v2, s60, v4")
    A("v_lshrrev_b32 v7, 2, v60")
    A("v_and_b32 v6, 3, v60")
    A("v_lshlrev_b32 v6, 3, v6")
    A("v_mul_u32_u24 v5, 56, v61")
    A("v_add_u32 v5, v5, v7")
    A("v_lshl_add_u32 v5, v5, 7, v6")
    A("v_bfe_u32 v8, v0, 3, 2")
    A("v_xor_b32 v8, s3, v8")
    A("v_lshl_add_u32 v5, v8, 5, v5")
    A("v_xor_b32 v9, 64, v5")
    A("v_lshl_add_u32 v7, v61, 3, v7")
    A("v_mul_u32_u24 v3, 896, v7")
    A("v_add_u32 v3, v3, v6")
    A("s_mul_i32 s60, s3, 224")
    A(f"s_add_u32 s60, s60, {L_WT2}")
    A("v_add_u32 v3, s60, v3")
    A("v_lshlrev_b32 v10, 4, v61")
    A(f"v_add_u32 v10, {L_UB}, v10")
    A(f"v_mov_b32 v11, {L_ZB}")
    for nb in range(7):
        A(f"v_cmp_eq_u32 vcc, {nb}, v60")
        A(f"v_cndmask_b32 v{184+nb}, v11, v10, vcc")
    A("v_lshl_add_u32 v57, v61, 3, s52")
    A(f"v_add_u32 v57, {L_UB}, v57")
    A("s_mul_i32 s60, s31, 28")
    A("s_add_u32 s60, s60, s35")
    A("s_mul_i32 s60, s60, 1792")
    A("s_mul_i32 s61, s3, 448")
    A("s_add_u32 s60, s60, s61")
    A(f"s_add_u32 s60, s60, {WS_P}")
    A("v_lshlrev_b32 v56, 6, v60")
    A("v_lshl_add_u32 v56, v61, 4, v56")
    A("v_add_u32 v56, s60, v56")
    A("s_mul_i32 s60, s31, 50176")
    A("s_lshl_b32 s61, s35, 6")
    A("s_add_u32 s60, s60, s61")
    A(f"s_add_u32 s60, s60, {WS_P}")
    A("v_lshrrev_b32 v40, 2, v0")
    A("v_min_u32 v41, 11, v40")
    A("v_add_u32 v41, 16, v41")
    A("v_and_b32 v44, 3, v0")
    A("v_lshl_add_u32 v44, v44, 4, s60")
    A("s_movk_i32 s61, 1792")
    A("v_mad_u32_u24 v40, v40, s61, v44")
    A("v_mad_u32_u24 v41, v41, s61, v44")
    A("v_cmp_gt_u32 vcc, 48, v0")
    A("v_cndmask_b32 v44, 0, 1.0, vcc")
    A("s_lshl_b32 s60, s31, 2")
    A("v_mov_b32 v45, s60")
    gate("F")
    stamp(6)
    A("s_branch L_F2")
    gap()
    pad("cf")
    A("L_F2:")
    if fast:
        A(f"v_mov_b32 v50, {L_FL}")
        A("ds_read_b32 v50, v50")
        A("s_mov_b32 exec_lo, 0x007f007f")
        A("s_mov_b32 exec_hi, 0x007f007f")
        A(f"global_load_dword v51, v56, s[28:29] {ldf}")
        A("s_mov_b64 exec, -1")
    for t in range(14):
        va = "v9" if (t >> 1) & 1 else "v5"
        A(f"ds_read_b64_tr_b16 v[{128+4*t}:{129+4*t}], {va} offset:{L_WT + 512*t}")
        A(f"ds_read_b64_tr_b16 v[{130+4*t}:{131+4*t}], {va} offset:{L_WT + 512*t + 28672}")
    for nb in range(7):
        for t in range(2):
            r = 8 * nb + 4 * t
            A(f"ds_read_b64_tr_b16 a[{192+r}:{193+r}], v3 offset:{28672*t + 32*nb}")
            A(f"ds_read_b64_tr_b16 a[{194+r}:{195+r}], v3 offset:{28672*t + 32*nb + 3584}")
    A("s_waitcnt vmcnt(0)")
    A("v_lshlrev_b32 v46, 16, v48")
    A("v_and_b32 v47, 0xffff0000, v48")
    A("v_lshlrev_b32 v48, 16, v49")
    A("v_and_b32 v49, 0xffff0000, v49")
    for i in range(4):
        A(f"v_lshlrev_b32 v{8+2*i}, 16, v{52+i}")
        A(f"v_and_b32 v{9+2*i}, 0xffff0000, v{52+i}")
    A("v_lshlrev_b32 v62, 16, v62")
    A("v_mov_b32 v32, 0")
    A("v_mov_b32 v34, 0")
    A("s_waitcnt lgkmcnt(0)")
    if fast: A("v_readfirstlane_b32 s82, v50")
    pad("cf")
    A("s_mov_b64 exec, s[80:81]")
    hs = lambda k: 192 + 16 * k
    def hissue(k):
        for i in range(4):
            A(f"global_load_dwordx4 v[{hs(k)+4*i}:{hs(k)+4*i+3}], v1, s[28:29] offset:{896*i} {ldf}")
    for k in range(d2 - 1): hissue(k)
    A("L_hpoll:")
    for k in range(d2):
        hissue((k + d2 - 1) % d2)
        A(f"s_waitcnt vmcnt({4*(d2-1)})")
        A(f"v_xor_b32 v16, v{hs(k)}, v59")
        for i in range(1, 4): A(f"v_bitop3_b32 v16, v{hs(k)+4*i}, v16, v59 bitop3:0xde")
        A("v_and_b32 v16, s58, v16")
        A("v_cmp_ne_u32 vcc, 0, v16")
        for i in range(4):
            A(f"v_pk_add_f32 v[{80+2*i}:{81+2*i}], v[{hs(k)+2*i}:{hs(k)+2*i+1}], v[{hs(k)+8+2*i}:{hs(k)+9+2*i}]")
        A("s_cbranch_vccz L_hgot")
    A("s_sub_u32 s55, s55, 1")
    A("s_cbranch_scc0 L_hpoll")
    A("L_hgot:")
    cy(0)
    A("ds_write_b128 v2, v[80:83]")
    A("ds_write_b128 v2, v[84:87] offset:1024")
    A("s_mov_b64 exec, -1")
    stamp(7)
    if dbg: A("v_writelane_b32 v63, s55, 12")
    A("s_waitcnt lgkmcnt(0)")
    A("s_barrier")
    cy(1)
    for hf in range(2):
        for w in range(4):
            A(f"ds_read_b128 v[{64+8*w+4*hf}:{67+8*w+4*hf}], v4 offset:{2048*w + 1024*hf}")
    for hf in range(2):
        A(f"s_waitcnt lgkmcnt({6 - 4*hf})")
        for i in (2*hf, 2*hf+1): A(f"v_pk_add_f32 v[{64+2*i}:{65+2*i}], v[{64+2*i}:{65+2*i}], v[{72+2*i}:{73+2*i}]")
        A(f"s_waitcnt lgkmcnt({4 - 4*hf})")
        for i in (2*hf, 2*hf+1): A(f"v_pk_add_f32 v[{80+2*i}:{81+2*i}], v[{80+2*i}:{81+2*i}], v[{88+2*i}:{89+2*i}]")
        for i in (2*hf, 2*hf+1): A(f"v_pk_add_f32 v[{64+2*i}:{65+2*i}], v[{64+2*i}:{65+2*i}], v[{80+2*i}:{81+2*i}]")
        for i in (2*hf, 2*hf+1): A(f"v_cvt_pk_bf16_f32 v{65+2*i}, v{64+2*i}, v{65+2*i}")
    cy(2)
    for i in range(4):
        A(f"v_lshlrev_b32 v{64+2*i}, 16, v{65+2*i}")
        A(f"v_and_b32 v{65+2*i}, 0xffff0000, v{65+2*i}")
    for i in range(4): A(f"v_pk_add_f32 v[{8+2*i}:{9+2*i}], v[{8+2*i}:{9+2*i}], v[{64+2*i}:{65+2*i}]")
    for i in range(4): A(f"v_cvt_pk_bf16_f32 v{16+i}, v{8+2*i}, v{9+2*i}")
    for i in range(4):
        A(f"v_lshlrev_b32 v{8+2*i}, 16, v{16+i}")
        A(f"v_and_b32 v{9+2*i}, 0xffff0000, v{16+i}")
    pad("cf")
    cy(3)
    layernorm(8, 24, 4, 32, 64, 20, emask="s[80:81]")
    cy(4)
    def bc(t):
        r = 64 + 4 * (t % 3)
        A(f"v_mov_b64_dpp v[{r}:{r+1}], v[20:21] row_newbcast:{t} row_mask:0xf bank_mask:0xf")
        A(f"v_mov_b64_dpp v[{r+2}:{r+3}], v[22:23] row_newbcast:{t} row_mask:0xf bank_mask:0xf")
    bc(0); bc(1)
    for t in range(14):
        r = 64 + 4 * (t % 3)
        A(f"v_mfma_f32_16x16x32_bf16 v[8:11], v[{128+4*t}:{131+4*t}], v[{r}:{r+3}], {'0' if t == 0 else 'v[8:11]'}")
        if t + 2 < 14: bc(t + 2)
    cy(5)
    A("s_mov_b64 exec, s[80:81]")
    A("ds_write_b64 v58, v[16:17]")
    A("ds_write_b64 v58, v[18:19] offset:448")
    A("s_mov_b64 exec, -1")
    pad("cf")
    A("v_cvt_pk_bf16_f32 v12, v8, v9")
    A("v_cvt_pk_bf16_f32 v13, v10, v11")
    A("v_lshlrev_b32 v8, 16, v12")
    A("v_and_b32 v9, 0xffff0000, v12")
    A("v_lshlrev_b32 v10, 16, v13")
    A("v_and_b32 v11, 0xffff0000, v13")
    A("v_pk_add_f32 v[8:9], v[8:9], v[46:47]")
    A("v_pk_add_f32 v[10:11], v[10:11], v[48:49]")
    for k in range(4): A(f"v_max_f32 v{8+k}, 0, v{8+k}")
    A("v_cvt_pk_bf16_f32 v12, v8, v9")
    A("v_cvt_pk_bf16_f32 v13, v10, v11")
    A("v_lshlrev_b32 v8, 16, v12")
    A("v_and_b32 v9, 0xffff0000, v12")
    A("v_lshlrev_b32 v10, 16, v13")
    A("v_and_b32 v11, 0xffff0000, v13")
    A("v_pk_mul_f32 v[8:9], v[8:9], v[8:9]")
    A("v_pk_mul_f32 v[10:11], v[10:11], v[10:11]")
    A("s_mov_b32 exec_lo, 0x00010001")
    A("s_mov_b32 exec_hi, 0x00010001")
    A("v_cvt_pk_bf16_f32 v12, v8, v9")
    A("v_cvt_pk_bf16_f32 v13, v10, v11")
    cy(6)
    A("ds_write_b64 v57, v[12:13]")
    A("s_mov_b64 exec, -1")
    A("s_waitcnt lgkmcnt(0)")
    A("s_barrier")
    cy(7)
    for nb in range(7):
        for t in range(2):
            i = 2 * nb + t
            A(f"ds_read_b128 v[{64+4*i}:{67+4*i}], v{184+nb} offset:{64*t}")
    A("ds_read_u16 v43, v43")
    for i in range(14):
        A(f"s_waitcnt lgkmcnt({14-i})")
        A(f"v_mfma_f32_16x16x32_bf16 v[8:11], a[{192+4*i}:{195+4*i}], v[{64+4*i}:{67+4*i}], {'0' if i == 0 else 'v[8:11]'}")
    cy(8)
    A("s_mov_b32 exec_lo, 0x007f007f")
    A("s_mov_b32 exec_hi, 0x007f007f")
    A(f"s_mov_b32 s55, {SPIN}")
    if fast:
        A("s_cmp_eq_u32 s82, 0")
        A("s_cbranch_scc1 L_Pfar")
        A("v_bfi_b32 v8, s58, v59, v8")
        A("global_store_dwordx4 v56, v[8:11], s[28:29]")
        A("L_Pdone:")
    else:
        A("v_bfi_b32 v8, s58, v59, v8")
        A(f"global_store_dwordx4 v56, v[8:11], s[28:29] {stf}")
    cy(9)
    A("s_mov_b64 exec, -1")
    stamp(8)
    A("s_cmp_lg_u32 s3, 1")
    A("s_cbranch_scc1 L_fin")
    pad("cf")
    ps = lambda k: 128 + 8 * k
    def pissue(k):
        A(f"global_load_dwordx4 v[{ps(k)}:{ps(k)+3}], v40, s[28:29] {ldf}")
        A(f"global_load_dwordx4 v[{ps(k)+4}:{ps(k)+7}], v41, s[28:29] {ldf}")
    for k in range(d3 - 1):
        pissue(k)
        if k < d3 - 2: A("s_nop 15")
    A("L_ppoll:")
    for k in range(d3):
        pissue((k + d3 - 1) % d3)
        A(f"s_waitcnt vmcnt({2*(d3-1)})")
        A(f"v_xor_b32 v24, v{ps(k)}, v59")
        A(f"v_bitop3_b32 v24, v{ps(k)+4}, v24, v59 bitop3:0xde")
        A("v_and_b32 v24, s58, v24")
        A("v_cmp_ne_u32 vcc, 0, v24")
        for i in range(4): A(f"v_fma_f32 v{16+i}, v{ps(k)+4+i}, v44, v{ps(k)+i}")
        A("s_cbranch_vccz L_pgot")
    A("s_sub_u32 s55, s55, 1")
    A("s_cbranch_scc0 L_ppoll")
    A("L_pgot:")
    cy(10)
    A("s_waitcnt lgkmcnt(0)")
    stamp(9)
    if dbg: A("v_writelane_b32 v63, s55, 14")
    A("v_permlane32_swap_b32 v16, v18")
    A("v_permlane32_swap_b32 v17, v19")
    A("v_add_f32 v16, v16, v18")
    A("v_add_f32 v17, v17, v19")
    A("v_lshlrev_b32 v43, 16, v43")
    A("v_permlane16_swap_b32 v16, v17")
    A("v_add_f32 v16, v16, v17")
    A("v_add_f32_dpp v16, v16, v16 row_ror:4 row_mask:0xf bank_mask:0xf")
    A("v_add_f32_dpp v16, v16, v16 row_ror:8 row_mask:0xf bank_mask:0xf")
    A("v_cvt_pk_bf16_f32 v16, v16, v16")
    A("v_lshlrev_b32 v16, 16, v16")
    A("v_add_f32 v16, v16, v62")
    A("v_cvt_pk_bf16_f32 v16, v16, v16")
    A("v_lshlrev_b32 v16, 16, v16")
    A("v_add_f32 v16, v16, v43")
    A("v_cvt_pk_bf16_f32 v16, v16, v16")
    A("s_mov_b32 exec_lo, 0x000f000f")
    A("s_mov_b32 exec_hi, 0x000f000f")
    A(f"global_store_short v42, v16, s[24:25] {ostf}")
    cy(11)
    A("s_mov_b64 exec, -1")
    A("s_cmp_lg_u32 s35, 0")
    A("s_cbranch_scc1 L_fin")
    A("s_mov_b64 exec, 1")
    A(f"global_store_dword v45, v59, s[28:29] {ostf}")
    A("s_mov_b64 exec, -1")
    if fast:
        A("s_branch L_fin")
        A("L_Pfar:")
        A("s_nop 7")
        A("v_bfi_b32 v8, s58, v59, v8")
        A(f"global_store_dwordx4 v56, v[8:11], s[28:29] {stf}")
        A("s_branch L_Pdone")
    A("L_fin:")
    if dbg:
        A("s_waitcnt vmcnt(0)")
        stamp(10)
        A("s_barrier")
        if cyc:
            for k in range(12): A(f"v_writelane_b32 v63, s{cycregs[k]}, {16+k}")
        A("s_lshl_b32 s60, s2, 2")
        A("s_add_u32 s60, s60, s3")
        A("s_lshl_b32 s60, s60, 7")
        A(f"s_add_u32 s60, s60, {WS_TS}")
        A("v_lshl_add_u32 v1, v0, 2, s60")
        A("s_mov_b32 exec_hi, 0")
        A("global_store_dword v1, v63, s[28:29]")
    A("L_end:")
    A("s_endpgm")
    pad_end("cf")
    A.raw(".p2align 7")
    A.raw(".type L_tab,@object")
    A.raw("L_tab:")
    for r in layout(lay, costs, P, fx, rotm, shuf):
        ro = r["role"]
        assert (r["n"] - 8 - NLs[ro]) // 3 > 8 + NLs[ro] + 1 and (0, 65536, 114688, 65536)[ro] + 8192 * NLs[ro] <= L_SB
        d0 = ro | r["rb"] << 2 | r["rh"] << 3 | r["idx"] << 6 | r["pr"] << 11 | r["sp"] << 15 | NLs[ro] << 19 | max(0, 16 * P - stops[ro]) << 23
        d1 = r["first"] | r["n"] << 16 | r["rot"] << 24
        d2 = (0, 458752, 0, 1024)[ro] * r["rh"] + 128 * r["idx"]
        d3 = (0, 896, 3584, 8192)[ro] | (0, 64, 56, 56)[ro] << 16
        A.raw(f".long {d0}, {d1}, {d2}, {d3}")
    A.raw(".size L_tab, 4096")
    A.raw('.section .rodata,"a"')
    A.raw(".p2align 6")
    A.raw(f".amdhsa_kernel {NAME}_kernel")
    A.raw("  .amdhsa_next_free_vgpr 512")
    A.raw("  .amdhsa_next_free_sgpr 96")
    A.raw("  .amdhsa_accum_offset 256")
    A.raw("  .amdhsa_group_segment_fixed_size 0")
    A.raw("  .amdhsa_kernarg_size 104")
    A.raw("  .amdhsa_user_sgpr_count 2")
    A.raw("  .amdhsa_user_sgpr_kernarg_segment_ptr 1")
    A.raw("  .amdhsa_system_sgpr_workgroup_id_x 1")
    A.raw("  .amdhsa_float_denorm_mode_32 3")
    A.raw(".end_amdhsa_kernel")
    from asmlib import Ins
    for n_, i_ in enumerate(A.L):
        if i_.is_ins and i_.target and i_.target.endswith("_top"):
            ch = i_.target[2:-4]
            A.L[n_] = Ins(f"s_branch L_{ch}{pads.count(ch)-1}")
    bad = A.check_edges(returns=[(a_, f"L_v{i_}") for a_ in ("L_mid_ret", "L_mid_ret2") for i_ in range(3)])
    for b in bad: print("EDGE HAZARD", b, file=sys.stderr)
    return A.text()

if __name__ == "__main__":
    import json
    kw = json.loads(sys.argv[2]) if len(sys.argv) > 2 else {}
    open(sys.argv[1], "w").write(gen(**kw))
    import subprocess, re
    subprocess.run(["clang", "-x", "assembler", "-target", "amdgcn-amd-amdhsa", "-mcpu=gfx950", "-c", sys.argv[1], "-o", "_g.o"], check=True)
    sy = subprocess.run(["llvm-objdump", "-t", "_g.o"], capture_output=True, text=True).stdout
    ch = {}
    for l in sy.splitlines():
        m = re.match(r"([0-9a-f]+) .* L_(c[a-z])(\d+|_end)$", l)
        if m: ch.setdefault(m.group(2), []).append(int(m.group(1), 16))
    for k, v in ch.items():
        v.sort()
        d = [(b_ - 1) // 64 - a // 64 for a, b_ in zip(v, v[1:])]
        print(k, "pad spans (lines):", d, "TOO FAR" if max(d) > 16 else "", file=sys.stderr)
```

```python
import sys, struct
from asmlib import Asm
NAME = "sequential_preLN__gqa_block_cached__dense_activation_squared_relu__decode"

def f2u(x): return struct.unpack("<I", struct.pack("<f", x))[0]

WS_EP = 0x0
WS_QG = 0x1000
WS_REC = 0x10000
WS_ML = 0x90000
WS_H = 0xA0000
WS_P = 0xB0000
WS_CT = 0xD0000
WS_TS = 0x100000
L_WT = 0
L_WT2 = 57344
L_SB = 147456
L_SM = 158464
L_XN = L_SM
L_QB = L_SM + 2048
L_OB = 147456
L_HB = L_SM + 4096
L_FL = L_SM + 3072
L_UB = L_SM + 5120
L_ZB = L_SM + 5248
L_END = L_SM + 5376

SPIN = 1 << 19
CEXP = f2u(0.0625 * 1.4426950408889634)

def layout(lay="floc", costs=(0, 1.3, 4.0, 1.7), P=5, fx=(0, 4), rotm=1, shuf=9, **_):
    W = []
    for wg in range(256):
        x, j = wg & 7, wg >> 3
        r = dict(role=0, rb=0, rh=0, idx=0, rot=j)
        if lay == "old":
            sp = j >> 1
            r.update(rb=j & 1, rh=x)
            if sp < 7: r.update(role=1, idx=sp)
            elif (sp - 7) * 8 + x < 28: r.update(role=2, idx=(sp - 7) * 8 + x)
            elif sp >= 12: r.update(role=3, idx=j - 24)
        else:
            rest = [k for k in range(8) if k not in fx]
            two, one = [rest[0], rest[3]], [rest[1], rest[2], rest[4], rest[5]]
            if x in fx:
                if j < 28: r.update(role=2, rb=fx.index(x), idx=j)
            elif x in two:
                if j < 28: r.update(role=1, rh=2 * two.index(x) + j // 14, rb=(j % 14) & 1, idx=(j % 14) >> 1)
            else:
                xi = one.index(x)
                if j < 14: r.update(role=1, rh=4 + xi, rb=j & 1, idx=j >> 1)
                elif j < 30: r.update(role=3, rh=(16 * xi + j - 14) >> 3, idx=(j - 14) & 7)
        W.append(r)
    load = [0.0] * 16; mem = [[] for _ in range(16)]
    for x in range(8):
        ws = sorted((wg for wg in range(256) if wg & 7 == x), key=lambda wg: -costs[W[wg]["role"]])
        cnt = [0] * 16
        for wg in ws:
            g = min((g for g in range(16) if cnt[g] < 2), key=lambda g: (load[g], (g - 2 * x) % 16))
            cnt[g] += 1; load[g] += costs[W[wg]["role"]]; mem[g].append(wg)
    if shuf == 9:
        load = [0.0] * 16; mem = [[] for _ in range(16)]
        for wg in range(256):
            g = ((wg >> 3) & 1) * 8 + (((wg & 7) + (wg >> 4)) & 7)
            mem[g].append(wg); load[g] += costs[W[wg]["role"]]
    for g in range(16):
        if shuf == 1: mem[g] = mem[g][g:] + mem[g][:g]
        if shuf == 2:
            m = mem[g][0::2] + mem[g][1::2]
            mem[g] = m[g // 2:] + m[:g // 2]
        tot = 2048 - 16 * P
        base = (tot + load[g]) / 16
        want = [base - costs[W[wg]["role"]] for wg in mem[g]]
        n = [int(w) for w in want]
        for k in sorted(range(16), key=lambda k: n[k] - want[k])[: tot - sum(n)]: n[k] += 1
        st = 0
        for k, wg in enumerate(mem[g]):
            W[wg].update(pr=g, sp=k, first=st, n=n[k])
            if rotm == 1: W[wg]["rot"] = ((wg >> 3) - st) % 32
            if rotm == 2: W[wg]["rot"] = (2 * (wg >> 3) + (wg & 1) - st) % 64
            if rotm == 3: W[wg]["rot"] = ((wg >> 3) + 4 * (wg & 7) - st) % 32
            st += n[k]
        assert st == tot
    return W

def gen(dbg=False, kflags="nt", vflags="nt", wflags="nt", PD=22, DD=24, vperm=True, warm=True,
        lay='floc', costs=(0, 1.3, 4.0, 1.7), fx=(0, 4), stops=(0, 0, 0, 0), fast=True, fflags='', rotm=1, shuf=9, ostf='sc1', rows=(9, 10, 11, 16), rot=True, round_scores=True, NLs=(12, 6, 0, 6), prog=False, D=22, DV=None, CL=3, diag=0, skip="",
        pollpos=64, dmau=8, P=5, prot=4, early=False, touch=True, slp=0, d2=1, d3=2, cyc=False, stf="sc1", ldf="sc1"):
    A = Asm()
    nextra = 3
    def stamp(k):
        if dbg and not (cyc and k in (7, 8, 9)):
            A("s_memrealtime s[92:93]")
            A("s_waitcnt lgkmcnt(0)")
            A(f"v_writelane_b32 v63, s92, {k}")
    cycregs = [64, 66, 68, 70, 72, 74, 76, 78, 84, 86, 88, 90]
    def cy(k):
        if cyc: A(f"s_memtime s[{cycregs[k]}:{cycregs[k]+1}]")
    pads = []
    def pad(chain):
        if not warm: return
        n = sum(1 for p in pads if p == chain)
        pads.append(chain)
        A(f"L_{chain}{n}:")
        A(f"s_cbranch_execz L_{chain}{n-1}" if n else f"s_cbranch_execz L_{chain}_ret")
    def pad_end(chain):
        if warm: A(f"L_{chain}_end:")
    def gap():
        if warm:
            A.raw(".p2alignl 12, 0xbf810000")
    def run_chain(chain):
        if not warm: return
        A("s_mov_b64 exec, 0")
        A(f"s_branch L_{chain}_top")
        A(f"L_{chain}_ret:")
        A("s_mov_b64 exec, -1")
    def fin():
        A("s_branch L_fin" if dbg else "s_endpgm")
    def tr_addr(v, row, c8, t):
        A(f"v_lshrrev_b32 {row}, 2, v60")
        A(f"v_lshl_add_u32 {row}, v61, 3, {row}")
        A(f"v_and_b32 {c8}, 3, v60")
        A(f"v_lshlrev_b32 {c8}, 3, {c8}")
        A(f"v_bfe_u32 {t}, v0, 3, 2")
        A(f"v_xor_b32 {t}, s3, {t}")
        A(f"v_lshl_add_u32 {v}, {row}, 7, {c8}")
        A(f"v_lshl_add_u32 {v}, {t}, 5, {v}")
    def tags():
        A("s_mul_i32 s50, s50, 0x9e3779b1")
        A("s_mul_i32 s51, s51, 0x9e3779b1")
        A("s_add_u32 s50, s50, 0x7f4a7c15")
        A("s_add_u32 s51, s51, 0x7f4a7c15")
        A("s_cmp_eq_u32 s31, 0")
        A("s_cselect_b32 s59, s50, s51")
        A("s_cmp_lt_u32 s76, 8")
        A("s_cselect_b32 s49, s50, s51")
    def sel4(dst, vals):
        A(f"s_mov_b32 {dst}, {vals[0]}")
        for r in (1, 2, 3):
            if vals[r] != vals[0]:
                A(f"s_cmp_eq_u32 s34, {r}")
                A(f"s_cselect_b32 {dst}, {vals[r]}, {dst}")

    A.raw(f"; @launch grid=(256,1,1) block=(256,1,1) lds={L_END}")
    A.raw('.amdgcn_target "amdgcn-amd-amdhsa--gfx950"')
    A.raw(".text")
    A.raw(f".globl {NAME}_kernel")
    A.raw(".p2align 8")
    A.raw(f".type {NAME}_kernel,@function")
    A.raw(f"{NAME}_kernel:")
    A("s_cmp_ge_u32 s2, 256")
    A("s_cbranch_scc1 L_end")
    A("s_load_dwordx16 s[4:19], s[0:1], 0")
    A("s_load_dwordx8 s[20:27], s[0:1], 64")
    A("s_load_dwordx2 s[28:29], s[0:1], 96")
    if dbg:
        A("v_mov_b32 v63, 0")
        A("s_memrealtime s[92:93]")
    if diag: A("s_memrealtime s[94:95]")
    A("s_getpc_b64 s[72:73]")
    A("L_pc0:")
    A("s_add_u32 s72, s72, L_tab-L_pc0")
    A("s_addc_u32 s73, s73, 0")
    A("s_lshl_b32 s60, s2, 4")
    A("s_load_dwordx4 s[84:87], s[72:73], s60")
    A("v_lshrrev_b32 v1, 6, v0")
    A("v_and_b32 v0, 63, v0")
    A("v_readfirstlane_b32 s3, v1")
    A("v_and_b32 v60, 15, v0")
    A("v_lshrrev_b32 v61, 4, v0")
    def decode():
        A("s_bfe_u32 s30, s84, 0x30003")
        A("s_bfe_u32 s31, s84, 0x10002")
        A("s_lshl_b32 s33, s31, 3")
        A("s_or_b32 s33, s33, s30")
        A("s_bfe_u32 s35, s84, 0x50006")
        A("s_bfe_u32 s76, s84, 0x4000b")
        A("s_and_b32 s75, s76, 7")
        A("s_bfe_u32 s32, s84, 0x4000f")
    A("s_cmp_lg_u32 s3, 0")
    A("s_cbranch_scc1 L_help")

    A("s_mov_b32 s47, 0x20000")
    A("v_lshrrev_b32 v8, 3, v0")
    A("v_and_b32 v9, 7, v0")
    A("v_lshlrev_b32 v9, 4, v9")
    A("v_and_b32 v10, 16, v0")
    A("v_lshlrev_b32 v10, 1, v10")
    A("v_xor_b32 v9, v9, v10")
    A("s_mov_b32 s67, 64")
    A(f"s_mov_b32 m0, {L_WT}")
    smask = sum(1 << b for b in range(9, 24) if b not in rows)
    A("v_and_b32 v44, 1, v0")
    A("v_lshlrev_b32 v44, 4, v44")
    A("v_lshl_add_u32 v44, v61, 5, v44")
    for k, rb in ((1, rows[2]), (2, rows[0]), (3, rows[1])):
        A(f"v_bfe_u32 v3, v0, {k}, 1")
        A(f"v_lshl_add_u32 v44, v3, {rb}, v44")
    A("v_add_u32 v45, 128, v44")
    A(f"v_add_u32 v46, {1 << rows[3]}, v44")
    A("v_add_u32 v47, 128, v46")
    def pdep(reg, tmp):
        segs = []; src = 0; b = 9
        while b < 24:
            if smask >> b & 1:
                e = b
                while e < 24 and smask >> e & 1: e += 1
                segs.append((src, e - b, b)); src += e - b; b = e
            else: b += 1
        for n_ in range(len(segs) - 1, 0, -1):
            sb, _, db = segs[n_]; gapw = db - (segs[n_-1][2] + segs[n_-1][1])
            A(f"s_lshr_b32 {tmp}, {reg}, {sb}")
            A(f"s_mul_i32 {tmp}, {tmp}, {((1 << gapw) - 1) << sb}")
            A(f"s_add_u32 {reg}, {reg}, {tmp}")
        A(f"s_lshl_b32 {reg}, {reg}, {segs[0][2]}")
    A("s_mov_b32 s38, 0x1000000")
    A("s_mov_b32 s39, 0x20000")
    A("s_mov_b32 s46, 3670016")
    A("s_waitcnt lgkmcnt(0)")
    if dbg: A("v_writelane_b32 v63, s92, 0")
    A("s_load_dwordx2 s[50:51], s[28:29], 0")
    A("s_and_b32 s34, s84, 3")
    A("s_cbranch_scc0 L_nodma")
    A("s_and_b32 s64, s87, 0xffff")
    A("v_mad_u32_u24 v8, v8, s64, v9")
    A("s_lshl_b32 s64, s64, 3")
    A("s_lshr_b32 s66, s87, 16")
    A("s_mov_b32 s65, s86")
    A("s_cmp_eq_u32 s34, 2")
    A("s_cselect_b64 s[44:45], s[16:17], s[12:13]")
    A("s_cselect_b32 s46, 1605632, s46")
    A("s_cmp_eq_u32 s34, 3")
    A("s_cselect_b64 s[44:45], s[10:11], s[44:45]")
    A("s_and_b32 s45, s45, 0xffff")
    if "d" in skip:
        A("s_cmp_lg_u32 s34, 3")
        A("s_cbranch_scc1 L_nodma")
    A("L_dma:")
    if dmau == 1:
        A(f"s_waitcnt vmcnt({DD-1})")
        A(f"buffer_load_dwordx4 v8, s[44:47], s65 offen {wflags} lds")
        A("v_xor_b32 v8, s67, v8")
        A("s_add_u32 m0, m0, 1024")
        A("s_add_u32 s65, s65, s64")
        A("s_sub_u32 s66, s66, 1")
        A("s_cmp_lg_u32 s66, 0")
        A("s_cbranch_scc1 L_dma")
    else:
        A("v_xor_b32 v9, s67, v8")
        A("s_sub_u32 s74, s64, 1024")
        def dmaloop(lab, fl):
            A(f"{lab}:")
            for h in range(2):
                A(f"s_waitcnt vmcnt({DD-4})")
                for k in range(4):
                    A(f"buffer_load_dwordx4 {'v9' if k & 1 else 'v8'}, s[44:47], s65 offen offset:{1024*k} {fl} lds")
                    A("s_add_u32 s65, s65, s74")
                A("s_add_u32 m0, m0, 4096")
                A("s_add_u32 s65, s65, 4096")
            A("s_sub_u32 s66, s66, 8")
            A("s_cmp_lg_u32 s66, 0")
            A(f"s_cbranch_scc1 {lab}")
        if fflags is not None and fflags != wflags:
            A("s_cmp_eq_u32 s34, 2")
            A("s_cbranch_scc1 L_dma2")
            dmaloop("L_dma1", wflags)
            A("s_branch L_nodma")
            dmaloop("L_dma2", fflags)
        else:
            dmaloop("L_dma1", wflags)
    A("s_cmp_lg_u32 s34, 2")
    A("s_cbranch_scc1 L_nodma")
    A("s_cmp_eq_u32 s67, 0")
    A("s_cbranch_scc1 L_nodma")
    A("s_mov_b32 s44, s20")
    A("s_and_b32 s45, s21, 0xffff")
    A("s_mul_i32 s65, s86, 448")
    A("s_movk_i32 s64, 1024")
    A("s_mov_b32 s67, 0")
    A("s_mov_b32 s66, 56")
    A("v_lshlrev_b32 v8, 4, v0")
    A("s_branch L_dma")
    A("L_nodma:")
    decode()
    A("s_lshl_b32 s56, s76, 24")
    A("s_add_u32 s36, s6, s56")
    A("s_addc_u32 s37, s7, 0")
    A("s_and_b32 s37, s37, 0xffff")
    A("s_bfe_u32 s55, s85, 0x80010")
    A("s_and_b32 s52, s85, 0xffff")
    A("s_add_u32 s53, s52, s55")
    A("s_lshr_b32 s54, s85, 24")
    A("s_add_u32 s54, s54, s52")
    pdep("s54", "s60")
    A(f"s_mov_b32 s71, {smask}")
    DV_ = DV or D
    ring = [("a", 0), ("a", 32), ("a", 64)]
    stage = ("a", 96)
    park = [("a", 128 + 32 * k) for k in range(4)] + [("v", 128 + 32 * k) for k in range(4)]
    NP = len(park)
    def R4(slot, k):
        c, b = slot
        return f"{c}[{b+4*k}:{b+4*k+3}]"
    def ld(slot, u): A(f"buffer_load_dwordx4 {R4(slot, u)}, v{44+(u>>1)}, s[36:39], s54 offen offset:{256*(u&1)} {kflags}")
    def adv():
        A("s_orn2_b32 s54, s54, s71")
        A("s_add_u32 s54, s54, 1")
        A("s_and_b32 s54, s54, s71")
        A("s_cmp_eq_u32 s54, s53")
        A("s_cselect_b32 s54, s52, s54")
    def qpoll():
        A(f"global_load_dwordx4 v[88:91], v83, s[28:29] {ldf}")
        A(f"global_load_dwordx4 v[92:95], v83, s[28:29] offset:1024 {ldf}")
    def qcheck():
        A("v_cmp_ne_u32 s[60:61], s49, v89")
        A("v_cmp_ne_u32 s[62:63], s49, v91")
        A("v_cmp_ne_u32 s[64:65], s49, v93")
        A("v_cmp_ne_u32 vcc, s49, v95")
        A("s_or_b64 s[60:61], s[60:61], s[62:63]")
        A("s_or_b64 vcc, vcc, s[64:65]")
        A("s_or_b64 vcc, vcc, s[60:61]")
    nissued = 0
    PW = PD - 2
    for slot in park + ring:
        if slot == ring[0]:
            A("s_cmp_eq_u32 s68, 0")
            A("s_cbranch_scc1 L_pfl_end")
            A("L_pfl:")
            for u in range(8):
                A(f"s_add_u32 m0, s69, {1024 * u - 256 * (u & 1)}")
                if u % 2 == 0: A(f"s_waitcnt vmcnt({PW})")
                A(f"buffer_load_dwordx4 v{44+(u>>1)}, s[36:39], s54 offen offset:{256*(u&1)} {kflags} lds")
            adv()
            A("s_add_u32 s69, s69, 0x2000")
            A("s_sub_u32 s68, s68, 1")
            A("s_cmp_lg_u32 s68, 0")
            A("s_cbranch_scc1 L_pfl")
            A("L_pfl_end:")
            qpoll()
        for u in range(8):
            if nissued % 2 == 0: A(f"s_waitcnt vmcnt({PW})")
            if nissued == PW:
                A("s_waitcnt lgkmcnt(0)")
                tags()
                A("s_cmp_lg_u32 s34, 3")
                A("s_cbranch_scc1 L_qc_ret0")
                A("s_call_b64 s[62:63], L_qc")
                A("L_qc_ret0:")
            if nissued == PW + 2:
                A("v_and_b32 v21, 1, v60")
                A("v_mov_b32 v22, 0xffff")
                A("v_lshlrev_b32 v85, 4, v21")
                A("v_lshlrev_b32 v22, v85, v22")
                A("v_bfe_u32 v21, v60, 1, 2")
                for kk in range(4):
                    A(f"v_cmp_eq_u32 vcc, {kk}, v21")
                    A(f"v_cndmask_b32 v{4+kk}, 0, v22, vcc")
                A("v_mov_b32 v58, 0xff7f0000")
                A("v_mov_b32 v57, 0")
                for kk in range(32, 40): A(f"v_mov_b32 v{kk}, 0")
                A(f"s_mov_b32 s57, 0x{CEXP:x}")
                A("s_mov_b32 s58, 0")
                if dbg: A("s_mov_b32 s83, 0")
                A("v_lshrrev_b32 v21, 3, v60")
                A("v_lshl_add_u32 v85, v21, 9, v85")
                A("v_lshl_add_u32 v85, v61, 5, v85")
                A(f"v_add_u32 v85, {L_QB}, v85")
                A("v_lshl_add_u32 v2, v61, 1, v21")
                A("v_lshlrev_b32 v2, 3, v2")
                A(f"v_add_u32 v2, {L_SB}, v2")
                A("v_mov_b32 v3, v2")
            if nissued == PW + 4:
                A("s_lshl_b32 s60, s76, 11")
                A(f"s_add_u32 s60, s60, {WS_QG}")
                A("v_lshl_add_u32 v83, v0, 4, s60")
                A("v_lshlrev_b32 v84, 3, v0")
                A(f"v_add_u32 v84, {L_QB}, v84")
                A("v_lshrrev_b32 v80, 1, v61")
                A("v_lshlrev_b32 v80, 10, v80")
                A("v_lshl_add_u32 v80, v60, 5, v80")
                A("v_and_b32 v81, 1, v61")
                A("v_lshl_add_u32 v80, v81, 4, v80")
                A("s_lshl_b32 s60, s76, 15")
                A("s_lshl_b32 s61, s32, 11")
                A("s_add_u32 s60, s60, s61")
                A(f"s_add_u32 s60, s60, {WS_REC}")
                A("v_add_u32 v80, s60, v80")
                A("s_lshl_b32 s60, s76, 9")
                A("s_lshl_b32 s61, s32, 4")
                A("s_add_u32 s60, s60, s61")
                A(f"s_add_u32 s60, s60, {WS_ML}")
                A("v_lshl_add_u32 v81, v0, 5, s60")
                A("s_lshl_b32 s77, s76, 8")
                A(f"s_add_u32 s77, s77, {WS_CT}")
                A(f"s_mul_i32 s82, s76, {prot}")
            if nissued == PW + 6:
                for k in range(4): A(f"v_mov_b32 v{48+k}, v{44+k}")
                A("v_lshlrev_b32 v52, 4, v60")
                for k in range(2):
                    A(f"v_bfe_u32 v21, v61, {k}, 1")
                    A(f"v_lshl_add_u32 v52, v21, {rows[k]}, v52")
                for r in range(1, 4): A(f"v_add_u32 v{52+r}, {(r & 1) << rows[2] | (r >> 1) << rows[3]}, v52")
                A("s_mov_b64 s[42:43], s[36:37]")
                A("s_add_u32 s40, s8, s56")
                A("s_addc_u32 s41, s9, 0")
                A("s_and_b32 s41, s41, 0xffff")
                A("s_bfe_u32 s68, s84, 0x40013")
                A("s_bfe_u32 s48, s84, 0x80017")
                sel4("s69", (0, 65536, 114688, 65536))
                A("v_lshl_add_u32 v82, v0, 4, s69")
                A(f"s_add_u32 s70, s68, {NP}")
                A("v_lshl_add_u32 v1, s70, 6, v2")
                A("s_sub_u32 s72, s55, s70")
                A("s_sub_u32 s73, s72, 3")
                A("s_mov_b32 s79, 0")
                A("s_mov_b32 s75, 0")
            ld(slot, u)
            nissued += 1
        if nissued == 8:
            A("s_mov_b32 s74, s54")
            pdep("s52", "s60")
            pdep("s53", "s60")
        adv()
    stamp(1)
    A("s_waitcnt vmcnt(24)")
    A(f"s_mov_b32 s66, {SPIN}")
    A("s_branch L_qchk")
    A("L_qpoll:")
    qpoll()
    A("s_sub_u32 s66, s66, 1")
    A("s_cbranch_scc1 L_qgot")
    A("s_waitcnt vmcnt(0)")
    A("L_qchk:")
    qcheck()
    A("s_cbranch_scc1 L_qpoll")
    A("L_qgot:")
    A("ds_write2_b32 v84, v88, v90 offset0:0 offset1:1")
    A("ds_write2_b32 v84, v92, v94 offset0:128 offset1:129")
    A("s_waitcnt lgkmcnt(0)")
    for u, ci in enumerate((0, 2, 1, 3)):
        A(f"ds_read_b128 v[{64+4*u}:{67+4*u}], v85 offset:{128*ci}")
    A("s_waitcnt lgkmcnt(0)")
    if dbg: A("v_writelane_b32 v63, s66, 5")
    stamp(2)
    A("s_branch L_k0")
    gap()

    def hook(name):
        A("s_sub_u32 s73, s73, 1")
        A(f"s_cbranch_scc1 L_ls_{name}")
        A(f"L_lb_{name}:")
    def fold(h):
        for c in range(2):
            A(f"v_mov_b32_dpp v{16+2*h+c}, v{8+4*h+2*c} quad_perm:[0,0,2,2] row_mask:0xf bank_mask:0xf")
        A("s_nop 0")
        for c in range(2):
            A(f"v_add_f32_dpp v{16+2*h+c}, v{9+4*h+2*c}, v{16+2*h+c} quad_perm:[1,1,3,3] row_mask:0xf bank_mask:0xf")
        A(f"v_cvt_pk_bf16_f32 v{20+h}, v{16+2*h}, v{17+2*h}")
        A(f"v_max3_f32 v58, v{16+2*h}, v{17+2*h}, v58")
    def kstep(slot, loads, sa):
        for u in range(8):
            d = 8 + 4 * (u >> 2)
            if loads: A(f"s_waitcnt vmcnt({D-1})")
            A(f"v_mfma_f32_16x16x32_bf16 v[{d}:{d+3}], {R4(slot, u)}, v[{64+4*(u&3)}:{67+4*(u&3)}], {'0' if u & 3 == 0 else f'v[{d}:{d+3}]'}")
            if loads: ld(slot, u)
        if loads: adv()
        fold(0)
        fold(1)
        A(f"ds_write_b64 {sa}, v[20:21]")
        A(f"v_add_u32 {sa}, 64, {sa}")
    def vstep(slot):
        A("s_waitcnt lgkmcnt(1)")
        A("v_lshlrev_b32 v16, 16, v22")
        A("v_and_b32 v17, 0xffff0000, v22")
        A("v_lshlrev_b32 v18, 16, v23")
        A("v_and_b32 v19, 0xffff0000, v23")
        A("v_add_u32 v3, 64, v3")
        for r in range(4): A(f"v_sub_f32 v{16+r}, v{16+r}, v56")
        A("ds_read_b64 v[22:23], v3")
        A("ds_read_b32 v62, v3")
        for r in range(4): A(f"v_mul_f32 v{16+r}, s57, v{16+r}")
        for r in range(4): A(f"v_exp_f32 v{16+r}, v{16+r}")
        A("v_cvt_pk_bf16_f32 v40, v16, v16")
        def mkA(r):
            for k in range(4): A(f"v_and_b32 v{24+4*(r&1)+k}, v{40+r}, v{4+k}")
        mkA(0)
        A("v_cvt_pk_bf16_f32 v41, v17, v17")
        for r in range(4):
            a = 24 + 4 * (r & 1)
            A(f"s_waitcnt vmcnt({DV_-1})")
            A(f"v_mfma_f32_16x16x32_bf16 v[32:35], v[{a}:{a+3}], {R4(slot, 2*r)}, v[32:35]")
            ld(slot, 2 * r)
            if r < 3: mkA(r + 1)
            A(f"s_waitcnt vmcnt({DV_-1})")
            A(f"v_mfma_f32_16x16x32_bf16 v[36:39], v[{a}:{a+3}], {R4(slot, 2*r+1)}, v[36:39]")
            ld(slot, 2 * r + 1)
            if r == 0:
                A("v_cvt_pk_bf16_f32 v42, v18, v18")
                A("v_add_f32 v16, v16, v17")
            if r == 1:
                A("v_cvt_pk_bf16_f32 v43, v19, v19")
                A("v_add_f32 v18, v18, v19")
            if r == 2:
                A("v_add_f32 v16, v16, v18")
                A("v_add_f32 v57, v57, v16")
    for i, slot in enumerate(ring):
        if i != 1: pad("ca")
        A(f"L_k{i}:")
        hook(f"k{i}")
        kstep(slot, True, "v1")
        A("s_sub_u32 s72, s72, 1")
        A("s_cmp_eq_u32 s72, 0")
        A(f"s_cbranch_scc1 L_mid{(i+1)%3}")
    A("s_add_u32 s58, s58, 1")
    A("s_cmp_gt_u32 s58, s70")
    A("s_cbranch_scc1 L_k0")
    for i in range(NP):
        A(f"s_cmp_eq_u32 s58, {i+1}")
        A(f"s_cbranch_scc1 L_x{i}")
    A("s_branch L_xs")
    pad_end("ca")
    gap()
    def stage_reads():
        A("s_cmp_eq_u32 s58, s70")
        A("s_cbranch_scc1 L_k0")
        for k in range(8): A(f"ds_read_b128 {R4(stage, k)}, v82 offset:{1024*k}")
        A("v_add_u32 v82, 0x2000, v82")
    for i in range(NP):
        if i % 5 == 0: pad("cx")
        A(f"L_x{i}:")
        kstep(park[i], False, "v2")
        A("s_branch L_k0" if i < NP - 1 else "s_branch L_xr")
    A("L_xs:")
    A("s_waitcnt lgkmcnt(0)")
    kstep(stage, False, "v2")
    A("L_xr:")
    stage_reads()
    A("s_branch L_k0")
    pad_end("cx")
    gap()
    for i, slot in enumerate(ring):
        if i != 1: pad("cv")
        A(f"L_v{i}:")
        hook(f"v{i}")
        vstep(slot)
        A("s_sub_u32 s72, s72, 1")
        A("s_cmp_eq_u32 s72, 0")
        A(f"s_cbranch_scc1 L_nxt{(i+1)%3}")
        adv()
    A("s_branch L_v0")
    for i in range(3):
        A(f"L_nxt{i}:")
        A("s_sub_u32 s75, s75, 1")
        A("s_cbranch_scc1 L_sdone")
        A("s_mov_b32 s72, 1")
        A(f"s_branch L_k{i}")
    for i in range(3):
        A(f"L_mid{i}:")
        A("s_call_b64 s[62:63], L_mid")
        A(f"s_branch L_v{i}")
    for nm in ("k0", "k1", "k2", "v0", "v1", "v2"):
        A(f"L_ls_{nm}:")
        A("s_call_b64 s[62:63], L_ls")
        A(f"s_branch L_lb_{nm}")
    pad("cv")
    A("L_mid:")
    A("s_cmp_ge_u32 s79, 2")
    A("s_cbranch_scc1 L_midp")
    stamp(4)
    A("ds_read_b64 v[22:23], v3")
    A("ds_read_b32 v62, v3")
    A("v_mov_b32 v59, v58")
    A("s_mov_b32 s72, s55")
    A("v_permlane32_swap_b32 v59, v58")
    A("v_max_f32 v58, v58, v59")
    A("v_mov_b32 v59, v58")
    A("v_permlane16_swap_b32 v59, v58")
    A("v_max_f32 v58, v58, v59")
    A("v_cvt_pk_bf16_f32 v56, v58, v58")
    A("v_lshlrev_b32 v56, 16, v56")
    A("L_mid_ret:")
    A("s_setpc_b64 s[62:63]")
    A("L_midp:")
    A("s_waitcnt lgkmcnt(1)")
    A("v_mov_b32 v22, v20")
    A("v_mov_b32 v23, v21")
    A("v_subrev_u32 v1, 64, v1")
    A("v_subrev_u32 v3, 64, v3")
    A("v_cvt_pk_bf16_f32 v18, v58, v58")
    A("v_lshlrev_b32 v18, 16, v18")
    A("s_mov_b32 s72, 1")
    A("v_cmp_gt_f32 vcc, v18, v56")
    A("s_cbranch_vccz L_mid_ret")
    A("v_mov_b32 v59, v18")
    A("v_permlane32_swap_b32 v59, v18")
    A("v_max_f32 v18, v18, v59")
    A("v_mov_b32 v59, v18")
    A("v_permlane16_swap_b32 v59, v18")
    A("v_max3_f32 v18, v18, v59, v56")
    A("v_sub_f32 v59, v56, v18")
    A("v_mul_f32 v59, s57, v59")
    A("v_exp_f32 v59, v59")
    A("v_mov_b32 v56, v18")
    A("v_mul_f32 v57, v57, v59")
    A("v_readlane_b32 s60, v59, 0")
    A("v_readlane_b32 s61, v59, 8")
    A("v_mov_b32 v59, s60")
    A("s_mov_b32 exec_lo, 0")
    A("v_mov_b32 v59, s61")
    A("s_mov_b64 exec, -1")
    for k in range(32, 40): A(f"v_mul_f32 v{k}, v{k}, v59")
    A("L_mid_ret2:")
    A("s_setpc_b64 s[62:63]")
    npool = 16 * P
    A("L_ls:")
    A("s_cmp_eq_u32 s79, 2")
    A("s_cbranch_scc1 L_ls2")
    A("s_cmp_eq_u32 s79, 1")
    A("s_cbranch_scc1 L_ls1")
    A("s_mov_b64 s[36:37], s[40:41]")
    for k in range(4): A(f"v_mov_b32 v{44+k}, v{52+k}")
    A("s_mov_b32 s54, s74")
    A(f"s_sub_u32 s60, s55, {1 + CL}")
    A("s_cmp_eq_u32 s79, 0")
    A("s_cselect_b32 s73, s60, 0")
    A("s_cselect_b32 s79, 1, 2")
    A("s_setpc_b64 s[62:63]")
    A("L_ls1:")
    A(f"s_mov_b32 s73, {CL - 1}")
    A("s_mov_b32 s79, 2")
    A("s_branch L_claim")
    A("L_ls2:")
    A("s_waitcnt lgkmcnt(0)")
    A(f"s_cmp_ge_u32 s78, {npool}")
    A("s_cbranch_scc1 L_ls_end")
    if dbg: A("s_add_u32 s83, s83, 1")
    A("s_add_u32 s54, s78, s82")
    A(f"s_cmp_ge_u32 s54, {npool}")
    A(f"s_cselect_b32 s60, {npool}, 0")
    A("s_sub_u32 s54, s54, s60")
    A(f"s_add_u32 s54, s54, {2048 - npool}")
    pdep("s54", "s60")
    A("s_mov_b32 s74, s54")
    A("s_mov_b64 s[36:37], s[42:43]")
    for k in range(4): A(f"v_mov_b32 v{44+k}, v{48+k}")
    A("s_add_u32 s75, s75, 1")
    A("s_mov_b32 s73, 0")
    A("s_mov_b32 s79, 3")
    if any(stops):
        A("s_cmp_ge_u32 s78, s48")
        A("s_movk_i32 s78, 0x7fff")
        A("s_cbranch_scc1 L_ls_ret")
    A("L_claim:")
    A("s_mov_b32 s78, 1")
    A("s_atomic_add s78, s[28:29], s77 glc")
    A("L_ls_ret:")
    A("s_setpc_b64 s[62:63]")
    A("L_ls_end:")
    A("s_mov_b32 s38, 0")
    A("s_movk_i32 s73, 0x7fff")
    A("s_setpc_b64 s[62:63]")
    A("L_sdone:")
    stamp(3)
    if dbg: A("v_writelane_b32 v63, s83, 13")
    A("v_mov_b32 v21, v57")
    A("v_mov_b32 v24, v56")
    A("v_mov_b32 v26, s49")
    A("v_permlane32_swap_b32 v21, v57")
    A("s_movk_i32 s61, 0xff")
    A("v_add_f32 v57, v57, v21")
    A("v_mov_b32 v21, v57")
    A("v_bfi_b32 v32, s61, v26, v32")
    A(f"global_store_dwordx4 v80, v[32:35], s[28:29] {stf}")
    A("v_permlane16_swap_b32 v21, v57")
    A("v_bfi_b32 v36, s61, v26, v36")
    A(f"global_store_dwordx4 v80, v[36:39], s[28:29] offset:512 {stf}")
    A("v_add_f32 v25, v57, v21")
    A("s_mov_b64 exec, 0x101")
    A(f"global_store_dwordx4 v81, v[24:27], s[28:29] {stf}")
    A("s_mov_b64 exec, -1")
    A("s_sub_u32 s60, s34, 1")
    A("s_cmp_lt_u32 s60, 2")
    A("s_cbranch_scc1 L_tail")
    fin()
    pad_end("cv")

    def reduce_sum(v, t, width):
        for sh in (8, 4, 2, 1):
            A(f"v_add_f32_dpp v{v}, v{v}, v{v} row_ror:{sh} row_mask:0xf bank_mask:0xf")
        A(f"v_mov_b32 v{t}, v{v}")
        A(f"v_permlane16_swap_b32 v{t}, v{v}")
        A(f"v_add_f32 v{v}, v{v}, v{t}")
        if width == 64:
            A(f"v_mov_b32 v{t}, v{v}")
            A(f"v_permlane32_swap_b32 v{t}, v{v}")
            A(f"v_add_f32 v{v}, v{v}, v{t}")
    def layernorm(X, D_, npair, T, width, out, emask=None):
        P = lambda r: f"v[{r}:{r+1}]"
        if width == 64:
            A(f"v_readfirstlane_b32 s60, v{X}")
            A(f"s_mov_b64 exec, {emask}")
            A("s_mov_b32 s61, s60")
            for i in range(npair):
                A(f"v_pk_add_f32 {P(D_+2*i)}, {P(X+2*i)}, s[60:61] neg_lo:[0,1] neg_hi:[0,1]")
            A(f"v_pk_add_f32 {P(T+4)}, {P(D_)}, {P(D_+2)}")
            A(f"v_pk_mul_f32 {P(T+6)}, {P(D_)}, {P(D_)}")
            for i in range(1, npair):
                if i >= 2: A(f"v_pk_add_f32 {P(T+4)}, {P(T+4)}, {P(D_+2*i)}")
                A(f"v_pk_fma_f32 {P(T+6)}, {P(D_+2*i)}, {P(D_+2*i)}, {P(T+6)}")
            A(f"v_add_f32 v{T}, v{T+4}, v{T+5}")
            A(f"v_add_f32 v{T+2}, v{T+6}, v{T+7}")
            A("s_mov_b64 exec, -1")
            for sh in (8, 4, 2, 1):
                for v in (T, T + 2):
                    A(f"v_add_f32_dpp v{v}, v{v}, v{v} row_ror:{sh} row_mask:0xf bank_mask:0xf")
            A(f"v_permlane32_swap_b32 v{T}, v{T+2}")
            A(f"v_add_f32 v{T}, v{T}, v{T+2}")
            A(f"v_mov_b32 v{T+2}, v{T}")
            A(f"v_permlane16_swap_b32 v{T+2}, v{T}")
            A(f"v_add_f32 v{T}, v{T}, v{T+2}")
            A(f"v_mul_f32 v{T}, 0x{f2u(1.0/448):x}, v{T}")
            A(f"v_mov_b32 v{T+2}, v{T}")
            A(f"v_permlane32_swap_b32 v{T}, v{T+2}")
            A(f"v_fma_f32 v{T+2}, -v{T}, v{T}, v{T+2}")
            A(f"v_add_f32 v{T}, s60, v{T}")
            A(f"v_max_f32 v{T+2}, 0, v{T+2}")
        else:
            A(f"v_pk_add_f32 {P(T+4)}, {P(X)}, {P(X+2)}")
            for i in range(2, npair): A(f"v_pk_add_f32 {P(T+4)}, {P(T+4)}, {P(X+2*i)}")
            A(f"v_add_f32 v{T}, v{T+4}, v{T+5}")
            reduce_sum(T, T + 1, width)
            A(f"v_mul_f32 v{T}, 0x{f2u(1.0/448):x}, v{T}")
            for i in range(npair):
                A(f"v_pk_add_f32 {P(D_+2*i)}, {P(X+2*i)}, {P(T)} op_sel_hi:[1,0] neg_lo:[0,1] neg_hi:[0,1]")
            A(f"v_pk_mul_f32 {P(T+4)}, {P(D_)}, {P(D_)}")
            for i in range(1, npair): A(f"v_pk_fma_f32 {P(T+4)}, {P(D_+2*i)}, {P(D_+2*i)}, {P(T+4)}")
            A(f"v_add_f32 v{T+2}, v{T+4}, v{T+5}")
            reduce_sum(T + 2, T + 3, width)
            A(f"v_mul_f32 v{T+2}, 0x{f2u(1.0/448):x}, v{T+2}")
        A(f"v_cvt_pk_bf16_f32 v{T+4}, v{T}, v{T+2}")
        A(f"v_lshlrev_b32 v{T}, 16, v{T+4}")
        A(f"v_and_b32 v{T+2}, 0xffff0000, v{T+4}")
        A(f"v_add_f32 v{T+2}, 0x{f2u(1e-5):x}, v{T+2}")
        A(f"v_pk_add_f32 {P(D_)}, {P(X)}, {P(T)} op_sel_hi:[1,0] neg_lo:[0,1] neg_hi:[0,1]")
        A(f"v_cvt_pk_bf16_f32 v{T+2}, v{T+2}, v{T+2}")
        A(f"v_lshlrev_b32 v{T+2}, 16, v{T+2}")
        A(f"v_sqrt_f32 v{T+2}, v{T+2}")
        for i in range(1, npair):
            A(f"v_pk_add_f32 {P(D_+2*i)}, {P(X+2*i)}, {P(T)} op_sel_hi:[1,0] neg_lo:[0,1] neg_hi:[0,1]")
        A(f"v_cvt_pk_bf16_f32 v{T+2}, v{T+2}, v{T+2}")
        A(f"v_lshlrev_b32 v{T+2}, 16, v{T+2}")
        A(f"v_rcp_f32 v{T+2}, v{T+2}")
        for i in range(npair): A(f"v_cvt_pk_bf16_f32 v{D_+2*i+1}, v{D_+2*i}, v{D_+2*i+1}")
        for i in range(npair):
            A(f"v_lshlrev_b32 v{D_+2*i}, 16, v{D_+2*i+1}")
            A(f"v_and_b32 v{D_+2*i+1}, 0xffff0000, v{D_+2*i+1}")
        for i in range(npair): A(f"v_pk_mul_f32 {P(D_+2*i)}, {P(D_+2*i)}, {P(T+2)} op_sel_hi:[1,0]")
        for i in range(npair): A(f"v_cvt_pk_bf16_f32 v{out+i}, v{D_+2*i}, v{D_+2*i+1}")

    A.raw(".p2align 6")
    A("L_help:")
    A("v_lshrrev_b32 v1, 5, v0")
    A("v_mul_u32_u24 v1, 896, v1")
    A("v_and_b32 v2, 31, v0")
    A("v_lshl_add_u32 v1, v2, 2, v1")
    A("s_waitcnt lgkmcnt(0)")
    if dbg: A("v_writelane_b32 v63, s92, 0")
    A("s_load_dwordx2 s[50:51], s[28:29], 0")
    A("s_and_b32 s34, s84, 3")
    decode()
    A("s_cmp_eq_u32 s3, 2")
    A("s_cbranch_scc1 L_w2")
    A("s_cmp_eq_u32 s3, 3")
    A("s_cbranch_scc1 L_w3")
    A("s_cmp_lg_u32 s34, 3")
    A("s_cbranch_scc1 L_w1n")
    for i in range(7): A(f"global_load_dword v{8+i}, v1, s[4:5] offset:{128*i}")
    A(f"v_add_u32 v5, {L_XN}, v1")
    A("s_waitcnt vmcnt(0) lgkmcnt(0)")
    tags()
    stamp(1)
    for i in range(7):
        A(f"v_lshlrev_b32 v{16+2*i}, 16, v{8+i}")
        A(f"v_and_b32 v{17+2*i}, 0xffff0000, v{8+i}")
    layernorm(16, 32, 7, 46, 32, 8)
    for i in range(7): A(f"ds_write_b32 v5, v{8+i} offset:{128*i}")
    stamp(2)
    A("s_call_b64 s[62:63], L_qc")
    fin()
    gap()
    pad("cq")
    A("L_qc:")
    tr_addr("v120", "v121", "v122", "v123")
    A("v_and_b32 v122, 1, v60")
    A("v_cmp_eq_u32 vcc, 0, v122")
    A("v_mul_u32_u24 v121, 896, v122")
    A("v_lshl_add_u32 v121, v61, 4, v121")
    A(f"v_add_u32 v121, {L_XN}, v121")
    A("v_lshlrev_b32 v122, 14, v122")
    A("v_lshl_add_u32 v122, v61, 4, v122")
    A("s_lshl_b32 s60, s30, 11")
    A("s_lshl_b32 s61, s35, 8")
    A("s_add_u32 s60, s60, s61")
    A("s_lshl_b32 s61, s3, 6")
    A("s_add_u32 s60, s60, s61")
    A(f"s_add_u32 s60, s60, {WS_QG}")
    A("v_add_u32 v122, s60, v122")
    A("v_mov_b32 v13, s50")
    A("v_mov_b32 v15, s51")
    A("v_cndmask_b32 v13, v15, v13, vcc")
    A("v_mov_b32 v15, v13")
    A("s_waitcnt lgkmcnt(0)")
    A("s_barrier")
    stamp(11 if not prog else 9)
    for t in range(14):
        A(f"ds_read_b128 v[{64+4*t}:{67+4*t}], v121 offset:{64*t}")
        A(f"ds_read_b64_tr_b16 v[{128+4*t}:{129+4*t}], v120 offset:{L_WT + 4096*t}")
        A(f"ds_read_b64_tr_b16 v[{130+4*t}:{131+4*t}], v120 offset:{L_WT + 4096*t + 512}")
        if t >= 4:
            A("s_waitcnt lgkmcnt(12)")
            tt = t - 4
            A(f"v_mfma_f32_16x16x32_bf16 v[8:11], v[{128+4*tt}:{131+4*tt}], v[{64+4*tt}:{67+4*tt}], {'0' if tt == 0 else 'v[8:11]'}")
    for tt in range(10, 14):
        A(f"s_waitcnt lgkmcnt({3*(13-tt)})")
        A(f"v_mfma_f32_16x16x32_bf16 v[8:11], v[{128+4*tt}:{131+4*tt}], v[{64+4*tt}:{67+4*tt}], v[8:11]")
    A("s_mov_b32 exec_lo, 0x00030003")
    A("s_mov_b32 exec_hi, 0x00030003")
    A("v_cvt_pk_bf16_f32 v12, v8, v9")
    A("v_cvt_pk_bf16_f32 v14, v10, v11")
    A(f"global_store_dwordx4 v122, v[12:15], s[28:29] {stf}")
    A("s_mov_b64 exec, -1")
    stamp(8)
    A("s_nop 1")
    A("s_setpc_b64 s[62:63]")
    pad_end("cq")
    A("L_w2:")
    if touch:
        A("s_lshl_b32 s60, s76, 15")
        A("s_lshl_b32 s61, s32, 11")
        A("s_add_u32 s60, s60, s61")
        A(f"s_add_u32 s60, s60, {WS_REC}")
        A("v_lshl_add_u32 v2, v60, 7, s60")
        A("s_mul_i32 s60, s33, 1792")
        A("s_lshl_b32 s61, s35, 8")
        A("s_add_u32 s60, s60, s61")
        A(f"s_add_u32 s60, s60, {WS_H}")
        A("s_mul_i32 s61, s31, 28")
        A("s_add_u32 s61, s61, s35")
        A("s_mul_i32 s61, s61, 1792")
        A(f"s_add_u32 s61, s61, {WS_P}")
        A("s_lshl_b32 s62, s76, 9")
        A(f"s_add_u32 s62, s62, {WS_ML}")
        A("s_cmp_eq_u32 s34, 1")
        A("s_cselect_b32 s62, s60, s62")
        A("s_cselect_b32 s63, 0x3ffff, 0xfffff" if False else "s_mov_b32 s63, 0xfffff")
        A("s_cselect_b32 s63, 0x3ffff, s63")
        A("s_cmp_eq_u32 s34, 2")
        A("s_cselect_b32 s62, s61, s62")
        A("s_cselect_b32 s63, 0x3fffffff, s63")
        A("v_lshl_add_u32 v3, v60, 7, s62")
        A("v_cmp_gt_u32 vcc, 16, v0")
        A("v_cndmask_b32 v2, v3, v2, vcc")
        A("s_mov_b32 exec_lo, s63")
        A("s_mov_b32 exec_hi, 0")
        A("global_load_dword v255, v2, s[28:29]")
        A("s_mov_b64 exec, -1")
    run_chain("ca")
    A("s_waitcnt lgkmcnt(0)")
    tags()
    stamp(1)
    A("s_cmp_lg_u32 s34, 3")
    A("s_cbranch_scc1 L_w2n")
    A("s_call_b64 s[62:63], L_qc")
    A("L_w2n:")
    run_chain("cv")
    A("s_branch L_hnext")
    A("L_w3:")
    A("s_waitcnt lgkmcnt(0)")
    tags()
    A("s_cmp_lg_u32 s34, 3")
    A("s_cbranch_scc1 L_w3n")
    A("s_cmp_ge_u32 s35, 2")
    A("s_cbranch_scc1 L_w3q")
    A("s_lshl_b32 s60, s35, 3")
    A("s_add_u32 s60, s60, s30")
    A("s_lshl_b32 s60, s60, 8")
    A(f"s_add_u32 s60, s60, {WS_CT}")
    A("s_mov_b32 s61, 0")
    A("s_atomic_add s61, s[28:29], s60 glc")
    A("s_waitcnt lgkmcnt(0)")
    A("s_sub_u32 s61, 0, s61")
    A("s_atomic_add s61, s[28:29], s60 glc")
    A("L_w3q:")
    run_chain("cq")
    A("s_waitcnt lgkmcnt(0)")
    A("s_call_b64 s[62:63], L_qc")
    A("L_w3n:")
    run_chain("cx")
    if fast:
        A("s_cmp_lg_u32 s34, 2")
        A("s_cbranch_scc1 L_hnext")
        A("s_getreg_b32 s60, hwreg(HW_REG_XCC_ID, 0, 4)")
        A("s_and_b32 s60, s60, 7")
        A("s_lshl_b32 s64, s31, 7")
        A("s_and_b32 s61, s60, 4")
        A("s_add_u32 s61, s61, s64")
        A("s_and_b32 s60, s60, 3")
        A("s_lshl_b32 s60, s60, 3")
        A("s_lshl_b32 s65, 1, s60")
        A("s_atomic_add s65, s[26:27], s61")
        A("s_lshl_b32 s69, 28, s60")
        A(f"s_mov_b32 s55, {SPIN}")
        A("L_xpoll:")
        A("s_sleep 16")
        A("s_load_dwordx2 s[66:67], s[26:27], s64 glc")
        A("s_sub_u32 s55, s55, 1")
        A("s_cbranch_scc1 L_xgot")
        A("s_waitcnt lgkmcnt(0)")
        A("s_add_u32 s68, s66, s67")
        A("s_mul_i32 s68, s68, 0x01010101")
        A("s_lshr_b32 s68, s68, 24")
        A("s_cmp_lt_u32 s68, 28")
        A("s_cbranch_scc1 L_xpoll")
        A("L_xgot:")
        A("s_waitcnt lgkmcnt(0)")
        A("s_bitcmp1_b32 s61, 2")
        A("s_cselect_b32 s66, s67, s66")
        A("s_cmp_eq_u32 s66, s69")
        A("s_cselect_b32 s66, 1, 0")
        A("v_mov_b32 v5, s66")
        A(f"v_mov_b32 v7, {L_FL}")
        A("ds_write_b32 v7, v5")
        A("s_waitcnt lgkmcnt(0)")
    stamp(1)
    A("s_branch L_hnext")
    A("L_w1n:")
    A("s_waitcnt lgkmcnt(0)")
    tags()
    A("s_cmp_eq_u32 s34, 0")
    A("s_cbranch_scc1 L_fin")
    A("s_cmp_eq_u32 s34, 2")
    A("s_cbranch_scc1 L_w1f")
    run_chain("cw")
    A("s_branch L_hnext")
    A("L_w1f:")
    run_chain("cf")
    A("v_mov_b32 v5, 0")
    A("v_lshlrev_b32 v7, 2, v0")
    A(f"v_add_u32 v7, {L_ZB}, v7")
    A("s_mov_b32 exec_hi, 0")
    A("ds_write_b32 v7, v5")
    A("s_mov_b64 exec, -1")
    A("s_waitcnt lgkmcnt(0)")
    stamp(1)
    A("L_hnext:")
    A("s_sub_u32 s60, s34, 1")
    A("s_cmp_ge_u32 s60, 2")
    A("s_cbranch_scc1 L_fin")

    A("L_tail:")
    def gate(nm):
        if early:
            A("s_cmp_eq_u32 s3, 0")
            A(f"s_cbranch_scc1 L_gate{nm}")
            A("s_barrier")
            A(f"L_gate{nm}:")
        else: A("s_barrier")
    def backoff():
        if slp: A(f"s_sleep {slp}")
    A("s_lshl_b32 s52, s3, 5")
    A(f"s_mov_b32 s55, {SPIN}")
    A("s_movk_i32 s58, 0xff")
    A("v_mov_b32 v59, s59")
    A("s_cmp_eq_u32 s34, 2")
    A("s_cbranch_scc1 L_F")
    A("s_lshl_b32 s60, s33, 15")
    A("s_lshl_b32 s61, s3, 13")
    A("s_add_u32 s60, s60, s61")
    A(f"s_add_u32 s60, s60, {WS_REC + 4096}")
    A("v_lshl_add_u32 v1, v0, 4, s60")
    A("s_lshl_b32 s60, s33, 9")
    A(f"s_add_u32 s60, s60, {WS_ML}")
    A("s_lshl_b32 s61, s3, 2")
    A("v_add_u32 v2, s61, v60")
    A("v_and_b32 v2, 15, v2")
    A("v_lshl_add_u32 v2, v2, 4, s60")
    gate("W")
    stamp(6)
    A("s_branch L_W2")
    gap()
    pad("cw")
    A("L_W2:")
    def wml():
        A(f"global_load_dwordx3 v[8:10], v2, s[28:29] {ldf}")
        A(f"global_load_dwordx3 v[12:14], v2, s[28:29] offset:256 {ldf}")
    def wdata():
        for t in range(8):
            A(f"global_load_dwordx4 v[{16+4*t}:{19+4*t}], v1, s[28:29] offset:{1024*t - 4096} {ldf}")
    wdata()
    wml()
    tr_addr("v5", "v7", "v6", "v4")
    for t in range(16):
        A(f"ds_read_b64_tr_b16 v[{128+4*t}:{129+4*t}], v5 offset:{L_WT + 4096*t}")
        A(f"ds_read_b64_tr_b16 v[{130+4*t}:{131+4*t}], v5 offset:{L_WT + 4096*t + 512}")
    A(f"s_mov_b32 s57, 0x{CEXP:x}")
    A("s_mul_i32 s60, s3, 1088")
    A(f"s_add_u32 s60, s60, {L_OB}")
    A("v_lshl_add_u32 v56, v0, 3, s60")
    A("v_and_b32 v4, 3, v60")
    A("v_mul_u32_u24 v4, 1088, v4")
    A("v_lshl_add_u32 v4, v61, 4, v4")
    A(f"v_add_u32 v4, {L_OB}, v4")
    A("s_mul_i32 s60, s33, 1792")
    A("s_lshl_b32 s61, s35, 8")
    A("s_add_u32 s60, s60, s61")
    A("s_lshl_b32 s61, s3, 6")
    A("s_add_u32 s60, s60, s61")
    A(f"s_add_u32 s60, s60, {WS_H}")
    A("v_lshl_add_u32 v57, v61, 4, s60")
    A("s_branch L_wchk")
    pad("cw")
    A("L_wpoll:")
    backoff()
    wdata()
    A("L_wpoll2:")
    wml()
    A("s_sub_u32 s55, s55, 1")
    A("s_cbranch_scc1 L_wgot")
    A("L_wchk:")
    A("s_waitcnt vmcnt(2)")
    A("v_xor_b32 v11, v16, v59")
    for t in range(1, 8): A(f"v_bitop3_b32 v11, v{16+4*t}, v11, v59 bitop3:0xde")
    A("v_and_b32 v11, s58, v11")
    A("v_cmp_ne_u32 vcc, 0, v11")
    A("s_waitcnt vmcnt(0)")
    A("v_xor_b32 v11, v10, v59")
    A("s_cbranch_vccnz L_wpoll")
    A("v_bitop3_b32 v11, v14, v11, v59 bitop3:0xde")
    A("v_cmp_ne_u32 vcc, 0, v11")
    A("v_max_f32_dpp v10, v8, v8 row_ror:8 row_mask:0xf bank_mask:0xf")
    A("v_max_f32_dpp v14, v12, v12 row_ror:8 row_mask:0xf bank_mask:0xf")
    A("s_cbranch_vccnz L_wpoll2")
    A("L_wgot:")
    cy(0)
    stamp(7)
    if dbg: A("v_writelane_b32 v63, s55, 12")
    for sh in (4, 2, 1):
        for v in (10, 14): A(f"v_max_f32_dpp v{v}, v{v}, v{v} row_ror:{sh} row_mask:0xf bank_mask:0xf")
    for v in (10, 14): A(f"v_sub_f32 v{v}, v{v-2}, v{v}")
    for v in (10, 14): A(f"v_mul_f32 v{v}, s57, v{v}")
    for v in (10, 14): A(f"v_exp_f32 v{v}, v{v}")
    for v in (10, 14): A(f"v_mul_f32 v{v+1}, v{v}, v{v-1}")
    cy(1)
    seq = []
    for i in range(4):
        for h in range(2):
            for k in range(4):
                op = "v_mul_f32_dpp" if i == 0 else "v_fmac_f32_dpp"
                seq.append(f"{op} v{48+4*h+k}, v{10+4*h}, v{16+8*i+4*h+k} row_newbcast:{i} row_mask:0xf bank_mask:0xf")
    red = [f"v_add_f32_dpp v{v}, v{v}, v{v} row_ror:{sh} row_mask:0xf bank_mask:0xf" for sh in (8, 4, 2, 1) for v in (11, 15)] + ["v_rcp_f32 v8, v11", "v_rcp_f32 v12, v15"]
    for i, s_ in enumerate(seq):
        A(s_)
        if i % 3 == 2 and red: A(red.pop(0))
    assert not red
    for h in range(2):
        for k in range(2):
            A(f"v_pk_mul_f32 v[{48+4*h+2*k}:{49+4*h+2*k}], v[{48+4*h+2*k}:{49+4*h+2*k}], v[{8+4*h}:{9+4*h}] op_sel_hi:[1,0]")
    for k in range(4): A(f"v_cvt_pk_bf16_f32 v{16+k}, v{48+2*k}, v{49+2*k}")
    cy(2)
    A("ds_write_b64 v56, v[16:17]")
    A("ds_write_b64 v56, v[18:19] offset:512")
    A("s_waitcnt lgkmcnt(0)")
    cy(3)
    A("s_barrier")
    cy(4)
    for t in range(16):
        A(f"ds_read_b128 v[{64+4*t}:{67+4*t}], v4 offset:{64*t}")
    pad("cw")
    for t in range(16):
        A(f"s_waitcnt lgkmcnt({15-t})")
        A(f"v_mfma_f32_16x16x32_bf16 v[8:11], v[{128+4*t}:{131+4*t}], v[{64+4*t}:{67+4*t}], {'0' if t == 0 else 'v[8:11]'}")
    cy(5)
    for qp in ("[1,0,3,2]", "[2,3,0,1]"):
        for k in range(4): A(f"v_add_f32_dpp v{8+k}, v{8+k}, v{8+k} quad_perm:{qp} row_mask:0xf bank_mask:0xf")
    A("s_mov_b32 exec_lo, 0x00010001")
    A("s_mov_b32 exec_hi, 0x00010001")
    A("v_bfi_b32 v8, s58, v59, v8")
    A(f"global_store_dwordx4 v57, v[8:11], s[28:29] {stf}")
    cy(6)
    A("s_mov_b64 exec, -1")
    stamp(8)
    fin()
    pad_end("cw")

    A("L_F:")
    A("s_mov_b32 s80, 0x3fff3fff")
    A("s_mov_b32 s81, 0x3fff3fff")
    A("v_mul_u32_u24 v3, 14, v61")
    A("v_add_u32 v3, v3, v60")
    A("s_lshl_b32 s60, s35, 7")
    A("s_add_u32 s60, s60, s52")
    A("v_lshl_add_u32 v1, v61, 3, s60")
    A("global_load_dwordx2 v[48:49], v1, s[18:19] nt")
    A("s_lshl_b32 s60, s35, 5")
    A("v_and_b32 v42, 3, v0")
    A("v_lshl_add_u32 v42, v42, 2, v61")
    A("v_lshl_add_u32 v42, v42, 1, s60")
    A("global_load_ushort v62, v42, s[22:23] nt")
    A("s_mul_i32 s60, s31, 896")
    A("v_lshl_add_u32 v1, v3, 3, s60")
    A("s_mov_b64 exec, s[80:81]")
    A("global_load_dwordx2 v[52:53], v1, s[4:5] nt")
    A("global_load_dwordx2 v[54:55], v1, s[4:5] offset:448 nt")
    A("s_mov_b64 exec, -1")
    A(f"v_add_u32 v43, {L_HB}, v42")
    A("v_add_u32 v42, s60, v42")
    A("v_lshlrev_b32 v58, 3, v3")
    A(f"v_add_u32 v58, {L_HB}, v58")
    A("s_mul_i32 s60, s31, 14336")
    A("s_mul_i32 s61, s3, 3584")
    A("s_add_u32 s60, s60, s61")
    A(f"s_add_u32 s60, s60, {WS_H}")
    A("v_lshl_add_u32 v1, v3, 4, s60")
    A("v_lshlrev_b32 v4, 4, v0")
    A(f"v_add_u32 v4, {L_OB}, v4")
    A("s_lshl_b32 s60, s3, 11")
    A("v_add_u32 v2, s60, v4")
    A("v_lshrrev_b32 v7, 2, v60")
    A("v_and_b32 v6, 3, v60")
    A("v_lshlrev_b32 v6, 3, v6")
    A("v_mul_u32_u24 v5, 56, v61")
    A("v_add_u32 v5, v5, v7")
    A("v_lshl_add_u32 v5, v5, 7, v6")
    A("v_bfe_u32 v8, v0, 3, 2")
    A("v_xor_b32 v8, s3, v8")
    A("v_lshl_add_u32 v5, v8, 5, v5")
    A("v_xor_b32 v9, 64, v5")
    A("v_lshl_add_u32 v7, v61, 3, v7")
    A("v_mul_u32_u24 v3, 896, v7")
    A("v_add_u32 v3, v3, v6")
    A("s_mul_i32 s60, s3, 224")
    A(f"s_add_u32 s60, s60, {L_WT2}")
    A("v_add_u32 v3, s60, v3")
    A("v_lshlrev_b32 v10, 4, v61")
    A(f"v_add_u32 v10, {L_UB}, v10")
    A(f"v_mov_b32 v11, {L_ZB}")
    for nb in range(7):
        A(f"v_cmp_eq_u32 vcc, {nb}, v60")
        A(f"v_cndmask_b32 v{184+nb}, v11, v10, vcc")
    A("v_lshl_add_u32 v57, v61, 3, s52")
    A(f"v_add_u32 v57, {L_UB}, v57")
    A("s_mul_i32 s60, s31, 28")
    A("s_add_u32 s60, s60, s35")
    A("s_mul_i32 s60, s60, 1792")
    A("s_mul_i32 s61, s3, 448")
    A("s_add_u32 s60, s60, s61")
    A(f"s_add_u32 s60, s60, {WS_P}")
    A("v_lshlrev_b32 v56, 6, v60")
    A("v_lshl_add_u32 v56, v61, 4, v56")
    A("v_add_u32 v56, s60, v56")
    A("s_mul_i32 s60, s31, 50176")
    A("s_lshl_b32 s61, s35, 6")
    A("s_add_u32 s60, s60, s61")
    A(f"s_add_u32 s60, s60, {WS_P}")
    A("v_lshrrev_b32 v40, 2, v0")
    A("v_min_u32 v41, 11, v40")
    A("v_add_u32 v41, 16, v41")
    A("v_and_b32 v44, 3, v0")
    A("v_lshl_add_u32 v44, v44, 4, s60")
    A("s_movk_i32 s61, 1792")
    A("v_mad_u32_u24 v40, v40, s61, v44")
    A("v_mad_u32_u24 v41, v41, s61, v44")
    A("v_cmp_gt_u32 vcc, 48, v0")
    A("v_cndmask_b32 v44, 0, 1.0, vcc")
    A("s_lshl_b32 s60, s31, 2")
    A("v_mov_b32 v45, s60")
    gate("F")
    stamp(6)
    A("s_branch L_F2")
    gap()
    pad("cf")
    A("L_F2:")
    if fast:
        A(f"v_mov_b32 v50, {L_FL}")
        A("ds_read_b32 v50, v50")
        A("s_mov_b32 exec_lo, 0x007f007f")
        A("s_mov_b32 exec_hi, 0x007f007f")
        A(f"global_load_dword v51, v56, s[28:29] {ldf}")
        A("s_mov_b64 exec, -1")
    for t in range(14):
        va = "v9" if (t >> 1) & 1 else "v5"
        A(f"ds_read_b64_tr_b16 v[{128+4*t}:{129+4*t}], {va} offset:{L_WT + 512*t}")
        A(f"ds_read_b64_tr_b16 v[{130+4*t}:{131+4*t}], {va} offset:{L_WT + 512*t + 28672}")
    for nb in range(7):
        for t in range(2):
            r = 8 * nb + 4 * t
            A(f"ds_read_b64_tr_b16 a[{192+r}:{193+r}], v3 offset:{28672*t + 32*nb}")
            A(f"ds_read_b64_tr_b16 a[{194+r}:{195+r}], v3 offset:{28672*t + 32*nb + 3584}")
    A("s_waitcnt vmcnt(0)")
    A("v_lshlrev_b32 v46, 16, v48")
    A("v_and_b32 v47, 0xffff0000, v48")
    A("v_lshlrev_b32 v48, 16, v49")
    A("v_and_b32 v49, 0xffff0000, v49")
    for i in range(4):
        A(f"v_lshlrev_b32 v{8+2*i}, 16, v{52+i}")
        A(f"v_and_b32 v{9+2*i}, 0xffff0000, v{52+i}")
    A("v_lshlrev_b32 v62, 16, v62")
    A("v_mov_b32 v32, 0")
    A("v_mov_b32 v34, 0")
    A("s_waitcnt lgkmcnt(0)")
    if fast: A("v_readfirstlane_b32 s82, v50")
    pad("cf")
    A("s_mov_b64 exec, s[80:81]")
    hs = lambda k: 192 + 16 * k
    def hissue(k):
        for i in range(4):
            A(f"global_load_dwordx4 v[{hs(k)+4*i}:{hs(k)+4*i+3}], v1, s[28:29] offset:{896*i} {ldf}")
    for k in range(d2 - 1): hissue(k)
    A("L_hpoll:")
    for k in range(d2):
        hissue((k + d2 - 1) % d2)
        A(f"s_waitcnt vmcnt({4*(d2-1)})")
        A(f"v_xor_b32 v16, v{hs(k)}, v59")
        for i in range(1, 4): A(f"v_bitop3_b32 v16, v{hs(k)+4*i}, v16, v59 bitop3:0xde")
        A("v_and_b32 v16, s58, v16")
        A("v_cmp_ne_u32 vcc, 0, v16")
        for i in range(4):
            A(f"v_pk_add_f32 v[{80+2*i}:{81+2*i}], v[{hs(k)+2*i}:{hs(k)+2*i+1}], v[{hs(k)+8+2*i}:{hs(k)+9+2*i}]")
        A("s_cbranch_vccz L_hgot")
    A("s_sub_u32 s55, s55, 1")
    A("s_cbranch_scc0 L_hpoll")
    A("L_hgot:")
    cy(0)
    A("ds_write_b128 v2, v[80:83]")
    A("ds_write_b128 v2, v[84:87] offset:1024")
    A("s_mov_b64 exec, -1")
    stamp(7)
    if dbg: A("v_writelane_b32 v63, s55, 12")
    A("s_waitcnt lgkmcnt(0)")
    A("s_barrier")
    cy(1)
    for hf in range(2):
        for w in range(4):
            A(f"ds_read_b128 v[{64+8*w+4*hf}:{67+8*w+4*hf}], v4 offset:{2048*w + 1024*hf}")
    for hf in range(2):
        A(f"s_waitcnt lgkmcnt({6 - 4*hf})")
        for i in (2*hf, 2*hf+1): A(f"v_pk_add_f32 v[{64+2*i}:{65+2*i}], v[{64+2*i}:{65+2*i}], v[{72+2*i}:{73+2*i}]")
        A(f"s_waitcnt lgkmcnt({4 - 4*hf})")
        for i in (2*hf, 2*hf+1): A(f"v_pk_add_f32 v[{80+2*i}:{81+2*i}], v[{80+2*i}:{81+2*i}], v[{88+2*i}:{89+2*i}]")
        for i in (2*hf, 2*hf+1): A(f"v_pk_add_f32 v[{64+2*i}:{65+2*i}], v[{64+2*i}:{65+2*i}], v[{80+2*i}:{81+2*i}]")
        for i in (2*hf, 2*hf+1): A(f"v_cvt_pk_bf16_f32 v{65+2*i}, v{64+2*i}, v{65+2*i}")
    cy(2)
    for i in range(4):
        A(f"v_lshlrev_b32 v{64+2*i}, 16, v{65+2*i}")
        A(f"v_and_b32 v{65+2*i}, 0xffff0000, v{65+2*i}")
    for i in range(4): A(f"v_pk_add_f32 v[{8+2*i}:{9+2*i}], v[{8+2*i}:{9+2*i}], v[{64+2*i}:{65+2*i}]")
    for i in range(4): A(f"v_cvt_pk_bf16_f32 v{16+i}, v{8+2*i}, v{9+2*i}")
    for i in range(4):
        A(f"v_lshlrev_b32 v{8+2*i}, 16, v{16+i}")
        A(f"v_and_b32 v{9+2*i}, 0xffff0000, v{16+i}")
    pad("cf")
    cy(3)
    layernorm(8, 24, 4, 32, 64, 20, emask="s[80:81]")
    cy(4)
    def bc(t):
        r = 64 + 4 * (t % 3)
        A(f"v_mov_b64_dpp v[{r}:{r+1}], v[20:21] row_newbcast:{t} row_mask:0xf bank_mask:0xf")
        A(f"v_mov_b64_dpp v[{r+2}:{r+3}], v[22:23] row_newbcast:{t} row_mask:0xf bank_mask:0xf")
    bc(0); bc(1)
    for t in range(14):
        r = 64 + 4 * (t % 3)
        A(f"v_mfma_f32_16x16x32_bf16 v[8:11], v[{128+4*t}:{131+4*t}], v[{r}:{r+3}], {'0' if t == 0 else 'v[8:11]'}")
        if t + 2 < 14: bc(t + 2)
    cy(5)
    A("s_mov_b64 exec, s[80:81]")
    A("ds_write_b64 v58, v[16:17]")
    A("ds_write_b64 v58, v[18:19] offset:448")
    A("s_mov_b64 exec, -1")
    pad("cf")
    A("v_cvt_pk_bf16_f32 v12, v8, v9")
    A("v_cvt_pk_bf16_f32 v13, v10, v11")
    A("v_lshlrev_b32 v8, 16, v12")
    A("v_and_b32 v9, 0xffff0000, v12")
    A("v_lshlrev_b32 v10, 16, v13")
    A("v_and_b32 v11, 0xffff0000, v13")
    A("v_pk_add_f32 v[8:9], v[8:9], v[46:47]")
    A("v_pk_add_f32 v[10:11], v[10:11], v[48:49]")
    for k in range(4): A(f"v_max_f32 v{8+k}, 0, v{8+k}")
    A("v_cvt_pk_bf16_f32 v12, v8, v9")
    A("v_cvt_pk_bf16_f32 v13, v10, v11")
    A("v_lshlrev_b32 v8, 16, v12")
    A("v_and_b32 v9, 0xffff0000, v12")
    A("v_lshlrev_b32 v10, 16, v13")
    A("v_and_b32 v11, 0xffff0000, v13")
    A("v_pk_mul_f32 v[8:9], v[8:9], v[8:9]")
    A("v_pk_mul_f32 v[10:11], v[10:11], v[10:11]")
    A("s_mov_b32 exec_lo, 0x00010001")
    A("s_mov_b32 exec_hi, 0x00010001")
    A("v_cvt_pk_bf16_f32 v12, v8, v9")
    A("v_cvt_pk_bf16_f32 v13, v10, v11")
    cy(6)
    A("ds_write_b64 v57, v[12:13]")
    A("s_mov_b64 exec, -1")
    A("s_waitcnt lgkmcnt(0)")
    A("s_barrier")
    cy(7)
    for nb in range(7):
        for t in range(2):
            i = 2 * nb + t
            A(f"ds_read_b128 v[{64+4*i}:{67+4*i}], v{184+nb} offset:{64*t}")
    A("ds_read_u16 v43, v43")
    for i in range(14):
        A(f"s_waitcnt lgkmcnt({14-i})")
        A(f"v_mfma_f32_16x16x32_bf16 v[8:11], a[{192+4*i}:{195+4*i}], v[{64+4*i}:{67+4*i}], {'0' if i == 0 else 'v[8:11]'}")
    cy(8)
    A("s_mov_b32 exec_lo, 0x007f007f")
    A("s_mov_b32 exec_hi, 0x007f007f")
    A(f"s_mov_b32 s55, {SPIN}")
    if fast:
        A("s_cmp_eq_u32 s82, 0")
        A("s_cbranch_scc1 L_Pfar")
        A("v_bfi_b32 v8, s58, v59, v8")
        A("global_store_dwordx4 v56, v[8:11], s[28:29]")
        A("L_Pdone:")
    else:
        A("v_bfi_b32 v8, s58, v59, v8")
        A(f"global_store_dwordx4 v56, v[8:11], s[28:29] {stf}")
    cy(9)
    A("s_mov_b64 exec, -1")
    stamp(8)
    A("s_cmp_lg_u32 s3, 1")
    A("s_cbranch_scc1 L_fin")
    pad("cf")
    ps = lambda k: 128 + 8 * k
    def pissue(k):
        A(f"global_load_dwordx4 v[{ps(k)}:{ps(k)+3}], v40, s[28:29] {ldf}")
        A(f"global_load_dwordx4 v[{ps(k)+4}:{ps(k)+7}], v41, s[28:29] {ldf}")
    for k in range(d3 - 1):
        pissue(k)
        if k < d3 - 2: A("s_nop 15")
    A("L_ppoll:")
    for k in range(d3):
        pissue((k + d3 - 1) % d3)
        A(f"s_waitcnt vmcnt({2*(d3-1)})")
        A(f"v_xor_b32 v24, v{ps(k)}, v59")
        A(f"v_bitop3_b32 v24, v{ps(k)+4}, v24, v59 bitop3:0xde")
        A("v_and_b32 v24, s58, v24")
        A("v_cmp_ne_u32 vcc, 0, v24")
        for i in range(4): A(f"v_fma_f32 v{16+i}, v{ps(k)+4+i}, v44, v{ps(k)+i}")
        A("s_cbranch_vccz L_pgot")
    A("s_sub_u32 s55, s55, 1")
    A("s_cbranch_scc0 L_ppoll")
    A("L_pgot:")
    cy(10)
    A("s_waitcnt lgkmcnt(0)")
    stamp(9)
    if dbg: A("v_writelane_b32 v63, s55, 14")
    A("v_permlane32_swap_b32 v16, v18")
    A("v_permlane32_swap_b32 v17, v19")
    A("v_add_f32 v16, v16, v18")
    A("v_add_f32 v17, v17, v19")
    A("v_lshlrev_b32 v43, 16, v43")
    A("v_permlane16_swap_b32 v16, v17")
    A("v_add_f32 v16, v16, v17")
    A("v_add_f32_dpp v16, v16, v16 row_ror:4 row_mask:0xf bank_mask:0xf")
    A("v_add_f32_dpp v16, v16, v16 row_ror:8 row_mask:0xf bank_mask:0xf")
    A("v_cvt_pk_bf16_f32 v16, v16, v16")
    A("v_lshlrev_b32 v16, 16, v16")
    A("v_add_f32 v16, v16, v62")
    A("v_cvt_pk_bf16_f32 v16, v16, v16")
    A("v_lshlrev_b32 v16, 16, v16")
    A("v_add_f32 v16, v16, v43")
    A("v_cvt_pk_bf16_f32 v16, v16, v16")
    if diag:
        A("L_diag:")
        A("s_memrealtime s[92:93]")
        A("s_waitcnt lgkmcnt(0)")
        A("s_sub_u32 s92, s92, s94")
        A(f"s_cmp_lt_u32 s92, {diag}")
        A("s_cbranch_scc1 L_diag")
    A("s_mov_b32 exec_lo, 0x000f000f")
    A("s_mov_b32 exec_hi, 0x000f000f")
    A(f"global_store_short v42, v16, s[24:25] {ostf}")
    cy(11)
    A("s_mov_b64 exec, -1")
    A("s_cmp_lg_u32 s35, 0")
    A("s_cbranch_scc1 L_fin")
    A("s_mov_b64 exec, 1")
    A(f"global_store_dword v45, v59, s[28:29] {ostf}")
    A("s_mov_b64 exec, -1")
    if fast:
        A("s_branch L_fin")
        A("L_Pfar:")
        A("s_nop 7")
        A("v_bfi_b32 v8, s58, v59, v8")
        A(f"global_store_dwordx4 v56, v[8:11], s[28:29] {stf}")
        A("s_branch L_Pdone")
    A("L_fin:")
    if dbg:
        A("s_waitcnt vmcnt(0)")
        stamp(10)
        A("s_barrier")
        if cyc:
            for k in range(12): A(f"v_writelane_b32 v63, s{cycregs[k]}, {16+k}")
        A("s_lshl_b32 s60, s2, 2")
        A("s_add_u32 s60, s60, s3")
        A("s_lshl_b32 s60, s60, 7")
        A(f"s_add_u32 s60, s60, {WS_TS}")
        A("v_lshl_add_u32 v1, v0, 2, s60")
        A("s_mov_b32 exec_hi, 0")
        A("global_store_dword v1, v63, s[28:29]")
    A("L_end:")
    A("s_endpgm")
    pad_end("cf")
    A.raw(".p2align 7")
    A.raw(".type L_tab,@object")
    A.raw("L_tab:")
    for r in layout(lay, costs, P, fx, rotm, shuf):
        ro = r["role"]
        assert (r["n"] - 8 - NLs[ro]) // 3 > 8 + NLs[ro] + 1 and (0, 65536, 114688, 65536)[ro] + 8192 * NLs[ro] <= L_SB
        d0 = ro | r["rb"] << 2 | r["rh"] << 3 | r["idx"] << 6 | r["pr"] << 11 | r["sp"] << 15 | NLs[ro] << 19 | max(0, 16 * P - stops[ro]) << 23
        d1 = r["first"] | r["n"] << 16 | r["rot"] << 24
        d2 = (0, 458752, 0, 1024)[ro] * r["rh"] + 128 * r["idx"]
        d3 = (0, 896, 3584, 8192)[ro] | (0, 64, 56, 56)[ro] << 16
        A.raw(f".long {d0}, {d1}, {d2}, {d3}")
    A.raw(".size L_tab, 4096")
    A.raw('.section .rodata,"a"')
    A.raw(".p2align 6")
    A.raw(f".amdhsa_kernel {NAME}_kernel")
    A.raw("  .amdhsa_next_free_vgpr 512")
    A.raw("  .amdhsa_next_free_sgpr 96")
    A.raw("  .amdhsa_accum_offset 256")
    A.raw("  .amdhsa_group_segment_fixed_size 0")
    A.raw("  .amdhsa_kernarg_size 104")
    A.raw("  .amdhsa_user_sgpr_count 2")
    A.raw("  .amdhsa_user_sgpr_kernarg_segment_ptr 1")
    A.raw("  .amdhsa_system_sgpr_workgroup_id_x 1")
    A.raw("  .amdhsa_float_denorm_mode_32 3")
    A.raw(".end_amdhsa_kernel")
    from asmlib import Ins
    for n_, i_ in enumerate(A.L):
        if i_.is_ins and i_.target and i_.target.endswith("_top"):
            ch = i_.target[2:-4]
            A.L[n_] = Ins(f"s_branch L_{ch}{pads.count(ch)-1}")
    bad = A.check_edges(returns=[(a_, f"L_v{i_}") for a_ in ("L_mid_ret", "L_mid_ret2") for i_ in range(3)])
    for b in bad: print("EDGE HAZARD", b, file=sys.stderr)
    return A.text()

if __name__ == "__main__":
    import json
    kw = json.loads(sys.argv[2]) if len(sys.argv) > 2 else {}
    open(sys.argv[1], "w").write(gen(**kw))
    import subprocess, re
    subprocess.run(["clang", "-x", "assembler", "-target", "amdgcn-amd-amdhsa", "-mcpu=gfx950", "-c", sys.argv[1], "-o", "_g.o"], check=True)
    sy = subprocess.run(["llvm-objdump", "-t", "_g.o"], capture_output=True, text=True).stdout
    ch = {}
    for l in sy.splitlines():
        m = re.match(r"([0-9a-f]+) .* L_(c[a-z])(\d+|_end)$", l)
        if m: ch.setdefault(m.group(2), []).append(int(m.group(1), 16))
    for k, v in ch.items():
        v.sort()
        d = [(b_ - 1) // 64 - a // 64 for a, b_ in zip(v, v[1:])]
        print(k, "pad spans (lines):", d, "TOO FAR" if max(d) > 16 else "", file=sys.stderr)
```

```python
import sys, struct
from asmlib import Asm
NAME = "sequential_preLN__gqa_block_cached__dense_activation_squared_relu__decode"

def f2u(x): return struct.unpack("<I", struct.pack("<f", x))[0]

WS_EP = 0x0
WS_QG = 0x1000
WS_REC = 0x10000
WS_ML = 0x90000
WS_H = 0xA0000
WS_P = 0xB0000
WS_CT = 0xD0000
WS_TS = 0x100000
L_WT = 0
L_WT2 = 57344
L_SB = 147456
L_SM = 158464
L_XN = L_SM
L_QB = L_SM + 2048
L_OB = 131072
L_HB = L_SM + 4096
L_FL = L_SM + 3072
L_UB = L_SM + 5120
L_ZB = L_SM + 5248
L_END = L_SM + 5376

SPIN = 1 << 19
CEXP = f2u(0.0625 * 1.4426950408889634)

def layout(lay="floc", costs=(0, 1.3, 4.7, 1.8), P=4, fx=(0, 4), rotm=1, shuf=9, al=0, alj=1, **_):
    W = []
    for wg in range(256):
        x, j = wg & 7, wg >> 3
        r = dict(role=0, rb=0, rh=0, idx=0, rot=j)
        if lay == "old":
            sp = j >> 1
            r.update(rb=j & 1, rh=x)
            if sp < 7: r.update(role=1, idx=sp)
            elif (sp - 7) * 8 + x < 28: r.update(role=2, idx=(sp - 7) * 8 + x)
            elif sp >= 12: r.update(role=3, idx=j - 24)
        else:
            rest = [k for k in range(8) if k not in fx]
            two, one = [rest[0], rest[3]], [rest[1], rest[2], rest[4], rest[5]]
            if x in fx:
                if j < 28: r.update(role=2, rb=fx.index(x), idx=j)
            elif x in two:
                if j < 28: r.update(role=1, rh=2 * two.index(x) + j // 14, rb=(j % 14) & 1, idx=(j % 14) >> 1)
            else:
                xi = one.index(x)
                if j < 14: r.update(role=1, rh=4 + xi, rb=j & 1, idx=j >> 1)
                elif j < 30: r.update(role=3, rh=(16 * xi + j - 14) >> 3, idx=(j - 14) & 7)
        W.append(r)
    load = [0.0] * 16; mem = [[] for _ in range(16)]
    for x in range(8):
        ws = sorted((wg for wg in range(256) if wg & 7 == x), key=lambda wg: -costs[W[wg]["role"]])
        cnt = [0] * 16
        for wg in ws:
            g = min((g for g in range(16) if cnt[g] < 2), key=lambda g: (load[g], (g - 2 * x) % 16))
            cnt[g] += 1; load[g] += costs[W[wg]["role"]]; mem[g].append(wg)
    if shuf == 9:
        load = [0.0] * 16; mem = [[] for _ in range(16)]
        for wg in range(256):
            g = ((wg >> 3) & 1) * 8 + (((wg & 7) + (wg >> 4)) & 7)
            mem[g].append(wg); load[g] += costs[W[wg]["role"]]
    for g in range(16):
        if shuf == 1: mem[g] = mem[g][g:] + mem[g][:g]
        if shuf == 2:
            m = mem[g][0::2] + mem[g][1::2]
            mem[g] = m[g // 2:] + m[:g // 2]
        tot = 2048 - 16 * P
        base = (tot + load[g]) / 16
        want = [base - costs[W[wg]["role"]] for wg in mem[g]]
        n = [int(w) for w in want]
        for k in sorted(range(16), key=lambda k: n[k] - want[k])[: tot - sum(n)]: n[k] += 1
        st = 0
        for k, wg in enumerate(mem[g]):
            W[wg].update(pr=g, sp=k, first=st, n=n[k])
            if rotm == 1: W[wg]["rot"] = ((wg >> 3) - st) % 32
            if rotm == 2: W[wg]["rot"] = (2 * (wg >> 3) + (wg & 1) - st) % 64
            if rotm >= 10:
                dly = int(round(costs[W[wg]["role"]] * (rotm // 10)))
                W[wg]["rot"] = ((rotm % 10) * (wg >> 3) + dly - st) % 64
            if rotm == 3: W[wg]["rot"] = ((wg >> 3) + 4 * (wg & 7) - st) % 32
            st += n[k]
        assert st == tot
        if al is not None:
            pool = []
            for k, wg in enumerate(mem[g]):
                s0 = min(128 - n[k], int(round(al * costs[W[wg]["role"]])) + (wg >> 3) % alj)
                W[wg].update(first=128 * k + s0, rot=0)
                pool += [(p, k) for p in range(s0 + n[k], 128 + s0)]
            pool.sort()
            for wg in mem[g]: W[wg]["pool"] = [128 * k + p % 128 for p, k in pool]
    return W

def gen(dbg=False, kflags="nt", vflags="nt", wflags="", PD=24, DD=32, vperm=True, warm=True,
        lay='floc', costs=(0, 1.3, 4.7, 1.8), fx=(0, 4), stops=(0, 0, 0, 0), fast=True, fflags='', rotm=1, shuf=9, ostf='', rows=(9, 10, 11, 16), rot=True, round_scores=True, NLs=(12, 6, 0, 6), prog=False, D=21, DV=None, CL=3, diag=0, DX=23, SPEC=16, rstf=None, ltouch='', pw=True, al=0, alj=1, skip="",
        pollpos=64, dmau=8, P=4, prot=4, early=0, touch=False, slp=0, d2=1, d3=2, cyc=False, stf="sc1", ldf="sc1"):
    A = Asm()
    LY = layout(lay, costs, P, fx, rotm, shuf, al, alj)
    nextra = 3
    def stamp(k):
        if dbg and not (cyc and k in (7, 8, 9)):
            A("s_memrealtime s[92:93]")
            A("s_waitcnt lgkmcnt(0)")
            A(f"v_writelane_b32 v63, s92, {k}")
    cycregs = [64, 66, 68, 70, 72, 74, 76, 78, 84, 86, 88, 90]
    def cy(k):
        if cyc: A(f"s_memtime s[{cycregs[k]}:{cycregs[k]+1}]")
    pads = []
    def pad(chain):
        if not warm: return
        n = sum(1 for p in pads if p == chain)
        pads.append(chain)
        A(f"L_{chain}{n}:")
        A(f"s_cbranch_execz L_{chain}{n-1}" if n else f"s_cbranch_execz L_{chain}_ret")
    def pad_end(chain):
        if warm: A(f"L_{chain}_end:")
    def gap():
        if warm:
            A.raw(".p2alignl 12, 0xbf810000")
    def run_chain(chain):
        if not warm: return
        A("s_mov_b64 exec, 0")
        A(f"s_branch L_{chain}_top")
        A(f"L_{chain}_ret:")
        A("s_mov_b64 exec, -1")
    def fin():
        A("s_branch L_fin" if dbg else "s_endpgm")
    def tr_addr(v, row, c8, t):
        A(f"v_lshrrev_b32 {row}, 2, v60")
        A(f"v_lshl_add_u32 {row}, v61, 3, {row}")
        A(f"v_and_b32 {c8}, 3, v60")
        A(f"v_lshlrev_b32 {c8}, 3, {c8}")
        A(f"v_bfe_u32 {t}, v0, 3, 2")
        A(f"v_xor_b32 {t}, s3, {t}")
        A(f"v_lshl_add_u32 {v}, {row}, 7, {c8}")
        A(f"v_lshl_add_u32 {v}, {t}, 5, {v}")
    def tags():
        A("s_mul_i32 s50, s50, 0x9e3779b1")
        A("s_mul_i32 s51, s51, 0x9e3779b1")
        A("s_add_u32 s50, s50, 0x7f4a7c15")
        A("s_add_u32 s51, s51, 0x7f4a7c15")
        A("s_cmp_eq_u32 s31, 0")
        A("s_cselect_b32 s59, s50, s51")
        A("s_cmp_lt_u32 s76, 8")
        A("s_cselect_b32 s49, s50, s51")
    def sel4(dst, vals):
        A(f"s_mov_b32 {dst}, {vals[0]}")
        for r in (1, 2, 3):
            if vals[r] != vals[0]:
                A(f"s_cmp_eq_u32 s34, {r}")
                A(f"s_cselect_b32 {dst}, {vals[r]}, {dst}")

    A.raw(f"; @launch grid=(256,1,1) block=(256,1,1) lds={L_END}")
    A.raw('.amdgcn_target "amdgcn-amd-amdhsa--gfx950"')
    A.raw(".text")
    A.raw(f".globl {NAME}_kernel")
    A.raw(".p2align 8")
    A.raw(f".type {NAME}_kernel,@function")
    A.raw(f"{NAME}_kernel:")
    A("s_cmp_ge_u32 s2, 256")
    A("s_cbranch_scc1 L_end")
    A("s_load_dwordx16 s[4:19], s[0:1], 0")
    A("s_load_dwordx8 s[20:27], s[0:1], 64")
    A("s_load_dwordx2 s[28:29], s[0:1], 96")
    if dbg:
        A("v_mov_b32 v63, 0")
        A("s_memrealtime s[92:93]")
    if diag: A("s_memrealtime s[94:95]")
    A("s_getpc_b64 s[72:73]")
    A("L_pc0:")
    A("s_add_u32 s72, s72, L_tab-L_pc0")
    A("s_addc_u32 s73, s73, 0")
    A("s_lshl_b32 s60, s2, 4")
    A("s_load_dwordx4 s[84:87], s[72:73], s60")
    A("v_lshrrev_b32 v1, 6, v0")
    A("v_and_b32 v0, 63, v0")
    A("v_readfirstlane_b32 s3, v1")
    A("v_and_b32 v60, 15, v0")
    A("v_lshrrev_b32 v61, 4, v0")
    def decode():
        A("s_bfe_u32 s30, s84, 0x30003")
        A("s_bfe_u32 s31, s84, 0x10002")
        A("s_lshl_b32 s33, s31, 3")
        A("s_or_b32 s33, s33, s30")
        A("s_bfe_u32 s35, s84, 0x50006")
        A("s_bfe_u32 s76, s84, 0x4000b")
        A("s_and_b32 s75, s76, 7")
        A("s_bfe_u32 s32, s84, 0x4000f")
    A("s_cmp_lg_u32 s3, 0")
    A("s_cbranch_scc1 L_h0" if pw else "s_cbranch_scc1 L_help")

    A("s_mov_b32 s47, 0x20000")
    A("v_lshrrev_b32 v8, 3, v0")
    A("v_and_b32 v9, 7, v0")
    A("v_lshlrev_b32 v9, 4, v9")
    A("v_and_b32 v10, 16, v0")
    A("v_lshlrev_b32 v10, 1, v10")
    A("v_xor_b32 v9, v9, v10")
    A("s_mov_b32 s67, 64")
    A(f"s_mov_b32 m0, {L_WT}")
    smask = sum(1 << b for b in range(9, 24) if b not in rows)
    A("v_and_b32 v44, 1, v0")
    A("v_lshlrev_b32 v44, 4, v44")
    A("v_lshl_add_u32 v44, v61, 5, v44")
    for k, rb in ((1, rows[2]), (2, rows[0]), (3, rows[1])):
        A(f"v_bfe_u32 v3, v0, {k}, 1")
        A(f"v_lshl_add_u32 v44, v3, {rb}, v44")
    A("v_add_u32 v45, 128, v44")
    A(f"v_add_u32 v46, {1 << rows[3]}, v44")
    A("v_add_u32 v47, 128, v46")
    def pdep(reg, tmp):
        segs = []; src = 0; b = 9
        while b < 24:
            if smask >> b & 1:
                e = b
                while e < 24 and smask >> e & 1: e += 1
                segs.append((src, e - b, b)); src += e - b; b = e
            else: b += 1
        for n_ in range(len(segs) - 1, 0, -1):
            sb, _, db = segs[n_]; gapw = db - (segs[n_-1][2] + segs[n_-1][1])
            A(f"s_lshr_b32 {tmp}, {reg}, {sb}")
            A(f"s_mul_i32 {tmp}, {tmp}, {((1 << gapw) - 1) << sb}")
            A(f"s_add_u32 {reg}, {reg}, {tmp}")
        A(f"s_lshl_b32 {reg}, {reg}, {segs[0][2]}")
    A("s_mov_b32 s38, 0x1000000")
    A("s_mov_b32 s39, 0x20000")
    A("s_mov_b32 s46, 3670016")
    A("s_waitcnt lgkmcnt(0)")
    if dbg: A("v_writelane_b32 v63, s92, 0")
    if prog: stamp(23)
    A("s_load_dwordx2 s[50:51], s[28:29], 0")
    A("s_and_b32 s34, s84, 3")
    A("s_cbranch_scc0 L_nodma")
    A("s_and_b32 s64, s87, 0xffff")
    A("v_mad_u32_u24 v8, v8, s64, v9")
    A("s_lshl_b32 s64, s64, 3")
    A("s_lshr_b32 s66, s87, 16")
    A("s_mov_b32 s65, s86")
    A("s_cmp_eq_u32 s34, 2")
    A("s_cselect_b64 s[44:45], s[16:17], s[12:13]")
    A("s_cselect_b32 s46, 1605632, s46")
    A("s_cmp_eq_u32 s34, 3")
    A("s_cselect_b64 s[44:45], s[10:11], s[44:45]")
    A("s_and_b32 s45, s45, 0xffff")
    if "d" in skip:
        A("s_cmp_lg_u32 s34, 3")
        A("s_cbranch_scc1 L_nodma")
    A("L_dma:")
    if dmau == 1:
        A(f"s_waitcnt vmcnt({DD-1})")
        A(f"buffer_load_dwordx4 v8, s[44:47], s65 offen {wflags} lds")
        A("v_xor_b32 v8, s67, v8")
        A("s_add_u32 m0, m0, 1024")
        A("s_add_u32 s65, s65, s64")
        A("s_sub_u32 s66, s66, 1")
        A("s_cmp_lg_u32 s66, 0")
        A("s_cbranch_scc1 L_dma")
    else:
        A("v_xor_b32 v9, s67, v8")
        A("s_sub_u32 s74, s64, 1024")
        def dmaloop(lab, fl):
            A(f"{lab}:")
            for h in range(2):
                A(f"s_waitcnt vmcnt({DD-4})")
                for k in range(4):
                    A(f"buffer_load_dwordx4 {'v9' if k & 1 else 'v8'}, s[44:47], s65 offen offset:{1024*k} {fl} lds")
                    A("s_add_u32 s65, s65, s74")
                A("s_add_u32 m0, m0, 4096")
                A("s_add_u32 s65, s65, 4096")
            A("s_sub_u32 s66, s66, 8")
            A("s_cmp_lg_u32 s66, 0")
            A(f"s_cbranch_scc1 {lab}")
        if fflags is not None and fflags != wflags:
            A("s_cmp_eq_u32 s34, 2")
            A("s_cbranch_scc1 L_dma2")
            dmaloop("L_dma1", wflags)
            A("s_branch L_nodma")
            dmaloop("L_dma2", fflags)
        else:
            dmaloop("L_dma1", wflags)
    A("s_cmp_lg_u32 s34, 2")
    A("s_cbranch_scc1 L_nodma")
    A("s_cmp_eq_u32 s67, 0")
    A("s_cbranch_scc1 L_nodma")
    A("s_mov_b32 s44, s20")
    A("s_and_b32 s45, s21, 0xffff")
    A("s_mul_i32 s65, s86, 448")
    A("s_movk_i32 s64, 1024")
    A("s_mov_b32 s67, 0")
    A("s_mov_b32 s66, 56")
    A("v_lshlrev_b32 v8, 4, v0")
    A("s_branch L_dma")
    A("L_nodma:")
    decode()
    A("s_lshl_b32 s56, s76, 24")
    A("s_add_u32 s36, s6, s56")
    A("s_addc_u32 s37, s7, 0")
    A("s_and_b32 s37, s37, 0xffff")
    A("s_bfe_u32 s55, s85, 0x80010")
    A("s_and_b32 s52, s85, 0xffff")
    A("s_add_u32 s53, s52, s55")
    A("s_lshr_b32 s54, s85, 24")
    A("s_add_u32 s54, s54, s52")
    pdep("s54", "s60")
    A(f"s_mov_b32 s71, {smask}")
    DV_ = DV or D
    ring = [("a", 0), ("a", 32), ("a", 64)]
    stage = ("a", 96)
    park = [("a", 128 + 32 * k) for k in range(4)] + [("v", 128 + 32 * k) for k in range(4)]
    NP = len(park)
    def R4(slot, k):
        c, b = slot
        return f"{c}[{b+4*k}:{b+4*k+3}]"
    def ld(slot, u): A(f"buffer_load_dwordx4 {R4(slot, u)}, v{44+(u>>1)}, s[36:39], s54 offen offset:{256*(u&1)} {kflags}")
    def adv():
        A("s_orn2_b32 s54, s54, s71")
        A("s_add_u32 s54, s54, 1")
        A("s_and_b32 s54, s54, s71")
        if al is None:
            A("s_cmp_eq_u32 s54, s53")
            A("s_cselect_b32 s54, s52, s54")
    def qpoll():
        A(f"global_load_dwordx4 v[88:91], v83, s[28:29] {ldf}")
        A(f"global_load_dwordx4 v[92:95], v83, s[28:29] offset:1024 {ldf}")
    def qcheck():
        A("v_cmp_ne_u32 s[60:61], s49, v89")
        A("v_cmp_ne_u32 s[62:63], s49, v91")
        A("v_cmp_ne_u32 s[64:65], s49, v93")
        A("v_cmp_ne_u32 vcc, s49, v95")
        A("s_or_b64 s[60:61], s[60:61], s[62:63]")
        A("s_or_b64 vcc, vcc, s[64:65]")
        A("s_or_b64 vcc, vcc, s[60:61]")
    nissued = 0
    PW = PD - 2
    for slot in park + ring:
        if slot == ring[0]:
            A("s_cmp_eq_u32 s68, 0")
            A("s_cbranch_scc1 L_pfl_end")
            A("L_pfl:")
            for u in range(8):
                A(f"s_add_u32 m0, s69, {1024 * u - 256 * (u & 1)}")
                if u % 2 == 0: A(f"s_waitcnt vmcnt({PW})")
                A(f"buffer_load_dwordx4 v{44+(u>>1)}, s[36:39], s54 offen offset:{256*(u&1)} {kflags} lds")
            adv()
            A("s_add_u32 s69, s69, 0x2000")
            A("s_sub_u32 s68, s68, 1")
            A("s_cmp_lg_u32 s68, 0")
            A("s_cbranch_scc1 L_pfl")
            A("L_pfl_end:")
            qpoll()
        for u in range(8):
            if nissued % 2 == 0: A(f"s_waitcnt vmcnt({PW})")
            if pw and nissued in (PW, 52):
                kb = 0 if nissued == PW else 1
                A(f"s_branch L_pb{kb}")
                if kb == 0:
                    A("L_h0:")
                    A("s_cmp_eq_u32 s3, 1")
                    A("s_cbranch_scc1 L_help")
                    A("s_mov_b64 exec, 0")
                    A("s_cmp_eq_u32 s3, 2")
                    A("s_cbranch_scc1 L_pp1")
                    A("s_branch L_pp0")
                A.raw(f".fill ({NAME}_kernel + {1088 * (kb + 1)} - .) / 4, 4, 0xbf810000")
                A(f"L_pp{kb}:")
                A("s_cbranch_execz L_help0")
                A(f"L_pb{kb}:")
            if nissued == PW:
                A("s_waitcnt lgkmcnt(0)")
                if prog: stamp(24)
                tags()
                A("s_cmp_lg_u32 s34, 3")
                A("s_cbranch_scc1 L_qc_ret0")
                A("s_call_b64 s[62:63], L_qc")
                A("L_qc_ret0:")
            if nissued == PW + 2:
                A("v_and_b32 v21, 1, v60")
                A("v_mov_b32 v22, 0xffff")
                A("v_lshlrev_b32 v85, 4, v21")
                A("v_lshlrev_b32 v22, v85, v22")
                A("v_bfe_u32 v21, v60, 1, 2")
                for kk in range(4):
                    A(f"v_cmp_eq_u32 vcc, {kk}, v21")
                    A(f"v_cndmask_b32 v{4+kk}, 0, v22, vcc")
                A("v_mov_b32 v58, 0xff7f0000")
                A("v_mov_b32 v57, 0")
                for kk in range(32, 40): A(f"v_mov_b32 v{kk}, 0")
                A(f"s_mov_b32 s57, 0x{CEXP:x}")
                A("s_mov_b32 s58, 0")
                if dbg: A("s_mov_b32 s83, 0")
                A("v_lshrrev_b32 v21, 3, v60")
                A("v_lshl_add_u32 v85, v21, 9, v85")
                A("v_lshl_add_u32 v85, v61, 5, v85")
                A(f"v_add_u32 v85, {L_QB}, v85")
                A("v_lshl_add_u32 v2, v61, 1, v21")
                A("v_lshlrev_b32 v2, 3, v2")
                A(f"v_add_u32 v2, {L_SB}, v2")
                A("v_mov_b32 v3, v2")
            if prog and nissued == PW + 4: stamp(25)
            if prog and nissued == 2 * PW + 4: stamp(26)
            if nissued == PW + 4:
                A("s_lshl_b32 s60, s76, 11")
                A(f"s_add_u32 s60, s60, {WS_QG}")
                A("v_lshl_add_u32 v83, v0, 4, s60")
                A("v_lshlrev_b32 v84, 3, v0")
                A(f"v_add_u32 v84, {L_QB}, v84")
                A("v_lshrrev_b32 v80, 1, v61")
                A("v_lshlrev_b32 v80, 14, v80")
                A("v_lshl_add_u32 v80, v60, 5, v80")
                A("v_and_b32 v81, 1, v61")
                A("v_lshl_add_u32 v80, v81, 4, v80")
                A("s_lshl_b32 s60, s76, 15")
                A("s_lshl_b32 s61, s32, 9")
                A("s_add_u32 s60, s60, s61")
                A(f"s_add_u32 s60, s60, {WS_REC}")
                A("v_add_u32 v80, s60, v80")
                A("v_add_u32 v96, 0x2000, v80")
                A("s_lshl_b32 s60, s76, 11")
                A("s_lshl_b32 s61, s32, 7")
                A("s_add_u32 s60, s60, s61")
                A(f"s_add_u32 s60, s60, {WS_ML}")
                A("v_lshl_add_u32 v81, v0, 1, s60")
                A("s_lshl_b32 s77, s76, 8")
                A(f"s_add_u32 s77, s77, {WS_CT}")
                A(f"s_mul_i32 s82, s76, {prot}")
                if al is not None:
                    A("s_add_u32 s60, s77, %d" % (4096 - WS_CT))
                    A("v_lshl_add_u32 v87, v0, 2, s60")
                    A("global_load_dword v87, v87, s[72:73]")
            if nissued == PW + 6:
                for k in range(4): A(f"v_mov_b32 v{48+k}, v{44+k}")
                A("v_lshlrev_b32 v52, 4, v60")
                for k in range(2):
                    A(f"v_bfe_u32 v21, v61, {k}, 1")
                    A(f"v_lshl_add_u32 v52, v21, {rows[k]}, v52")
                for r in range(1, 4): A(f"v_add_u32 v{52+r}, {(r & 1) << rows[2] | (r >> 1) << rows[3]}, v52")
                A("s_mov_b64 s[42:43], s[36:37]")
                A("s_add_u32 s40, s8, s56")
                A("s_addc_u32 s41, s9, 0")
                A("s_and_b32 s41, s41, 0xffff")
                A("s_bfe_u32 s68, s84, 0x40013")
                A("s_bfe_u32 s48, s84, 0x80017")
                sel4("s69", (0, 65536, 114688, 65536))
                A("v_lshl_add_u32 v82, v0, 4, s69")
                A(f"s_add_u32 s70, s68, {NP}")
                A("v_lshl_add_u32 v1, s70, 6, v2")
                A("s_sub_u32 s72, s55, s70")
                A("s_sub_u32 s73, s72, 3")
                A("s_mov_b32 s79, 0")
                A("s_mov_b32 s75, 0")
            ld(slot, u)
            nissued += 1
        if nissued == 8:
            A("s_mov_b32 s74, s54")
            if al is None:
                pdep("s52", "s60")
                pdep("s53", "s60")
        adv()
    stamp(1)
    A("s_waitcnt vmcnt(24)")
    A(f"s_mov_b32 s66, {SPIN}")
    A("s_branch L_qchk")
    A("L_qpoll:")
    qpoll()
    A("s_sub_u32 s66, s66, 1")
    A("s_cbranch_scc1 L_qgot")
    A("s_waitcnt vmcnt(0)")
    A("L_qchk:")
    qcheck()
    A("s_cbranch_scc1 L_qpoll")
    A("L_qgot:")
    A("ds_write2_b32 v84, v88, v90 offset0:0 offset1:1")
    A("ds_write2_b32 v84, v92, v94 offset0:128 offset1:129")
    A("s_waitcnt lgkmcnt(0)")
    for u, ci in enumerate((0, 2, 1, 3)):
        A(f"ds_read_b128 v[{64+4*u}:{67+4*u}], v85 offset:{128*ci}")
    A("s_waitcnt lgkmcnt(0)")
    if dbg: A("v_writelane_b32 v63, s66, 5")
    stamp(2)
    A("s_branch L_e0")
    A("L_pend:")
    gap()

    def hook(name):
        A("s_sub_u32 s73, s73, 1")
        A(f"s_cbranch_scc1 L_ls_{name}")
        A(f"L_lb_{name}:")
    def fold(h):
        for c in range(2):
            A(f"v_mov_b32_dpp v{16+2*h+c}, v{8+4*h+2*c} quad_perm:[0,0,2,2] row_mask:0xf bank_mask:0xf")
        A("s_nop 0")
        for c in range(2):
            A(f"v_add_f32_dpp v{16+2*h+c}, v{9+4*h+2*c}, v{16+2*h+c} quad_perm:[1,1,3,3] row_mask:0xf bank_mask:0xf")
        A(f"v_cvt_pk_bf16_f32 v{20+h}, v{16+2*h}, v{17+2*h}")
        A(f"v_max3_f32 v58, v{16+2*h}, v{17+2*h}, v58")
    def kstep(slot, loads, sa):
        for u in range(8):
            d = 8 + 4 * (u >> 2)
            if loads: A(f"s_waitcnt vmcnt({loads-1})")
            A(f"v_mfma_f32_16x16x32_bf16 v[{d}:{d+3}], {R4(slot, u)}, v[{64+4*(u&3)}:{67+4*(u&3)}], {'0' if u & 3 == 0 else f'v[{d}:{d+3}]'}")
            if loads: ld(slot, u)
        if loads: adv()
        fold(0)
        fold(1)
        A(f"ds_write_b64 {sa}, v[20:21]")
        A(f"v_add_u32 {sa}, 64, {sa}")
    def vstep(slot):
        A("s_waitcnt lgkmcnt(1)")
        A("v_lshlrev_b32 v16, 16, v22")
        A("v_and_b32 v17, 0xffff0000, v22")
        A("v_lshlrev_b32 v18, 16, v23")
        A("v_and_b32 v19, 0xffff0000, v23")
        A("v_add_u32 v3, 64, v3")
        for r in range(4): A(f"v_sub_f32 v{16+r}, v{16+r}, v56")
        A("ds_read_b64 v[22:23], v3")
        A("ds_read_b32 v62, v3")
        for r in range(4): A(f"v_mul_f32 v{16+r}, s57, v{16+r}")
        for r in range(4): A(f"v_exp_f32 v{16+r}, v{16+r}")
        A("v_cvt_pk_bf16_f32 v40, v16, v16")
        def mkA(r):
            for k in range(4): A(f"v_and_b32 v{24+4*(r&1)+k}, v{40+r}, v{4+k}")
        mkA(0)
        A("v_cvt_pk_bf16_f32 v41, v17, v17")
        for r in range(4):
            a = 24 + 4 * (r & 1)
            A(f"s_waitcnt vmcnt({DV_-1})")
            A(f"v_mfma_f32_16x16x32_bf16 v[32:35], v[{a}:{a+3}], {R4(slot, 2*r)}, v[32:35]")
            ld(slot, 2 * r)
            if r < 3: mkA(r + 1)
            A(f"s_waitcnt vmcnt({DV_-1})")
            A(f"v_mfma_f32_16x16x32_bf16 v[36:39], v[{a}:{a+3}], {R4(slot, 2*r+1)}, v[36:39]")
            ld(slot, 2 * r + 1)
            if r == 0:
                A("v_cvt_pk_bf16_f32 v42, v18, v18")
                A("v_add_f32 v16, v16, v17")
            if r == 1:
                A("v_cvt_pk_bf16_f32 v43, v19, v19")
                A("v_add_f32 v18, v18, v19")
            if r == 2:
                A("v_add_f32 v16, v16, v18")
                A("v_add_f32 v57, v57, v16")
    pad("ca")
    A("L_e0:")
    for i, slot in enumerate(ring):
        kstep(slot, DX, "v1")
    A("s_sub_u32 s72, s72, 3")
    A("s_sub_u32 s73, s73, 3")
    A("s_add_u32 s58, s58, 1")
    if prog:
        A("s_cmp_lg_u32 s58, 8")
        A("s_cbranch_scc1 L_pg8")
        stamp(16)
        A("L_pg8:")
    for i in range(NP):
        A(f"s_cmp_eq_u32 s58, {i+1}")
        A(f"s_cbranch_scc1 L_x{i}")
    A("s_branch L_xs")
    pad("ca")
    for i, slot in enumerate(ring):
        A(f"L_k{i}:")
        hook(f"k{i}")
        kstep(slot, D, "v1")
        A("s_sub_u32 s72, s72, 1")
        A("s_cmp_eq_u32 s72, 0")
        A(f"s_cbranch_scc1 L_mid{(i+1)%3}")
    if prog:
        A("s_add_u32 s58, s58, 1")
        for (itn, k) in ((22, 17), (32, 18)):
            A(f"s_cmp_lg_u32 s58, {itn}")
            A(f"s_cbranch_scc1 L_pg{itn}")
            stamp(k)
            A(f"L_pg{itn}:")
    A("s_branch L_k0")
    pad_end("ca")
    gap()
    def stage_reads():
        A("s_cmp_eq_u32 s58, s70")
        A("s_cbranch_scc1 L_k0")
        for k in range(8 if "x" not in skip else 0): A(f"ds_read_b128 {R4(stage, k)}, v82 offset:{1024*k}")
        A("v_add_u32 v82, 0x2000, v82")
    for i in range(NP):
        if i % 5 == 0: pad("cx")
        A(f"L_x{i}:")
        if "x" not in skip: kstep(park[i], False, "v2")
        A("s_branch L_e0" if i < NP - 1 else "s_branch L_xr")
    A("L_xs:")
    A("s_waitcnt lgkmcnt(0)")
    if "x" not in skip: kstep(stage, False, "v2")
    A("L_xr:")
    stage_reads()
    A("s_branch L_e0")
    pad_end("cx")
    gap()
    for i, slot in enumerate(ring):
        if i != 1: pad("cv")
        A(f"L_v{i}:")
        hook(f"v{i}")
        vstep(slot)
        A("s_sub_u32 s72, s72, 1")
        A("s_cmp_eq_u32 s72, 0")
        A(f"s_cbranch_scc1 L_nxt{(i+1)%3}")
        if prog:
            for (itn, k) in ((100, 19), (55, 20), (10, 21), (1, 22)):
                A(f"s_cmp_lg_u32 s72, {itn}")
                A(f"s_cbranch_scc1 L_pv{itn}_{i}")
                stamp(k)
                A(f"L_pv{itn}_{i}:")
        adv()
    A("s_branch L_v0")
    for i in range(3):
        A(f"L_nxt{i}:")
        A("s_sub_u32 s75, s75, 1")
        A("s_cbranch_scc1 L_sdone")
        A("s_mov_b32 s72, 1")
        A(f"s_branch L_k{i}")
    for i in range(3):
        A(f"L_mid{i}:")
        A("s_call_b64 s[62:63], L_mid")
        A(f"s_branch L_v{i}")
    for nm in ("k0", "k1", "k2", "v0", "v1", "v2"):
        A(f"L_ls_{nm}:")
        A("s_call_b64 s[62:63], L_ls")
        A(f"s_branch L_lb_{nm}")
    pad("cv")
    A("L_mid:")
    A("s_cmp_ge_u32 s79, 2")
    A("s_cbranch_scc1 L_midp")
    stamp(4)
    A("ds_read_b64 v[22:23], v3")
    A("ds_read_b32 v62, v3")
    A("v_mov_b32 v59, v58")
    A("s_mov_b32 s72, s55")
    A("v_permlane32_swap_b32 v59, v58")
    A("v_max_f32 v58, v58, v59")
    A("v_mov_b32 v59, v58")
    A("v_permlane16_swap_b32 v59, v58")
    A("v_max_f32 v58, v58, v59")
    A("v_cvt_pk_bf16_f32 v56, v58, v58")
    A("v_lshlrev_b32 v56, 16, v56")
    A("L_mid_ret:")
    A("s_setpc_b64 s[62:63]")
    A("L_midp:")
    A("s_waitcnt lgkmcnt(1)")
    A("v_mov_b32 v22, v20")
    A("v_mov_b32 v23, v21")
    A("v_subrev_u32 v1, 64, v1")
    A("v_subrev_u32 v3, 64, v3")
    A("v_cvt_pk_bf16_f32 v18, v58, v58")
    A("v_lshlrev_b32 v18, 16, v18")
    A("s_mov_b32 s72, 1")
    A("v_cmp_gt_f32 vcc, v18, v56")
    A("s_cbranch_vccz L_mid_ret")
    A("v_mov_b32 v59, v18")
    A("v_permlane32_swap_b32 v59, v18")
    A("v_max_f32 v18, v18, v59")
    A("v_mov_b32 v59, v18")
    A("v_permlane16_swap_b32 v59, v18")
    A("v_max3_f32 v18, v18, v59, v56")
    A("v_sub_f32 v59, v56, v18")
    A("v_mul_f32 v59, s57, v59")
    A("v_exp_f32 v59, v59")
    A("v_mov_b32 v56, v18")
    A("v_mul_f32 v57, v57, v59")
    A("v_readlane_b32 s60, v59, 0")
    A("v_readlane_b32 s61, v59, 8")
    A("v_mov_b32 v59, s60")
    A("s_mov_b32 exec_lo, 0")
    A("v_mov_b32 v59, s61")
    A("s_mov_b64 exec, -1")
    for k in range(32, 40): A(f"v_mul_f32 v{k}, v{k}, v59")
    A("L_mid_ret2:")
    A("s_setpc_b64 s[62:63]")
    npool = 16 * P
    A("L_ls:")
    A("s_cmp_eq_u32 s79, 2")
    A("s_cbranch_scc1 L_ls2")
    A("s_cmp_eq_u32 s79, 1")
    A("s_cbranch_scc1 L_ls1")
    A("s_mov_b64 s[36:37], s[40:41]")
    for k in range(4): A(f"v_mov_b32 v{44+k}, v{52+k}")
    A("s_mov_b32 s54, s74")
    A(f"s_sub_u32 s60, s55, {1 + CL}")
    A("s_cmp_eq_u32 s79, 0")
    A("s_cselect_b32 s73, s60, 0")
    A("s_cselect_b32 s79, 1, 2")
    A("s_setpc_b64 s[62:63]")
    A("L_ls1:")
    if ltouch is not None:
        A(f"global_load_dword v86, v80, s[28:29] {ltouch}")
        A(f"global_load_dword v86, v96, s[28:29] {ltouch}")
        A(f"global_load_ushort v86, v81, s[28:29] {ltouch}")
    A(f"s_mov_b32 s73, {CL - 1}")
    A("s_mov_b32 s79, 2")
    if early == 2:
        A("s_cmp_lg_u32 s34, 1")
        A("s_cbranch_scc1 L_claim")
        A("s_barrier")
    A("s_branch L_claim")
    A("L_ls2:")
    A("s_waitcnt lgkmcnt(0)")
    A(f"s_cmp_ge_u32 s78, {npool}")
    A("s_cbranch_scc1 L_ls_end")
    if dbg: A("s_add_u32 s83, s83, 1")
    if al is not None:
        A("s_lshr_b32 s60, s78, 1")
        A("v_readlane_b32 s54, v87, s60")
        A("s_lshl_b32 s60, s78, 4")
        A("s_lshr_b32 s54, s54, s60")
        A("s_and_b32 s54, s54, 0xffff")
        A("s_lshl_b32 s54, s54, 9")
    else:
        A("s_add_u32 s54, s78, s82")
        A(f"s_cmp_ge_u32 s54, {npool}")
        A(f"s_cselect_b32 s60, {npool}, 0")
        A("s_sub_u32 s54, s54, s60")
        A(f"s_add_u32 s54, s54, {2048 - npool}")
        pdep("s54", "s60")
    A("s_mov_b32 s74, s54")
    A("s_mov_b64 s[36:37], s[42:43]")
    for k in range(4): A(f"v_mov_b32 v{44+k}, v{48+k}")
    A("s_add_u32 s75, s75, 1")
    A("s_mov_b32 s73, 0")
    A("s_mov_b32 s79, 3")
    if any(stops):
        A("s_cmp_ge_u32 s78, s48")
        A("s_movk_i32 s78, 0x7fff")
        A("s_cbranch_scc1 L_ls_ret")
    A("L_claim:")
    if "a" in skip:
        A("s_lshl_b32 s78, s83, 4")
        A("s_add_u32 s78, s78, s32")
    else:
        A("s_mov_b32 s78, 1")
        A("s_atomic_add s78, s[28:29], s77 glc")
    A("L_ls_ret:")
    A("s_setpc_b64 s[62:63]")
    A("L_ls_end:")
    A("s_mov_b32 s38, 0")
    A("s_movk_i32 s73, 0x7fff")
    if early == 1:
        A("s_cmp_lg_u32 s34, 1")
        A("s_cbranch_scc1 L_ls_ret")
        A("s_barrier")
    A("s_setpc_b64 s[62:63]")
    A("L_sdone:")
    stamp(3)
    if dbg: A("v_writelane_b32 v63, s83, 13")
    A("v_mov_b32 v21, v57")
    A("v_mov_b32 v24, v56")
    A("v_mov_b32 v26, s49")
    A("v_permlane32_swap_b32 v21, v57")
    A("s_movk_i32 s61, 0xff")
    A("v_add_f32 v57, v57, v21")
    A("v_mov_b32 v21, v57")
    A("v_bfi_b32 v32, s61, v26, v32")
    A(f"global_store_dwordx4 v80, v[32:35], s[28:29] {stf if rstf is None else rstf}")
    A("v_permlane16_swap_b32 v21, v57")
    A("v_bfi_b32 v36, s61, v26, v36")
    A(f"global_store_dwordx4 v96, v[36:39], s[28:29] {stf if rstf is None else rstf}")
    A("v_add_f32 v25, v57, v21")
    A("s_mov_b64 exec, 0x101")
    A(f"global_store_dwordx4 v81, v[24:27], s[28:29] {stf if rstf is None else rstf}")
    A("s_mov_b64 exec, -1")
    A("s_sub_u32 s60, s34, 1")
    A("s_cmp_lt_u32 s60, 2")
    A("s_cbranch_scc1 L_tail")
    fin()
    pad_end("cv")

    def reduce_sum(v, t, width):
        for sh in (8, 4, 2, 1):
            A(f"v_add_f32_dpp v{v}, v{v}, v{v} row_ror:{sh} row_mask:0xf bank_mask:0xf")
        A(f"v_mov_b32 v{t}, v{v}")
        A(f"v_permlane16_swap_b32 v{t}, v{v}")
        A(f"v_add_f32 v{v}, v{v}, v{t}")
        if width == 64:
            A(f"v_mov_b32 v{t}, v{v}")
            A(f"v_permlane32_swap_b32 v{t}, v{v}")
            A(f"v_add_f32 v{v}, v{v}, v{t}")
    def layernorm(X, D_, npair, T, width, out, emask=None):
        P = lambda r: f"v[{r}:{r+1}]"
        if width == 64:
            A(f"v_readfirstlane_b32 s60, v{X}")
            A(f"s_mov_b64 exec, {emask}")
            A("s_mov_b32 s61, s60")
            for i in range(npair):
                A(f"v_pk_add_f32 {P(D_+2*i)}, {P(X+2*i)}, s[60:61] neg_lo:[0,1] neg_hi:[0,1]")
            A(f"v_pk_add_f32 {P(T+4)}, {P(D_)}, {P(D_+2)}")
            A(f"v_pk_mul_f32 {P(T+6)}, {P(D_)}, {P(D_)}")
            for i in range(1, npair):
                if i >= 2: A(f"v_pk_add_f32 {P(T+4)}, {P(T+4)}, {P(D_+2*i)}")
                A(f"v_pk_fma_f32 {P(T+6)}, {P(D_+2*i)}, {P(D_+2*i)}, {P(T+6)}")
            A(f"v_add_f32 v{T}, v{T+4}, v{T+5}")
            A(f"v_add_f32 v{T+2}, v{T+6}, v{T+7}")
            A("s_mov_b64 exec, -1")
            for sh in (8, 4, 2, 1):
                for v in (T, T + 2):
                    A(f"v_add_f32_dpp v{v}, v{v}, v{v} row_ror:{sh} row_mask:0xf bank_mask:0xf")
            A(f"v_permlane32_swap_b32 v{T}, v{T+2}")
            A(f"v_add_f32 v{T}, v{T}, v{T+2}")
            A(f"v_mov_b32 v{T+2}, v{T}")
            A(f"v_permlane16_swap_b32 v{T+2}, v{T}")
            A(f"v_add_f32 v{T}, v{T}, v{T+2}")
            A(f"v_mul_f32 v{T}, 0x{f2u(1.0/448):x}, v{T}")
            A(f"v_mov_b32 v{T+2}, v{T}")
            A(f"v_permlane32_swap_b32 v{T}, v{T+2}")
            A(f"v_fma_f32 v{T+2}, -v{T}, v{T}, v{T+2}")
            A(f"v_add_f32 v{T}, s60, v{T}")
            A(f"v_max_f32 v{T+2}, 0, v{T+2}")
        else:
            A(f"v_pk_add_f32 {P(T+4)}, {P(X)}, {P(X+2)}")
            for i in range(2, npair): A(f"v_pk_add_f32 {P(T+4)}, {P(T+4)}, {P(X+2*i)}")
            A(f"v_add_f32 v{T}, v{T+4}, v{T+5}")
            reduce_sum(T, T + 1, width)
            A(f"v_mul_f32 v{T}, 0x{f2u(1.0/448):x}, v{T}")
            for i in range(npair):
                A(f"v_pk_add_f32 {P(D_+2*i)}, {P(X+2*i)}, {P(T)} op_sel_hi:[1,0] neg_lo:[0,1] neg_hi:[0,1]")
            A(f"v_pk_mul_f32 {P(T+4)}, {P(D_)}, {P(D_)}")
            for i in range(1, npair): A(f"v_pk_fma_f32 {P(T+4)}, {P(D_+2*i)}, {P(D_+2*i)}, {P(T+4)}")
            A(f"v_add_f32 v{T+2}, v{T+4}, v{T+5}")
            reduce_sum(T + 2, T + 3, width)
            A(f"v_mul_f32 v{T+2}, 0x{f2u(1.0/448):x}, v{T+2}")
        A(f"v_cvt_pk_bf16_f32 v{T+4}, v{T}, v{T+2}")
        A(f"v_lshlrev_b32 v{T}, 16, v{T+4}")
        A(f"v_and_b32 v{T+2}, 0xffff0000, v{T+4}")
        A(f"v_add_f32 v{T+2}, 0x{f2u(1e-5):x}, v{T+2}")
        A(f"v_pk_add_f32 {P(D_)}, {P(X)}, {P(T)} op_sel_hi:[1,0] neg_lo:[0,1] neg_hi:[0,1]")
        A(f"v_cvt_pk_bf16_f32 v{T+2}, v{T+2}, v{T+2}")
        A(f"v_lshlrev_b32 v{T+2}, 16, v{T+2}")
        A(f"v_sqrt_f32 v{T+2}, v{T+2}")
        for i in range(1, npair):
            A(f"v_pk_add_f32 {P(D_+2*i)}, {P(X+2*i)}, {P(T)} op_sel_hi:[1,0] neg_lo:[0,1] neg_hi:[0,1]")
        A(f"v_cvt_pk_bf16_f32 v{T+2}, v{T+2}, v{T+2}")
        A(f"v_lshlrev_b32 v{T+2}, 16, v{T+2}")
        A(f"v_rcp_f32 v{T+2}, v{T+2}")
        for i in range(npair): A(f"v_cvt_pk_bf16_f32 v{D_+2*i+1}, v{D_+2*i}, v{D_+2*i+1}")
        for i in range(npair):
            A(f"v_lshlrev_b32 v{D_+2*i}, 16, v{D_+2*i+1}")
            A(f"v_and_b32 v{D_+2*i+1}, 0xffff0000, v{D_+2*i+1}")
        for i in range(npair): A(f"v_pk_mul_f32 {P(D_+2*i)}, {P(D_+2*i)}, {P(T+2)} op_sel_hi:[1,0]")
        for i in range(npair): A(f"v_cvt_pk_bf16_f32 v{out+i}, v{D_+2*i}, v{D_+2*i+1}")

    A.raw(".p2align 6")
    A("L_help0:")
    A("s_mov_b64 exec, -1")
    A("L_help:")
    A("v_lshrrev_b32 v1, 5, v0")
    A("v_mul_u32_u24 v1, 896, v1")
    A("v_and_b32 v2, 31, v0")
    A("v_lshl_add_u32 v1, v2, 2, v1")
    A("s_waitcnt lgkmcnt(0)")
    if dbg: A("v_writelane_b32 v63, s92, 0")
    A("s_load_dwordx2 s[50:51], s[28:29], 0")
    A("s_and_b32 s34, s84, 3")
    decode()
    A("s_cmp_eq_u32 s3, 2")
    A("s_cbranch_scc1 L_w2")
    A("s_cmp_eq_u32 s3, 3")
    A("s_cbranch_scc1 L_w3")
    A("s_cmp_lg_u32 s34, 3")
    A("s_cbranch_scc1 L_w1n")
    for i in range(7): A(f"global_load_dword v{8+i}, v1, s[4:5] offset:{128*i}")
    A(f"v_add_u32 v5, {L_XN}, v1")
    A("s_waitcnt vmcnt(0) lgkmcnt(0)")
    tags()
    stamp(1)
    for i in range(7):
        A(f"v_lshlrev_b32 v{16+2*i}, 16, v{8+i}")
        A(f"v_and_b32 v{17+2*i}, 0xffff0000, v{8+i}")
    layernorm(16, 32, 7, 46, 32, 8)
    for i in range(7): A(f"ds_write_b32 v5, v{8+i} offset:{128*i}")
    stamp(2)
    A("s_call_b64 s[62:63], L_qc")
    fin()
    gap()
    pad("cq")
    A("L_qc:")
    tr_addr("v120", "v121", "v122", "v123")
    A("v_and_b32 v122, 1, v60")
    A("v_cmp_eq_u32 vcc, 0, v122")
    A("v_mul_u32_u24 v121, 896, v122")
    A("v_lshl_add_u32 v121, v61, 4, v121")
    A(f"v_add_u32 v121, {L_XN}, v121")
    A("v_lshlrev_b32 v122, 14, v122")
    A("v_lshl_add_u32 v122, v61, 4, v122")
    A("s_lshl_b32 s60, s30, 11")
    A("s_lshl_b32 s61, s35, 8")
    A("s_add_u32 s60, s60, s61")
    A("s_lshl_b32 s61, s3, 6")
    A("s_add_u32 s60, s60, s61")
    A(f"s_add_u32 s60, s60, {WS_QG}")
    A("v_add_u32 v122, s60, v122")
    A("v_mov_b32 v13, s50")
    A("v_mov_b32 v15, s51")
    A("v_cndmask_b32 v13, v15, v13, vcc")
    A("v_mov_b32 v15, v13")
    A("s_waitcnt lgkmcnt(0)")
    A("s_barrier")
    stamp(11)
    for t in range(14):
        A(f"ds_read_b128 v[{64+4*t}:{67+4*t}], v121 offset:{64*t}")
        A(f"ds_read_b64_tr_b16 v[{128+4*t}:{129+4*t}], v120 offset:{L_WT + 4096*t}")
        A(f"ds_read_b64_tr_b16 v[{130+4*t}:{131+4*t}], v120 offset:{L_WT + 4096*t + 512}")
        if t >= 4:
            A("s_waitcnt lgkmcnt(12)")
            tt = t - 4
            A(f"v_mfma_f32_16x16x32_bf16 v[8:11], v[{128+4*tt}:{131+4*tt}], v[{64+4*tt}:{67+4*tt}], {'0' if tt == 0 else 'v[8:11]'}")
    for tt in range(10, 14):
        A(f"s_waitcnt lgkmcnt({3*(13-tt)})")
        A(f"v_mfma_f32_16x16x32_bf16 v[8:11], v[{128+4*tt}:{131+4*tt}], v[{64+4*tt}:{67+4*tt}], v[8:11]")
    A("s_mov_b32 exec_lo, 0x00030003")
    A("s_mov_b32 exec_hi, 0x00030003")
    A("v_cvt_pk_bf16_f32 v12, v8, v9")
    A("v_cvt_pk_bf16_f32 v14, v10, v11")
    A(f"global_store_dwordx4 v122, v[12:15], s[28:29] {stf}")
    A("s_mov_b64 exec, -1")
    stamp(8)
    A("s_nop 1")
    A("s_setpc_b64 s[62:63]")
    pad_end("cq")
    A("L_w2:")
    if touch:
        A("s_lshl_b32 s60, s76, 15")
        A("s_lshl_b32 s61, s32, 11")
        A("s_add_u32 s60, s60, s61")
        A(f"s_add_u32 s60, s60, {WS_REC}")
        A("v_lshl_add_u32 v2, v60, 7, s60")
        A("s_mul_i32 s60, s33, 1792")
        A("s_lshl_b32 s61, s35, 8")
        A("s_add_u32 s60, s60, s61")
        A(f"s_add_u32 s60, s60, {WS_H}")
        A("s_mul_i32 s61, s31, 28")
        A("s_add_u32 s61, s61, s35")
        A("s_mul_i32 s61, s61, 1792")
        A(f"s_add_u32 s61, s61, {WS_P}")
        A("s_lshl_b32 s62, s76, 9")
        A(f"s_add_u32 s62, s62, {WS_ML}")
        A("s_cmp_eq_u32 s34, 1")
        A("s_cselect_b32 s62, s60, s62")
        A("s_cselect_b32 s63, 0x3ffff, 0xfffff" if False else "s_mov_b32 s63, 0xfffff")
        A("s_cselect_b32 s63, 0x3ffff, s63")
        A("s_cmp_eq_u32 s34, 2")
        A("s_cselect_b32 s62, s61, s62")
        A("s_cselect_b32 s63, 0x3fffffff, s63")
        A("v_lshl_add_u32 v3, v60, 7, s62")
        A("v_cmp_gt_u32 vcc, 16, v0")
        A("v_cndmask_b32 v2, v3, v2, vcc")
        A("s_mov_b32 exec_lo, s63")
        A("s_mov_b32 exec_hi, 0")
        A("global_load_dword v255, v2, s[28:29]")
        A("s_mov_b64 exec, -1")
    run_chain("ca")
    A("s_waitcnt lgkmcnt(0)")
    tags()
    stamp(1)
    A("s_cmp_lg_u32 s34, 3")
    A("s_cbranch_scc1 L_w2n")
    A("s_call_b64 s[62:63], L_qc")
    A("L_w2n:")
    run_chain("cv")
    A("s_branch L_hnext")
    A("L_w3:")
    A("s_waitcnt lgkmcnt(0)")
    tags()
    A("s_cmp_lg_u32 s34, 3")
    A("s_cbranch_scc1 L_w3n")
    A("s_cmp_ge_u32 s35, 2")
    A("s_cbranch_scc1 L_w3q")
    A("s_lshl_b32 s60, s35, 3")
    A("s_add_u32 s60, s60, s30")
    A("s_lshl_b32 s60, s60, 8")
    A(f"s_add_u32 s60, s60, {WS_CT}")
    A("s_mov_b32 s61, 0")
    A("s_atomic_add s61, s[28:29], s60 glc")
    A("s_waitcnt lgkmcnt(0)")
    A("s_sub_u32 s61, 0, s61")
    A("s_atomic_add s61, s[28:29], s60 glc")
    A("L_w3q:")
    run_chain("cq")
    A("s_waitcnt lgkmcnt(0)")
    A("s_call_b64 s[62:63], L_qc")
    A("L_w3n:")
    run_chain("cx")
    if fast:
        A("s_cmp_lg_u32 s34, 2")
        A("s_cbranch_scc1 L_hnext")
        A("s_getreg_b32 s60, hwreg(HW_REG_XCC_ID, 0, 4)")
        A("s_and_b32 s60, s60, 7")
        A("s_lshl_b32 s64, s31, 7")
        A("s_and_b32 s61, s60, 4")
        A("s_add_u32 s61, s61, s64")
        A("s_and_b32 s60, s60, 3")
        A("s_lshl_b32 s60, s60, 3")
        A("s_lshl_b32 s65, 1, s60")
        A("s_atomic_add s65, s[26:27], s61")
        A("s_lshl_b32 s69, 28, s60")
        A(f"s_mov_b32 s55, {SPIN}")
        A("L_xpoll:")
        A("s_sleep 16")
        A("s_load_dwordx2 s[66:67], s[26:27], s64 glc")
        A("s_sub_u32 s55, s55, 1")
        A("s_cbranch_scc1 L_xgot")
        A("s_waitcnt lgkmcnt(0)")
        A("s_add_u32 s68, s66, s67")
        A("s_mul_i32 s68, s68, 0x01010101")
        A("s_lshr_b32 s68, s68, 24")
        A("s_cmp_lt_u32 s68, 28")
        A("s_cbranch_scc1 L_xpoll")
        A("L_xgot:")
        A("s_waitcnt lgkmcnt(0)")
        A("s_bitcmp1_b32 s61, 2")
        A("s_cselect_b32 s66, s67, s66")
        A("s_cmp_eq_u32 s66, s69")
        A("s_cselect_b32 s66, 1, 0")
        A("v_mov_b32 v5, s66")
        A(f"v_mov_b32 v7, {L_FL}")
        A("ds_write_b32 v7, v5")
        A("s_waitcnt lgkmcnt(0)")
    stamp(1)
    A("s_branch L_hnext")
    A("L_w1n:")
    A("s_waitcnt lgkmcnt(0)")
    tags()
    A("s_cmp_eq_u32 s34, 0")
    A("s_cbranch_scc1 L_fin")
    A("s_cmp_eq_u32 s34, 2")
    A("s_cbranch_scc1 L_w1f")
    run_chain("cw")
    A("s_branch L_hnext")
    A("L_w1f:")
    run_chain("cf")
    stamp(1)
    A("L_hnext:")
    A("s_sub_u32 s60, s34, 1")
    A("s_cmp_ge_u32 s60, 2")
    A("s_cbranch_scc1 L_fin")

    A("L_tail:")
    def gate(nm):
        if early and nm == "W":
            A("s_cmp_eq_u32 s3, 0")
            A(f"s_cbranch_scc1 L_gate{nm}")
            A("s_barrier")
            A(f"L_gate{nm}:")
        else: A("s_barrier")
    def backoff():
        if slp: A(f"s_sleep {slp}")
    A("s_lshl_b32 s52, s3, 5")
    A(f"s_mov_b32 s55, {SPIN}")
    A("s_movk_i32 s58, 0xff")
    A("v_mov_b32 v59, s59")
    A("s_cmp_eq_u32 s34, 2")
    A("s_cbranch_scc1 L_F")
    A("s_lshl_b32 s60, s33, 15")
    A("s_lshl_b32 s61, s3, 13")
    A("s_add_u32 s60, s60, s61")
    A(f"s_add_u32 s60, s60, {WS_REC + 4096}")
    A("v_lshl_add_u32 v1, v0, 4, s60")
    A("s_lshl_b32 s60, s33, 11")
    A("s_lshr_b32 s61, s3, 1")
    A("s_lshl_b32 s61, s61, 4")
    A("s_add_u32 s60, s60, s61")
    A(f"s_add_u32 s60, s60, {WS_ML}")
    A("v_lshrrev_b32 v3, 5, v0")
    A("v_xor_b32 v2, v60, v3")
    A("v_lshl_add_u32 v2, v2, 7, s60")
    gate("W")
    stamp(6)
    A("s_branch L_W2")
    gap()
    pad("cw")
    A("L_W2:")
    def wml():
        A(f"global_load_dwordx3 v[8:10], v2, s[28:29] {ldf}")
    def wdata(ts):
        for t in ts:
            A(f"global_load_dwordx4 v[{16+4*t}:{19+4*t}], v1, s[28:29] offset:{1024*t - 4096} {ldf}")
    wdata(range(8))
    wml()
    tr_addr("v5", "v7", "v6", "v4")
    for t in range(16):
        A(f"ds_read_b64_tr_b16 v[{128+4*t}:{129+4*t}], v5 offset:{L_WT + 4096*t}")
        A(f"ds_read_b64_tr_b16 v[{130+4*t}:{131+4*t}], v5 offset:{L_WT + 4096*t + 512}")
    A(f"s_mov_b32 s57, 0x{CEXP:x}")
    A("v_bfe_u32 v56, v0, 3, 2")
    A("s_lshl_b32 s60, s3, 2")
    A("v_add_u32 v56, s60, v56")
    A("v_mul_u32_u24 v56, 80, v56")
    A("v_and_b32 v4, 7, v0")
    A("v_lshl_add_u32 v56, v4, 3, v56")
    A("v_lshl_add_u32 v56, v3, 2, v56")
    A(f"v_add_u32 v56, {L_OB}, v56")
    A("v_mul_u32_u24 v4, 80, v60")
    A("v_lshl_add_u32 v4, v61, 4, v4")
    A(f"v_add_u32 v4, {L_OB}, v4")
    A("s_mul_i32 s60, s33, 1792")
    A("s_lshl_b32 s61, s35, 8")
    A("s_add_u32 s60, s60, s61")
    A("s_lshl_b32 s61, s3, 6")
    A("s_add_u32 s60, s60, s61")
    A(f"s_add_u32 s60, s60, {WS_H}")
    A("v_lshl_add_u32 v57, v61, 4, s60")
    A("s_branch L_wchk")
    pad("cw")
    A("L_wpoll:")
    for t in range(8):
        A(f"v_cmp_ne_u32_sdwa vcc, v{16+4*t}, v59 src0_sel:BYTE_0 src1_sel:BYTE_0")
        A(f"s_cbranch_vccz L_wskip{t}")
        wdata((t,))
        A(f"L_wskip{t}:")
    wml()
    backoff()
    A("s_sub_u32 s55, s55, 1")
    A("s_cbranch_scc1 L_wgot")
    A("L_wchk:")
    A("s_waitcnt vmcnt(1)")
    A("v_xor_b32 v11, v16, v59")
    for t in range(1, 8): A(f"v_bitop3_b32 v11, v{16+4*t}, v11, v59 bitop3:0xde")
    A("v_and_b32 v11, s58, v11")
    A("s_waitcnt vmcnt(0)")
    A("v_bitop3_b32 v11, v10, v11, v59 bitop3:0xde")
    A("v_max_f32_dpp v10, v8, v8 row_ror:8 row_mask:0xf bank_mask:0xf")
    A("v_cmp_ne_u32 vcc, 0, v11")
    A("s_cbranch_vccnz L_wpoll")
    A("L_wgot:")
    cy(0)
    stamp(7)
    if dbg: A("v_writelane_b32 v63, s55, 12")
    for sh in (4, 2, 1): A(f"v_max_f32_dpp v10, v10, v10 row_ror:{sh} row_mask:0xf bank_mask:0xf")
    A("v_sub_f32 v10, v8, v10")
    A("v_mul_f32 v10, s57, v10")
    A("v_exp_f32 v10, v10")
    A("v_mul_f32 v11, v10, v9")
    cy(1)
    seq = []
    for t in range(8):
        for k in range(4):
            op = "v_mul_f32_dpp" if t == 0 else "v_fmac_f32_dpp"
            seq.append(f"{op} v{12+k}, v10, v{16+4*t+k} row_newbcast:{2*t} row_mask:0xf bank_mask:0xf")
    red = [f"v_add_f32_dpp v11, v11, v11 row_ror:{sh} row_mask:0xf bank_mask:0xf" for sh in (8, 4, 2, 1)] + ["v_rcp_f32 v8, v11"]
    for i, s_ in enumerate(seq):
        A(s_)
        if i % 4 == 3 and red: A(red.pop(0))
    A("v_permlane32_swap_b32 v12, v14")
    A("v_permlane32_swap_b32 v13, v15")
    A("v_pk_add_f32 v[12:13], v[12:13], v[14:15]")
    A("v_pk_mul_f32 v[12:13], v[12:13], v[8:9] op_sel_hi:[1,0]")
    A("v_cvt_pk_bf16_f32 v12, v12, v13")
    cy(2)
    A("ds_write_b32 v56, v12")
    A("s_waitcnt lgkmcnt(0)")
    cy(3)
    A("s_barrier")
    cy(4)
    A("ds_read_b128 v[20:23], v4")
    pad("cw")
    A("s_waitcnt lgkmcnt(0)")
    def bc(t):
        r = 64 + 4 * (t % 3)
        A(f"v_mov_b64_dpp v[{r}:{r+1}], v[20:21] row_newbcast:{t} row_mask:0xf bank_mask:0xf")
        A(f"v_mov_b64_dpp v[{r+2}:{r+3}], v[22:23] row_newbcast:{t} row_mask:0xf bank_mask:0xf")
    def bcmm(n):
        bc(0); bc(1)
        for t in range(n):
            r = 64 + 4 * (t % 3)
            A(f"v_mfma_f32_16x16x32_bf16 v[8:11], v[{128+4*t}:{131+4*t}], v[{r}:{r+3}], {'0' if t == 0 else 'v[8:11]'}")
            if t + 2 < n: bc(t + 2)
    bcmm(16)
    cy(5)
    A("s_mov_b32 exec_lo, 0x00010001")
    A("s_mov_b32 exec_hi, 0x00010001")
    A("v_bfi_b32 v8, s58, v59, v8")
    A(f"global_store_dwordx4 v57, v[8:11], s[28:29] {stf}")
    cy(6)
    A("s_mov_b64 exec, -1")
    stamp(8)
    fin()
    pad_end("cw")

    A("L_F:")
    A("s_mov_b32 s80, 0x3fff3fff")
    A("s_mov_b32 s81, 0x3fff3fff")
    A("v_mul_u32_u24 v3, 14, v61")
    A("v_add_u32 v3, v3, v60")
    A("s_lshl_b32 s60, s35, 7")
    A("s_add_u32 s60, s60, s52")
    A("v_lshl_add_u32 v1, v61, 3, s60")
    A("global_load_dwordx2 v[48:49], v1, s[18:19] nt")
    A("s_lshl_b32 s60, s35, 5")
    A("v_and_b32 v42, 3, v0")
    A("v_lshl_add_u32 v42, v42, 2, v61")
    A("v_lshl_add_u32 v42, v42, 1, s60")
    A("global_load_ushort v62, v42, s[22:23] nt")
    A("v_and_b32 v1, 31, v0")
    A("v_min_u32 v1, 27, v1")
    A("v_lshrrev_b32 v2, 5, v0")
    A("s_mul_i32 s61, s3, 224")
    A("v_lshl_add_u32 v58, v1, 3, s61")
    A("v_lshl_add_u32 v58, v2, 2, v58")
    A("s_mul_i32 s60, s31, 896")
    A("v_add_u32 v4, s60, v58")
    A("global_load_dword v52, v4, s[4:5] nt")
    A(f"v_add_u32 v58, {L_HB}, v58")
    A(f"v_add_u32 v43, {L_HB}, v42")
    A("v_add_u32 v42, s60, v42")
    A("v_lshlrev_b32 v4, 3, v3")
    A(f"v_add_u32 v4, {L_HB}, v4")
    A("s_mul_i32 s60, s31, 14336")
    A("s_mul_i32 s61, s3, 448")
    A("s_add_u32 s60, s60, s61")
    A(f"s_add_u32 s60, s60, {WS_H + 3584}")
    A("v_mul_u32_u24 v2, 1792, v2")
    A("v_lshl_add_u32 v1, v1, 4, v2")
    A("v_add_u32 v1, s60, v1")
    A("v_add_u32 v2, 7168, v1")
    A("v_lshrrev_b32 v7, 2, v60")
    A("v_and_b32 v6, 3, v60")
    A("v_lshlrev_b32 v6, 3, v6")
    A("v_mul_u32_u24 v5, 56, v61")
    A("v_add_u32 v5, v5, v7")
    A("v_lshl_add_u32 v5, v5, 7, v6")
    A("v_bfe_u32 v8, v0, 3, 2")
    A("v_xor_b32 v8, s3, v8")
    A("v_lshl_add_u32 v5, v8, 5, v5")
    A("v_xor_b32 v9, 64, v5")
    A("v_lshl_add_u32 v7, v61, 3, v7")
    A("v_mul_u32_u24 v3, 896, v7")
    A("v_add_u32 v3, v3, v6")
    A("s_mul_i32 s60, s3, 224")
    A(f"s_add_u32 s60, s60, {L_WT2}")
    A("v_add_u32 v3, s60, v3")
    A("v_lshlrev_b32 v53, 4, v61")
    A(f"v_add_u32 v53, {L_UB}, v53")
    A("v_lshl_add_u32 v57, v61, 3, s52")
    A(f"v_add_u32 v57, {L_UB}, v57")
    A("s_mul_i32 s60, s31, 28")
    A("s_add_u32 s60, s60, s35")
    A("s_mul_i32 s60, s60, 1792")
    A("s_mul_i32 s61, s3, 448")
    A("s_add_u32 s60, s60, s61")
    A(f"s_add_u32 s60, s60, {WS_P}")
    A("v_lshlrev_b32 v56, 6, v60")
    A("v_lshl_add_u32 v56, v61, 4, v56")
    A("v_add_u32 v56, s60, v56")
    A("s_mul_i32 s60, s31, 50176")
    A("s_lshl_b32 s61, s35, 6")
    A("s_add_u32 s60, s60, s61")
    A(f"s_add_u32 s60, s60, {WS_P}")
    A("v_lshrrev_b32 v40, 2, v0")
    A("v_min_u32 v41, 11, v40")
    A("v_add_u32 v41, 16, v41")
    A("v_and_b32 v44, 3, v0")
    A("v_lshl_add_u32 v44, v44, 4, s60")
    A("s_movk_i32 s61, 1792")
    A("v_mad_u32_u24 v40, v40, s61, v44")
    A("v_mad_u32_u24 v41, v41, s61, v44")
    A("v_cmp_gt_u32 vcc, 48, v0")
    A("v_cndmask_b32 v44, 0, 1.0, vcc")
    A("s_lshl_b32 s60, s31, 2")
    A("v_mov_b32 v45, s60")
    gate("F")
    stamp(6)
    A("s_branch L_F2")
    gap()
    pad("cf")
    A("L_F2:")
    if fast:
        A(f"v_mov_b32 v50, {L_FL}")
        A("ds_read_b32 v50, v50")
        A("s_mov_b32 exec_lo, 0x007f007f")
        A("s_mov_b32 exec_hi, 0x007f007f")
        A(f"global_load_dword v51, v56, s[28:29] {ldf}")
        A("s_mov_b64 exec, -1")
    for t in range(14):
        va = "v9" if (t >> 1) & 1 else "v5"
        A(f"ds_read_b64_tr_b16 v[{128+4*t}:{129+4*t}], {va} offset:{L_WT + 512*t}")
        A(f"ds_read_b64_tr_b16 v[{130+4*t}:{131+4*t}], {va} offset:{L_WT + 512*t + 28672}")
    for nb in range(7):
        for t in range(2):
            r = 8 * nb + 4 * t
            A(f"ds_read_b64_tr_b16 a[{192+r}:{193+r}], v3 offset:{28672*t + 32*nb}")
            A(f"ds_read_b64_tr_b16 a[{194+r}:{195+r}], v3 offset:{28672*t + 32*nb + 3584}")
    A("s_waitcnt vmcnt(0)")
    A("v_lshlrev_b32 v46, 16, v48")
    A("v_and_b32 v47, 0xffff0000, v48")
    A("v_lshlrev_b32 v48, 16, v49")
    A("v_and_b32 v49, 0xffff0000, v49")
    A("v_lshlrev_b32 v54, 16, v52")
    A("v_and_b32 v55, 0xffff0000, v52")
    for nb in range(1, 7): A(f"v_cmp_eq_u32 s[{34+2*nb}:{35+2*nb}], {nb}, v60")
    A("v_lshlrev_b32 v62, 16, v62")
    A("v_mov_b32 v32, 0")
    A("v_mov_b32 v34, 0")
    A("s_waitcnt lgkmcnt(0)")
    if fast: A("v_readfirstlane_b32 s82, v50")
    pad("cf")
    A("L_hpoll:")
    for i in range(4):
        A(f"global_load_dwordx4 v[{64+4*i}:{67+4*i}], {'v2' if i >> 1 else 'v1'}, s[28:29] offset:{3584*(i&1) - 3584} {ldf}")
    A("s_sub_u32 s55, s55, 1")
    A("s_cbranch_scc1 L_hgot")
    A("s_waitcnt vmcnt(2)")
    A("v_xor_b32 v16, v64, v59")
    A("v_bitop3_b32 v16, v68, v16, v59 bitop3:0xde")
    A("v_pk_add_f32 v[80:81], v[64:65], v[68:69]")
    A("v_pk_add_f32 v[82:83], v[66:67], v[70:71]")
    A("s_waitcnt vmcnt(1)")
    A("v_bitop3_b32 v16, v72, v16, v59 bitop3:0xde")
    A("v_pk_add_f32 v[80:81], v[80:81], v[72:73]")
    A("v_pk_add_f32 v[82:83], v[82:83], v[74:75]")
    A("s_waitcnt vmcnt(0)")
    A("v_bitop3_b32 v16, v76, v16, v59 bitop3:0xde")
    A("v_pk_add_f32 v[80:81], v[80:81], v[76:77]")
    A("v_pk_add_f32 v[82:83], v[82:83], v[78:79]")
    A("v_and_b32 v16, s58, v16")
    A("v_cmp_ne_u32 vcc, 0, v16")
    A("v_permlane32_swap_b32 v80, v82")
    A("v_permlane32_swap_b32 v81, v83")
    A("s_cbranch_vccnz L_hpoll")
    A("L_hgot:")
    cy(0)
    stamp(7)
    if dbg: A("v_writelane_b32 v63, s55, 12")
    A("v_pk_add_f32 v[80:81], v[80:81], v[82:83]")
    A("v_cvt_pk_bf16_f32 v81, v80, v81")
    A("v_lshlrev_b32 v80, 16, v81")
    A("v_and_b32 v81, 0xffff0000, v81")
    A("v_pk_add_f32 v[80:81], v[80:81], v[54:55]")
    A("v_cvt_pk_bf16_f32 v80, v80, v81")
    A("ds_write_b32 v58, v80")
    A("s_waitcnt lgkmcnt(0)")
    A("s_barrier")
    cy(1)
    A("ds_read_b64 v[16:17], v4")
    A("ds_read_b64 v[18:19], v4 offset:448")
    pad("cf")
    A("s_waitcnt lgkmcnt(1)")
    cy(2)
    for i in range(4):
        if i == 2: A("s_waitcnt lgkmcnt(0)")
        A(f"v_lshlrev_b32 v{8+2*i}, 16, v{16+i}")
        A(f"v_and_b32 v{9+2*i}, 0xffff0000, v{16+i}")
    cy(3)
    layernorm(8, 24, 4, 32, 64, 20, emask="s[80:81]")
    cy(4)
    bcmm(14)
    cy(5)
    A("ds_read_u16 v43, v43")
    pad("cf")
    A("v_cvt_pk_bf16_f32 v12, v8, v9")
    A("v_cvt_pk_bf16_f32 v13, v10, v11")
    A("v_lshlrev_b32 v8, 16, v12")
    A("v_and_b32 v9, 0xffff0000, v12")
    A("v_lshlrev_b32 v10, 16, v13")
    A("v_and_b32 v11, 0xffff0000, v13")
    A("v_pk_add_f32 v[8:9], v[8:9], v[46:47]")
    A("v_pk_add_f32 v[10:11], v[10:11], v[48:49]")
    for k in range(4): A(f"v_max_f32 v{8+k}, 0, v{8+k}")
    A("v_cvt_pk_bf16_f32 v12, v8, v9")
    A("v_cvt_pk_bf16_f32 v13, v10, v11")
    A("v_lshlrev_b32 v8, 16, v12")
    A("v_and_b32 v9, 0xffff0000, v12")
    A("v_lshlrev_b32 v10, 16, v13")
    A("v_and_b32 v11, 0xffff0000, v13")
    A("v_pk_mul_f32 v[8:9], v[8:9], v[8:9]")
    A("v_pk_mul_f32 v[10:11], v[10:11], v[10:11]")
    A("s_mov_b32 exec_lo, 0x00010001")
    A("s_mov_b32 exec_hi, 0x00010001")
    A("v_cvt_pk_bf16_f32 v12, v8, v9")
    A("v_cvt_pk_bf16_f32 v13, v10, v11")
    cy(6)
    A("ds_write_b64 v57, v[12:13]")
    A("s_mov_b64 exec, -1")
    A("s_waitcnt lgkmcnt(0)")
    A("s_barrier")
    cy(7)
    A("ds_read_b128 v[64:67], v53")
    A("ds_read_b128 v[68:71], v53 offset:64")
    acc = lambda nb: 8 if nb == 0 else 68 + 4 * nb
    sel = []
    A("s_waitcnt lgkmcnt(1)")
    for nb in range(7):
        A(f"v_mfma_f32_16x16x32_bf16 v[{acc(nb)}:{acc(nb)+3}], a[{192+8*nb}:{195+8*nb}], v[64:67], 0")
        if nb == 0: A("s_waitcnt lgkmcnt(0)")
        for _ in range(2):
            if sel: A(sel.pop(0))
        A(f"v_mfma_f32_16x16x32_bf16 v[{acc(nb)}:{acc(nb)+3}], a[{196+8*nb}:{199+8*nb}], v[68:71], v[{acc(nb)}:{acc(nb)+3}]")
        for _ in range(2):
            if sel: A(sel.pop(0))
        if nb >= 3:
            q_ = nb - 2
            sel += [f"v_cndmask_b32 v{8+k}, v{8+k}, v{acc(q_)+k}, s[{34+2*q_}:{35+2*q_}]" for k in range(4)]
    for q_ in (5, 6):
        sel += [f"v_cndmask_b32 v{8+k}, v{8+k}, v{acc(q_)+k}, s[{34+2*q_}:{35+2*q_}]" for k in range(4)]
    for s_ in sel: A(s_)
    cy(8)
    A("s_mov_b32 exec_lo, 0x007f007f")
    A("s_mov_b32 exec_hi, 0x007f007f")
    A(f"s_mov_b32 s55, {SPIN}")
    if fast:
        A("s_cmp_eq_u32 s82, 0")
        A("s_cbranch_scc1 L_Pfar")
        A("v_bfi_b32 v8, s58, v59, v8")
        A("global_store_dwordx4 v56, v[8:11], s[28:29]")
        A("L_Pdone:")
    else:
        A("v_bfi_b32 v8, s58, v59, v8")
        A(f"global_store_dwordx4 v56, v[8:11], s[28:29] {stf}")
    cy(9)
    A("s_mov_b64 exec, -1")
    stamp(8)
    A("s_cmp_lg_u32 s3, 1")
    A("s_cbranch_scc1 L_fin")
    pad("cf")
    ps = lambda k: 128 + 8 * k
    def pissue(k):
        A(f"global_load_dwordx4 v[{ps(k)}:{ps(k)+3}], v40, s[28:29] {ldf}")
        A(f"global_load_dwordx4 v[{ps(k)+4}:{ps(k)+7}], v41, s[28:29] {ldf}")
    for k in range(d3 - 1):
        pissue(k)
        if k < d3 - 2: A("s_nop 15")
    A("L_ppoll:")
    for k in range(d3):
        pissue((k + d3 - 1) % d3)
        A(f"s_waitcnt vmcnt({2*(d3-1)})")
        A(f"v_xor_b32 v24, v{ps(k)}, v59")
        A(f"v_bitop3_b32 v24, v{ps(k)+4}, v24, v59 bitop3:0xde")
        A("v_and_b32 v24, s58, v24")
        A("v_cmp_ne_u32 vcc, 0, v24")
        for i in range(4): A(f"v_fma_f32 v{16+i}, v{ps(k)+4+i}, v44, v{ps(k)+i}")
        A("s_cbranch_vccz L_pgot")
    A("s_sub_u32 s55, s55, 1")
    A("s_cbranch_scc0 L_ppoll")
    A("L_pgot:")
    cy(10)
    A("s_waitcnt lgkmcnt(0)")
    stamp(9)
    if dbg: A("v_writelane_b32 v63, s55, 14")
    A("v_permlane32_swap_b32 v16, v18")
    A("v_permlane32_swap_b32 v17, v19")
    A("v_add_f32 v16, v16, v18")
    A("v_add_f32 v17, v17, v19")
    A("v_lshlrev_b32 v43, 16, v43")
    A("v_permlane16_swap_b32 v16, v17")
    A("v_add_f32 v16, v16, v17")
    A("v_add_f32_dpp v16, v16, v16 row_ror:4 row_mask:0xf bank_mask:0xf")
    A("v_add_f32_dpp v16, v16, v16 row_ror:8 row_mask:0xf bank_mask:0xf")
    A("v_cvt_pk_bf16_f32 v16, v16, v16")
    A("v_lshlrev_b32 v16, 16, v16")
    A("v_add_f32 v16, v16, v62")
    A("v_cvt_pk_bf16_f32 v16, v16, v16")
    A("v_lshlrev_b32 v16, 16, v16")
    A("v_add_f32 v16, v16, v43")
    A("v_cvt_pk_bf16_f32 v16, v16, v16")
    if diag:
        A("L_diag:")
        A("s_memrealtime s[92:93]")
        A("s_waitcnt lgkmcnt(0)")
        A("s_sub_u32 s92, s92, s94")
        A(f"s_cmp_lt_u32 s92, {diag}")
        A("s_cbranch_scc1 L_diag")
    A("s_mov_b32 exec_lo, 0x000f000f")
    A("s_mov_b32 exec_hi, 0x000f000f")
    A(f"global_store_short v42, v16, s[24:25] {ostf}")
    cy(11)
    A("s_mov_b64 exec, -1")
    A("s_cmp_lg_u32 s35, 0")
    A("s_cbranch_scc1 L_fin")
    A("s_mov_b64 exec, 1")
    A(f"global_store_dword v45, v59, s[28:29] {ostf}")
    A("s_mov_b64 exec, -1")
    if fast:
        A("s_branch L_fin")
        A("L_Pfar:")
        A("s_nop 7")
        A("v_bfi_b32 v8, s58, v59, v8")
        A(f"global_store_dwordx4 v56, v[8:11], s[28:29] {stf}")
        A("s_branch L_Pdone")
    A("L_fin:")
    if dbg:
        A("s_waitcnt vmcnt(0)")
        stamp(10)
        A("s_barrier")
        if cyc:
            for k in range(12): A(f"v_writelane_b32 v63, s{cycregs[k]}, {16+k}")
        A("s_lshl_b32 s60, s2, 2")
        A("s_add_u32 s60, s60, s3")
        A("s_lshl_b32 s60, s60, 7")
        A(f"s_add_u32 s60, s60, {WS_TS}")
        A("v_lshl_add_u32 v1, v0, 2, s60")
        A("s_mov_b32 exec_hi, 0")
        A("global_store_dword v1, v63, s[28:29]")
    A("L_end:")
    A("s_endpgm")
    pad_end("cf")
    A.raw(".p2align 7")
    A.raw(".type L_tab,@object")
    A.raw("L_tab:")
    for r in LY:
        ro = r["role"]
        assert (r["n"] - 8 - NLs[ro]) // 3 > 8 + NLs[ro] + 1 and (0, 65536, 114688, 65536)[ro] + 8192 * NLs[ro] <= L_SB
        d0 = ro | r["rb"] << 2 | r["rh"] << 3 | r["idx"] << 6 | r["pr"] << 11 | r["sp"] << 15 | NLs[ro] << 19 | max(0, 16 * P - stops[ro]) << 23
        d1 = r["first"] | r["n"] << 16 | r["rot"] << 24
        d2 = (0, 458752, 0, 1024)[ro] * r["rh"] + 128 * r["idx"]
        d3 = (0, 896, 3584, 8192)[ro] | (0, 64, 56, 56)[ro] << 16
        A.raw(f".long {d0}, {d1}, {d2}, {d3}")
    if al is not None:
        sbits = [b for b in range(9, 24) if b not in rows]
        for g in range(16):
            pl = next(r["pool"] for r in LY if r["pr"] == g)
            assert len(pl) == 16 * P
            pl = [sum(((t >> k) & 1) << (b - 9) for k, b in enumerate(sbits)) for t in pl] + [0] * (128 - len(pl))
            for k in range(0, 128, 16): A.raw(".short " + ", ".join(map(str, pl[k:k+16])))
    A.raw(f".size L_tab, {4096 if al is None else 8192}")
    A.raw('.section .rodata,"a"')
    A.raw(".p2align 6")
    A.raw(f".amdhsa_kernel {NAME}_kernel")
    A.raw("  .amdhsa_next_free_vgpr 512")
    A.raw("  .amdhsa_next_free_sgpr 96")
    A.raw("  .amdhsa_accum_offset 256")
    A.raw("  .amdhsa_group_segment_fixed_size 0")
    A.raw("  .amdhsa_kernarg_size 104")
    A.raw("  .amdhsa_user_sgpr_count 2")
    A.raw("  .amdhsa_user_sgpr_kernarg_segment_ptr 1")
    A.raw("  .amdhsa_system_sgpr_workgroup_id_x 1")
    A.raw("  .amdhsa_float_denorm_mode_32 3")
    A.raw(".end_amdhsa_kernel")
    from asmlib import Ins
    for n_, i_ in enumerate(A.L):
        if i_.is_ins and i_.target and i_.target.endswith("_top"):
            ch = i_.target[2:-4]
            A.L[n_] = Ins(f"s_branch L_{ch}{pads.count(ch)-1}")
    bad = A.check_edges(returns=[(a_, f"L_v{i_}") for a_ in ("L_mid_ret", "L_mid_ret2") for i_ in range(3)])
    for b in bad: print("EDGE HAZARD", b, file=sys.stderr)
    return A.text()

if __name__ == "__main__":
    import json
    kw = json.loads(sys.argv[2]) if len(sys.argv) > 2 else {}
    open(sys.argv[1], "w").write(gen(**kw))
    import subprocess, re
    subprocess.run(["clang", "-x", "assembler", "-target", "amdgcn-amd-amdhsa", "-mcpu=gfx950", "-c", sys.argv[1], "-o", "_g.o"], check=True)
    sy = subprocess.run(["llvm-objdump", "-t", "_g.o"], capture_output=True, text=True).stdout
    ch = {}
    for l in sy.splitlines():
        m = re.match(r"([0-9a-f]+) .* L_(c[a-z])(\d+|_end)$", l)
        if m: ch.setdefault(m.group(2), []).append(int(m.group(1), 16))
    ad = {l.split()[-1]: int(l.split()[0], 16) for l in sy.splitlines() if re.match(r"[0-9a-f]{16} ", l)}
    print("prologue blocks:", [hex(ad.get(k, 0)) for k in ("L_h0", "L_pp0", "L_pp1", "L_pend")], "ok" if ad["L_pend"] <= 3264 else "TOO LONG", file=sys.stderr)
    for k, v in ch.items():
        v.sort()
        d = [(b_ - 1) // 64 - a // 64 for a, b_ in zip(v, v[1:])]
        print(k, "pad spans (lines):", d, "TOO FAR" if max(d) > 16 else "", file=sys.stderr)
```
